```python
import torch

def _softmax(x, axis=-1):
    return torch.softmax(x, dim=axis)

def _gelu(x):
    return torch.nn.functional.gelu(x, approximate='tanh')

def _silu(x):
    return torch.nn.functional.silu(x)

def _sigmoid(x):
    return torch.sigmoid(x)

def _layernorm(x, axis=-1, eps=1e-05):
    m = x.mean(dim=axis, keepdim=True)
    v = x.var(dim=axis, keepdim=True, unbiased=False)
    return (x - m) / torch.sqrt(v + eps)

def _scatter_add(tgt, idx, src, axis=0):
    return tgt.clone().index_add_(axis, idx, src)

def _segment_sum(src, seg, n):
    out = torch.zeros((n,) + src.shape[1:], dtype=src.dtype)
    return out.index_add_(0, seg, src)

def _pad(x, pw):
    flat = tuple((v for pair in reversed(pw) for v in pair))
    return torch.nn.functional.pad(x, flat)
kernel_name = 'parallel_sum__memory_aug_recurrent_mem_tr__dense_activation_gelu__prompt'

def setup_inputs():

    _w = lambda a: (lambda t: t.to(torch.bfloat16) if t.is_floating_point() else t)(torch.as_tensor(a))

    def _A_setup():
        B, S, Dm = (1, 2048, 576)
        H, Dh = (32, 128)
        M, seg = (8, 32)
        seg = min(seg, S)
        S = S // seg * seg
        return {'x': _w((lambda *s: torch.randn(*s, dtype=torch.bfloat16) * 0.05)(B, S, Dm)), 'mem0': _w((lambda *s: torch.randn(*s, dtype=torch.bfloat16) * 0.2)(B, M, Dm)), 'Wq': _w((lambda *s: torch.randn(*s, dtype=torch.bfloat16) * 1.6)(Dm, H, Dh) * Dm ** (-0.5)), 'Wk': _w((lambda *s: torch.randn(*s, dtype=torch.bfloat16) * 1.6)(Dm, H, Dh) * Dm ** (-0.5)), 'Wv': _w((lambda *s: torch.randn(*s, dtype=torch.bfloat16) * 0.2)(Dm, H, Dh) * Dm ** (-0.5)), 'Wo': _w((lambda *s: torch.randn(*s, dtype=torch.bfloat16) * 0.2)(H, Dh, Dm) * (H * Dh) ** (-0.5)), 'seg_len': seg}
    _A_in = _A_setup()

    def _B_setup():
        B, S, D, F = (1, 2048, 576, 4608)
        return {'x': _w((lambda *s: torch.randn(*s, dtype=torch.bfloat16) * 0.05)(B, S, D)), 'w1': _w((lambda *s: torch.randn(*s, dtype=torch.bfloat16) * 0.8)(D, F) * D ** (-0.5)), 'b1': _w((lambda *s: torch.randn(*s, dtype=torch.bfloat16) * 12.8)(F) * 0.01), 'w2': _w((lambda *s: torch.randn(*s, dtype=torch.bfloat16) * 0.2)(F, D) * F ** (-0.5)), 'b2': _w((lambda *s: torch.randn(*s, dtype=torch.bfloat16) * 3.2)(D) * 0.01)}
    _B_in = _B_setup()
    return {'A_x': _A_in['x'], 'A_mem0': _A_in['mem0'], 'A_Wq': _A_in['Wq'], 'A_Wk': _A_in['Wk'], 'A_Wv': _A_in['Wv'], 'A_Wo': _A_in['Wo'], 'A_seg_len': _A_in['seg_len'], 'B_x': _B_in['x'], 'B_w1': _B_in['w1'], 'B_b1': _B_in['b1'], 'B_w2': _B_in['w2'], 'B_b2': _B_in['b2']}

def reference(A_x, A_mem0, A_Wq, A_Wk, A_Wv, A_Wo, A_seg_len, B_x, B_w1, B_b1, B_w2, B_b2):

    def _A_ref(x, mem0, Wq, Wk, Wv, Wo, seg_len):
        B, S, Dm = x.shape
        H, Dh = (Wq.shape[1], Wq.shape[2])
        M = mem0.shape[1]
        scale = Dh ** (-0.5)
        n_seg = S // seg_len
        L = M + seg_len
        idx = torch.arange(L)
        mask = (idx[:, None] < M) | (idx[:, None] >= idx[None, :])
        mem = mem0
        outs = []
        for s in range(n_seg):
            xs = x[:, s * seg_len:(s + 1) * seg_len, :].clone()
            h = torch.concatenate([mem, xs], axis=1)
            q = torch.einsum('btd,dhe->bhte', h, Wq)
            k = torch.einsum('btd,dhe->bhte', h, Wk)
            v = torch.einsum('btd,dhe->bhte', h, Wv)
            scores = torch.einsum('bhqe,bhke->bhqk', q, k) * scale
            scores = torch.where(mask[None, None], scores, -1000000000.0)
            p = _softmax(scores, axis=-1)
            o = torch.einsum('bhqk,bhke->bhqe', p, v)
            o = torch.einsum('bhte,hed->btd', o, Wo)
            mem = o[:, :M, :].clone()
            outs.append(o[:, M:, :])
        return torch.concatenate(outs, axis=1)

    def _B_ref(x, w1, b1, w2, b2):
        h = torch.einsum('bsd,df->bsf', x, w1) + b1
        h = _gelu(h)
        return torch.einsum('bsf,fd->bsd', h, w2) + b2
    x = A_x
    xn = _layernorm(x, axis=-1)
    return x + _A_ref(xn, A_mem0, A_Wq, A_Wk, A_Wv, A_Wo, A_seg_len) + _B_ref(xn, B_w1, B_b1, B_w2, B_b2)
```

```python
import re

TRANS = ("v_exp_f32", "v_log_f32", "v_rcp_f32", "v_rsq_f32", "v_sqrt_f32", "v_sin_f32", "v_cos_f32",
         "v_rcp_iflag_f32", "v_exp_f16", "v_log_f16", "v_rcp_f16", "v_rsq_f16", "v_sqrt_f16")

def _split_ops(s):
    out, depth, cur = [], 0, ""
    for ch in s:
        if ch in "[(":
            depth += 1
        elif ch in "])":
            depth -= 1
        if ch == "," and depth == 0:
            out.append(cur.strip()); cur = ""
        else:
            cur += ch
    if cur.strip():
        out.append(cur.strip())
    return out

_reg1 = re.compile(r"^-?\|?([vas])(\d+)\|?$")
_regn = re.compile(r"^-?\|?([vas])\[(\d+):(\d+)\]\|?$")

def regs_of(tok):
    tok = tok.strip()
    m = _reg1.match(tok)
    if m:
        k, n = m.group(1), int(m.group(2))
        return {("v", n)} if k == "v" else ({("v", 256 + n)} if k == "a" else {("s", n)})
    m = _regn.match(tok)
    if m:
        k, a, b = m.group(1), int(m.group(2)), int(m.group(3))
        if k == "v":
            return {("v", i) for i in range(a, b + 1)}
        if k == "a":
            return {("v", 256 + i) for i in range(a, b + 1)}
        return {("s", i) for i in range(a, b + 1)}
    if tok == "vcc":
        return {("s", "vcc_lo"), ("s", "vcc_hi")}
    if tok in ("vcc_lo", "vcc_hi"):
        return {("s", tok)}
    if tok == "exec":
        return {("s", "exec_lo"), ("s", "exec_hi")}
    if tok in ("exec_lo", "exec_hi"):
        return {("s", tok)}
    if tok == "m0":
        return {("s", "m0")}
    return set()

class Ins:
    def __init__(self, text):
        self.text = text.strip()
        t = self.text.split(";")[0].strip()
        parts = t.split(None, 1)
        self.op = parts[0]
        rest = parts[1] if len(parts) > 1 else ""
        ops = _split_ops(rest)
        self.mods = []
        if ops:
            last = ops[-1]
            toks = re.findall(r"(?:[^\s\[]|\[[^\]]*\])+", last)
            if len(toks) > 1:
                ops[-1] = toks[0]
                self.mods = toks[1:]
            elif len(toks) == 1 and len(ops) >= 1 and (":" in toks[0] and not toks[0].startswith(("v[", "s[", "a[", "-v[", "-a["))):
                pass
        self.ops = ops
        op = self.op
        self.is_mfma = op.startswith("v_mfma") or op.startswith("v_smfmac")
        self.is_smfmac = op.startswith("v_smfmac")
        self.is_valu = op.startswith("v_") and not self.is_mfma and op != "v_nop"
        self.is_vmem = op.startswith(("buffer_", "global_", "flat_"))
        self.is_ds = op.startswith("ds_")
        self.is_salu = op.startswith("s_")
        self.is_trans = any(op.startswith(t) for t in TRANS)
        self.is_dot = op.startswith("v_dot")
        self.is_dpp = any(m.startswith(("row_", "quad_perm", "wave_", "row_bcast", "row_newbcast")) for m in self.mods) or op.endswith("_dpp")
        self.is_perm = op.startswith("v_permlane")
        self.is_rl = op.startswith(("v_readfirstlane", "v_readlane"))
        self.is_opsel = any(m.startswith(("op_sel:", "dst_sel")) for m in self.mods) and self.is_valu and not op.startswith("v_pk_") and not op.startswith("v_dot")
        self.nop = 0
        if op == "s_nop":
            self.nop = int(ops[0], 0)
        self.defs, self.uses = set(), set()
        self.srcc = set(); self.srcab = set(); self.passes = 0
        self.store_data = set(); self.wide_store = False
        self.lds_dma = False
        R = regs_of
        if self.is_mfma:
            if "32x32" in op: self.passes = 8
            elif "16x16" in op: self.passes = 4
            elif "4x4" in op: self.passes = 2
            else: raise ValueError(op)
            self.defs = R(ops[0])
            if self.is_smfmac:
                self.srcab = R(ops[1]) | R(ops[2]) | R(ops[3])
                self.srcc = R(ops[0])
            else:
                self.srcab = R(ops[1]) | R(ops[2])
                self.srcc = R(ops[3])
            self.uses = self.srcab | self.srcc
            self.dtok = ops[0]
            self.ctok = ops[0] if self.is_smfmac else ops[3]
        elif self.is_valu:
            if op.startswith("v_cmp"):
                self.defs = R(ops[0])
                for o in ops[1:]: self.uses |= R(o)
                if op.startswith("v_cmpx"):
                    raise ValueError("no v_cmpx please")
            elif self.is_perm and "swap" in op:
                self.defs = R(ops[0]) | R(ops[1]); self.uses = set(self.defs)
            elif op.startswith(("v_add_co", "v_sub_co", "v_addc_co", "v_subb_co", "v_subrev_co")):
                self.defs = R(ops[0]) | R(ops[1])
                for o in ops[2:]: self.uses |= R(o)
            else:
                self.defs = R(ops[0])
                for o in ops[1:]: self.uses |= R(o)
                if op.startswith(("v_fmac", "v_mac", "v_dot2c", "v_pk_fmac", "v_writelane")) or self.is_dpp or self.is_opsel:
                    self.uses |= self.defs
                if op.startswith("v_cndmask") and len(ops) == 3:
                    self.uses |= R("vcc")
        elif self.is_vmem:
            lds = "lds" in self.mods or "_lds_" in op
            self.lds_dma = lds
            if op.startswith("buffer_"):
                if "store" in op:
                    self.store_data = R(ops[0]); self.uses |= self.store_data
                    for o in ops[1:]: self.uses |= R(o)
                    self.wide_store = op.endswith(("x3", "x4"))
                elif "atomic" in op:
                    self.store_data = R(ops[0]); self.uses |= self.store_data
                    for o in ops[1:]: self.uses |= R(o)
                    if "sc0" in self.mods: self.defs = R(ops[0])
                elif lds:
                    for o in ops: self.uses |= R(o)
                    self.uses |= R("m0")
                elif op.startswith(("buffer_wbl2", "buffer_inv")):
                    pass
                else:
                    self.defs = R(ops[0])
                    for o in ops[1:]: self.uses |= R(o)
            else:
                if "store" in op:
                    self.store_data = R(ops[1]); self.uses |= R(ops[0]) | R(ops[1])
                    for o in ops[2:]: self.uses |= R(o)
                    self.wide_store = op.endswith(("x3", "x4"))
                elif lds:
                    for o in ops: self.uses |= R(o)
                    self.uses |= R("m0")
                else:
                    self.defs = R(ops[0])
                    for o in ops[1:]: self.uses |= R(o)
        elif self.is_ds:
            if op.startswith(("ds_read", "ds_bpermute", "ds_permute", "ds_swizzle")):
                self.defs = R(ops[0])
                for o in ops[1:]: self.uses |= R(o)
            else:
                for o in ops: self.uses |= R(o)
                if "rtn" in op:
                    self.defs = R(ops[0])
        elif self.is_salu:
            if op.startswith(("s_cmp", "s_cbranch", "s_branch", "s_waitcnt", "s_barrier", "s_nop", "s_endpgm",
                              "s_setprio", "s_sleep", "s_bitcmp", "s_setreg", "s_sethalt")):
                for o in ops: self.uses |= R(o)
                if op.startswith("s_cbranch_vcc"): self.uses |= R("vcc")
                if op.startswith("s_cbranch_exec"): self.uses |= R("exec")
            else:
                self.defs = R(ops[0])
                for o in ops[1:]: self.uses |= R(o)
                if "saveexec" in op:
                    self.defs |= R("exec"); self.uses |= R("exec")

def _isv(s): return {r for r in s if r[0] == "v"}
def _iss(s): return {r for r in s if r[0] == "s"}

def need(p, c):
    n = 0
    pv = _isv(p.defs)
    if p.is_mfma:
        v8 = {2: 5, 4: 8, 8: 12}[p.passes]
        ov = {2: 4, 4: 6, 8: 10}[p.passes]
        if c.is_mfma:
            if pv & c.srcab: n = max(n, v8)
            if pv & c.srcc:
                if p.dtok == c.ctok and p.op == c.op and p.passes >= 4:
                    pass
                elif p.dtok == c.ctok and p.op == c.op:
                    n = max(n, 2)
                else:
                    n = max(n, ov)
            if (pv & c.defs) and not (pv & c.srcc):
                n = max(n, ov)
        elif c.is_valu or c.is_vmem or c.is_ds:
            if pv & (_isv(c.uses) | _isv(c.defs)): n = max(n, v8)
        if c.is_valu and (p.srcc & _isv(c.defs)):
            n = max(n, {2: 1, 4: 3, 8: 7}[p.passes])
    if p.is_valu:
        if c.is_mfma and (pv & c.uses): n = max(n, 2)
        if c.is_valu:
            if c.is_dpp and (pv & _isv(c.uses)): n = max(n, 2)
            if c.is_perm and (pv & _isv(c.uses)): n = max(n, 2)
            if c.is_rl and (pv & _isv(c.uses)): n = max(n, 1)
            if p.is_trans and not c.is_trans and (pv & _isv(c.uses)): n = max(n, 1)
            if p.is_trans and c.is_trans and (pv & _isv(c.uses)): n = max(n, 1)
            if p.is_opsel and (pv & (_isv(c.uses) | _isv(c.defs))): n = max(n, 1)
            if p.is_dot and (pv & (_isv(c.uses) | _isv(c.defs))):
                if c.op == p.op and c.is_dot and len(c.ops) == 4 and (pv & regs_of(c.ops[3])) and not (pv & (regs_of(c.ops[1]) | regs_of(c.ops[2]))):
                    pass
                else:
                    n = max(n, 3)
            ps = _iss(p.defs)
            if ps & _iss(c.uses):
                n = max(n, 4 if c.op.startswith(("v_readlane", "v_writelane")) else 2)
        if p.is_dot and (c.is_vmem or c.is_ds or c.is_mfma) and (pv & c.uses): n = max(n, 3)
        if c.is_vmem and (_iss(p.defs) & _iss(c.uses)): n = max(n, 5)
    if p.is_vmem and p.wide_store:
        d = p.store_data
        if c.is_valu and (d & _isv(c.defs)): n = max(n, 2)
        elif (c.is_mfma or c.is_vmem or c.is_ds) and (d & _isv(c.defs)): n = max(n, 2)
    if p.is_ds and p.op.startswith("ds_write"):
        pass
    if p.is_salu and ("s", "m0") in p.defs and (c.lds_dma or c.op.startswith("s_sendmsg")):
        n = max(n, 1)
    return n

class Label:
    def __init__(self, name): self.name = name

class Asm:
    def __init__(self):
        self.items = []
        self._uid = 0
    def uid(self, base="L"):
        self._uid += 1
        return f"{base}_{self._uid}"
    def __call__(self, text):
        for line in text.split("\n"):
            l = line.strip()
            if not l: continue
            if l.startswith(";"):
                self.items.append(l); continue
            if l.split(";")[0].strip().endswith(":"):
                self.items.append(Label(l.split(";")[0].strip()[:-1])); continue
            if l.startswith("."):
                self.items.append(l); continue
            self.items.append(Ins(l))
    def label(self, name):
        self.items.append(Label(name))
    def raw(self, text):
        self.items.append(text)

    WINDOW = 14
    TIMED = True
    def _tail(self, lst, idx):
        out = []; dist = 0; j = idx - 1
        while j >= 0 and dist < self.WINDOW:
            it = lst[j]
            if isinstance(it, Ins):
                if it.op in ("s_branch", "s_endpgm"):
                    break
                out.append((it, dist))
                dist += 1 + (it.nop if it.op == "s_nop" else 0)
            j -= 1
        return out

    def finalize(self):
        res = []
        for it in self.items:
            if isinstance(it, Ins):
                req = 0
                tail = self._tail(res, len(res))
                for k, (p, d) in enumerate(tail):
                    nd = need(p, it)
                    if nd <= 0: continue
                    if self.TIMED and p.is_mfma:
                        t = 0; busy = p.passes
                        for (x, _) in reversed(tail[:k]):
                            t += 1
                            if x.op == "s_nop": t += x.nop
                            if x.is_mfma:
                                t = max(t, busy); busy = t + x.passes
                        tc = t + 1
                        if it.is_mfma: tc = max(tc, busy)
                        if tc - 1 >= nd: continue
                        nn = nd - t
                    else:
                        nn = nd - d
                    if nn > req: req = nn
                while req > 0:
                    k = min(req, 16)
                    res.append(Ins(f"s_nop {k-1}")); req -= k
            res.append(it)
        changed = True
        while changed:
            changed = False
            labels = {it.name: i for i, it in enumerate(res) if isinstance(it, Label)}
            for i, it in enumerate(res):
                if isinstance(it, Ins) and (it.op.startswith("s_cbranch") or it.op == "s_branch"):
                    tgt = it.ops[0]
                    if tgt not in labels:
                        raise ValueError("unknown label " + tgt)
                    tail = []; dist = 0; j = i
                    first = True
                    while j >= 0 and dist < self.WINDOW:
                        x = res[j]
                        if isinstance(x, Ins):
                            if (not first) and x.op in ("s_branch", "s_endpgm"): break
                            tail.append((x, dist)); dist += 1 + (x.nop if x.op == "s_nop" else 0)
                            first = False
                        j -= 1
                    req = 0; hd = 0; j = labels[tgt] + 1
                    while j < len(res) and hd < self.WINDOW:
                        c = res[j]
                        if isinstance(c, Ins):
                            for (p, d) in tail:
                                nn = need(p, c) - d - hd
                                if nn > req: req = nn
                            hd += 1 + (c.nop if c.op == "s_nop" else 0)
                            if c.op in ("s_branch", "s_endpgm"): break
                        j += 1
                    if req > 0:
                        res.insert(i, Ins(f"s_nop {req-1}"))
                        changed = True
                        break
        out = []
        for it in res:
            if isinstance(it, Ins): out.append("  " + it.text)
            elif isinstance(it, Label): out.append(it.name + ":")
            else: out.append(it)
        return "\n".join(out) + "\n"

def vr(base, n=1):
    k = "v" if base < 256 else "a"
    b = base if base < 256 else base - 256
    if base < 256 and base + n > 256:
        raise ValueError("range crosses v/a boundary")
    return f"{k}{b}" if n == 1 else f"{k}[{b}:{b+n-1}]"

def sr(base, n=1):
    return f"s{base}" if n == 1 else f"s[{base}:{base+n-1}]"

class Cnt:
    def __init__(self, a, kind):
        self.a = a; self.kind = kind; self.q = []
        self.max = 63 if kind == "vmcnt" else 15
    def op(self, text, tag=None):
        self.a(text); self.q.append(tag)
    def wait(self, tag):
        if tag not in self.q:
            return
        idx = max(i for i, t in enumerate(self.q) if t == tag)
        n = len(self.q) - 1 - idx
        self.a(f"s_waitcnt {self.kind}({min(n, self.max)})")
        self.q = self.q[idx + 1:] if n <= self.max else self.q[-self.max:]
    def wait_all(self):
        self.a(f"s_waitcnt {self.kind}(0)"); self.q = []
    def has(self, tag):
        return tag in self.q
    def reset(self):
        self.q = []
```

```python
import sys
sys.path.insert(0, 'gen')
from asm import *
from layout import *
from common import *
import ln, qkv, ffn, follow, final

def k_ln():
    a = Asm()
    prologue_simple(a, 64, "L_ln_exit")
    a(f"s_mov_b32 s30, s{sRole}")
    ln.emit_ln(a, 30)
    a.label("L_ln_exit")
    a("s_endpgm")
    return a.finalize()

def k_qkv():
    a = Asm()
    prologue_simple(a, 96, "L_qk_exit")
    a(f"s_mov_b32 s96, s{sRole}")
    qkv.emit_qkv(a, "L_qk_exit")
    a.label("L_qk_exit")
    a("s_endpgm")
    return a.finalize()

def k_ffn():
    a = Asm()
    prologue_simple(a, 64, "L_ff_exit")
    a(f"s_mov_b32 s96, s{sRole}")
    ffn.emit_ffn(a, "L_ff_exit")
    a.label("L_ff_exit")
    a("s_endpgm")
    return a.finalize()

def k_follow():
    a = Asm()
    prologue_simple(a, 32, "L_fo_exit")
    a(f"s_mov_b32 s96, s{sRole}")
    follow.emit_follow(a, "L_fo_exit")
    a.label("L_fo_exit")
    a("s_endpgm")
    return a.finalize()

def k_final():
    a = Asm()
    prologue_simple(a, 576, "L_fi_exit")
    final.emit_final_init(a)
    a(f"s_lshl_b32 s30, s{sRole}, 2")
    a(f"s_add_u32 s30, s30, s{sW}")
    final.emit_final_task(a, 30)
    a("s_waitcnt vmcnt(0)")
    a.label("L_fi_exit")
    a("s_endpgm")
    return a.finalize()

def obj(kernels, launch):
    txt = HEADER.format(launch=launch)
    for name, body, _ in kernels:
        txt += kernel_open(name) + body
    txt += '.section .rodata,"a"\n.p2align 6\n'
    for name, _, (v, acc) in kernels:
        txt += kernel_desc(name, v, acc)
    return txt

if __name__ == "__main__":
    ks = [("ln_kernel", k_ln(), (512, 256)), ("qkv_kernel", k_qkv(), (512, 256))]
    launch = "; @launch kernel=ln_kernel grid=(64,1,1) block=(256,1,1) lds=4096\n; @launch kernel=qkv_kernel grid=(96,1,1) block=(256,1,1) lds=163840"
    open('p1.s', 'w').write(obj(ks, launch))
    ks = [("ln_kernel", k_ln(), (512, 256)), ("ffn_kernel", k_ffn(), (512, 256))]
    launch = "; @launch kernel=ln_kernel grid=(64,1,1) block=(256,1,1) lds=4096\n; @launch kernel=ffn_kernel grid=(64,1,1) block=(256,1,1) lds=163840"
    open('p2.s', 'w').write(obj(ks, launch))

    ks = [("fol_kernel", k_follow(), (512, 256)), ("fin_kernel", k_final(), (128, 128))]
    launch = "; @launch kernel=fol_kernel grid=(32,1,1) block=(256,1,1) lds=163840\n; @launch kernel=fin_kernel grid=(576,1,1) block=(256,1,1) lds=0"
    open('p3.s', 'w').write(obj(ks, launch))
```

```python
from asm import *
from layout import *
from common import *

WREG = 36864
LIMG = 147456
LSC  = LIMG + 9216
LMS  = LSC + 4096
LOB  = LMS + 1024
assert LOB + 2048 == 163840

sH, sS = 16, 18
sI8, sIW, sIW4 = 19, 20, 21
sPst = 22
sPrd = 24
sIwr, sIrst = 28, 29
sKT, sVT, sKM, sVM = 30, 31, 32, 33
sHas, sPoll = 34, 35
sTmp, sTmp2, sTmp3 = 36, 37, 38
sC = 39
mQ, mK, mLo8 = 40, 42, 44
mR = 46
sU = 54
sFlg = 56
sPstB, sPrdB, sIwrB, sIWB = 57, 58, 59, 55
sTS = 60
NSTAMP = 12

vL16, vIMG0, vIMGw, vWT, vMSw, vMSr, vOBw, vPst, vRld, vIst, vIdx, vOnePos, vPF, vDum = range(14)
AR = [14, 18, 22, 26, 30]
Q0, Q1, K0, K1, V0, V1 = 34, 38, 42, 46, 50, 54
ST = [58, 66]
SelQ, SelK = 74, 76
T0, T1 = 78, 79

def tuple_reg(i):
    return 80 + 8 * i if i < 22 else 256 + 8 * (i - 22)

RES_QKV = [("K", 1), ("V", 2), ("K", 4), ("V", 5), ("K", 7), ("V", 8)]
RES_WO_T = [2, 5, 8]
REG_QKV = [(m, s) for m in "QKV" for s in range(9) if (m, s) not in RES_QKV]
TUP = {}
_i = 0
for (m, s) in REG_QKV:
    for tau in range(2):
        TUP[(m, s, tau)] = tuple_reg(_i); _i += 1
for t in range(9):
    if t not in RES_WO_T:
        for kb in range(2):
            TUP[("O", t, kb)] = tuple_reg(_i); _i += 1
assert _i == 54
RESBLK = {b: 3 + i for i, b in enumerate(RES_QKV)}
RESBLK.update({("O", t): i for i, t in enumerate(RES_WO_T)})

def smf(a, d, areg, breg):
    a(f"v_smfmac_f32_16x16x64_bf16 {vr(d,4)}, {vr(areg,4)}, {vr(breg,8)}, v{vIdx}")

STAMPS = None
def stamp(a, k, on):
    if on and (STAMPS is None or k in STAMPS):
        a(f"s_memtime s[{sTS+2*k}:{sTS+2*k+1}]")

def emit_init(a, h_from_ticket=True):
    a(f"v_and_b32 v14, 63, v0")
    lane = 14
    a(f"""
v_lshlrev_b32 v{vL16}, 4, v{lane}
v_add_u32 v{vIMG0}, {LIMG}, v{vL16}
s_lshl_b32 s{sTmp}, s{sW}, 10
v_add_u32 v{vIMGw}, s{sTmp}, v{vIMG0}
s_mul_i32 s{sTmp}, s{sW}, {WREG}
v_add_u32 v{vWT}, s{sTmp}, v{vL16}
v_and_b32 v15, 15, v{lane}            ; n / m
v_lshrrev_b32 v16, 4, v{lane}         ; g / rg
v_and_b32 v17, 7, v15                 ; n&7
v_lshl_add_u32 v18, v16, 3, v17
v_lshlrev_b32 v18, 5, v18
v_add_u32 v{vMSr}, {LMS}, v18
s_lshl_b32 s{sTmp}, s{sW}, 3
v_add_u32 v{vMSw}, s{sTmp}, v{vMSr}
v_lshrrev_b32 v18, 1, v17
v_lshlrev_b32 v18, 2, v18
v_and_b32 v19, 1, v17
v_add_u32 v18, v18, v19               ; 4*(r>>1) + (r&1)
v_lshl_add_u32 v19, v16, 4, v18
s_and_b32 s{sTmp}, s{sW}, 1
s_lshl_b32 s{sTmp}, s{sTmp}, 1
v_add_u32 v19, s{sTmp}, v19
v_lshlrev_b32 v19, 4, v19
s_lshr_b32 s{sTmp}, s{sW}, 1
s_lshl_b32 s{sTmp}, s{sTmp}, 10
s_add_u32 s{sTmp}, s{sTmp}, {LOB}
v_add_u32 v{vOBw}, s{sTmp}, v19
v_and_b32 v19, 3, v15
v_lshl_add_u32 v19, v16, 2, v19
v_lshlrev_b32 v19, 4, v19
v_lshrrev_b32 v20, 2, v15
v_and_b32 v20, 1, v20
v_lshl_add_u32 v{vIst}, v20, 2, v19
v_lshlrev_b32 v{vPst}, 2, v{lane}
v_lshrrev_b32 v19, 2, v15
v_lshlrev_b32 v19, 6, v19
v_and_b32 v20, 1, v15
v_lshl_add_u32 v19, v20, 4, v19
v_lshrrev_b32 v20, 1, v15
v_and_b32 v20, 1, v20                 ; eta(m)
v_lshl_add_u32 v21, v16, 1, v20
v_mul_u32_u24 v21, 9216, v21
v_add_u32 v{vRld}, v19, v21
v_mov_b32 v21, 0x4444
v_mov_b32 v22, 0xeeee
v_cmp_eq_u32 vcc, 1, v20
v_cndmask_b32 v{vIdx}, v21, v22, vcc
; vOnePos = (n&1) ? 0x3f800000 : 0x3f80
v_and_b32 v21, 1, v15
v_mov_b32 v22, 0x3f80
v_mov_b32 v23, 0x3f800000
v_cmp_eq_u32 vcc, 1, v21
v_cndmask_b32 v{vOnePos}, v22, v23, vcc
; masks
v_lshrrev_b32 v21, 1, v17             ; (n&7)>>1
v_cmp_eq_u32 s[{mQ}:{mQ+1}], v21, v16
v_lshrrev_b32 v22, 2, v15             ; n>>2
v_cmp_eq_u32 s[{mK}:{mK+1}], v22, v16
v_cmp_gt_u32 s[{mLo8}:{mLo8+1}], 8, v15
v_cmp_eq_u32 s[{mR}:{mR+1}], 0, v21
v_cmp_eq_u32 s[{mR+2}:{mR+3}], 1, v21
v_cmp_eq_u32 s[{mR+4}:{mR+5}], 2, v21
v_cmp_eq_u32 s[{mR+6}:{mR+7}], 3, v21
v_lshlrev_b32 v21, 7, v15
v_and_b32 v22, 1, v16
v_mul_u32_u24 v22, {(VT-KT)>>12}, v22
v_lshlrev_b32 v22, 12, v22
v_add_u32 v{vPF}, v21, v22
v_cndmask_b32 v{SelQ}, 0, v{vOnePos}, s[{mQ}:{mQ+1}]
v_cndmask_b32 v{SelQ+1}, 0, v{vOnePos}, s[{mQ}:{mQ+1}]
v_cndmask_b32 v{SelK}, 0, v{vOnePos}, s[{mK}:{mK+1}]
v_cndmask_b32 v{SelK+1}, 0, v{vOnePos}, s[{mK}:{mK+1}]
s_mov_b32 s{sC}, 0x3e0293ee          ; 128^-0.5 * log2(e)
""")
    a(f"""
s_lshl_b32 s{sTmp}, s{sH}, 2
s_add_u32 s{sTmp}, s{sTmp}, s{sW}
s_mul_i32 s{sTmp}, s{sTmp}, 5120
s_add_u32 s{sTmp}, s{sTmp}, {IMG}
v_mov_b32 v24, -1
v_mov_b32 v25, -1
v_mov_b32 v26, -1
v_mov_b32 v27, -1
""")
    for i in range(5):
        a(f"buffer_store_dwordx4 v[24:27], v{vL16}, s[{sWS}:{sWS+3}], s{sTmp} offen sc1")
        if i < 4: a(f"s_add_u32 s{sTmp}, s{sTmp}, 1024")
    vm = Cnt(a, "vmcnt"); vm.q = ["rst"] * 5
    srd(a, sT, KA["Wo"], 32 * 128 * 576 * 2)
    for i in range(9):
        a(f"""v_add_u32 v28, {64*i}, v{lane}
v_mul_u32_u24 v29, 3641, v28
v_lshrrev_b32 v29, 16, v29
v_mul_u32_u24 v39, 18, v29
v_sub_u32 v39, v28, v39
v_mul_u32_u24 v29, 1152, v29
v_lshl_add_u32 v{30+i}, v39, 4, v29""")
    a(f"""s_mul_i32 s{sTmp}, s{sH}, 147456
s_mul_i32 s{sTmp2}, s{sW}, 288
s_add_u32 s{sTmp}, s{sTmp}, s{sTmp2}
s_mul_i32 s{sTmp3}, s{sW}, {WREG}""")
    for r in range(4):
        for i in range(9):
            a(f"s_add_u32 m0, s{sTmp3}, {(r*9+i)*1024}")
            vm.op(f"buffer_load_dwordx4 v{30+i}, s[{sT}:{sT+3}], s{sTmp} offen lds", "wo%d" % (r // 2))
        if r < 3: a(f"s_add_u32 s{sTmp}, s{sTmp}, {32*1152}")
    a(f"""v_lshrrev_b32 v28, 5, v{lane}
v_lshlrev_b32 v28, 3, v28              ; 8*b3
v_bfe_u32 v29, v{lane}, 2, 1
v_lshl_add_u32 v28, v29, 2, v28        ; + 4*b0
v_bfe_u32 v29, v{lane}, 4, 1
v_lshl_add_u32 v28, v29, 1, v28        ; + 2*b2
v_bfe_u32 v29, v{lane}, 3, 1
v_add_u32 v28, v28, v29                ; + b1
v_lshlrev_b32 v28, 13, v28
v_lshrrev_b32 v29, 5, v{lane}
v_lshlrev_b32 v29, 1, v29
v_and_b32 v39, 3, v{lane}
v_xor_b32 v29, v29, v39
v_lshl_add_u32 v28, v29, 4, v28""")
    vDma = 78
    a(f"v_mov_b32 v{vDma}, v28")
    a(f"""v_lshrrev_b32 v28, 2, v15           ; r
v_lshl_add_u32 v28, v16, 3, v28        ; 8gb + r
v_lshlrev_b32 v28, 6, v28
v_and_b32 v29, 1, v16
v_lshlrev_b32 v29, 5, v29              ; 2*(gb&1)*16
v_and_b32 v39, 3, v15                  ; c
v_lshlrev_b32 v39, 3, v39              ; c*8 = (c>>1)*16 + (c&1)*8
v_add3_u32 v28, v28, v29, v39
s_mul_i32 s{sTmp}, s{sW}, {WREG}
v_add_u32 v{vDum}, s{sTmp}, v28
v_xor_b32 v79, 32, v{vDum}""")
    vTr0, vTr1 = vDum, 79
    vTrO = 77
    a(f"""v_lshrrev_b32 v28, 2, v15           ; r
v_lshrrev_b32 v29, 1, v28
v_lshlrev_b32 v29, 5, v29              ; 32*(r>>1)
v_and_b32 v28, 1, v28
v_add_u32 v29, v29, v28
v_and_b32 v28, 1, v16
v_lshl_add_u32 v29, v28, 4, v29
v_lshrrev_b32 v28, 1, v16
v_lshl_add_u32 v29, v28, 2, v29
v_mul_u32_u24 v29, 288, v29
v_and_b32 v28, 3, v15
v_lshl_add_u32 v29, v28, 3, v29
v_add_u32 v62, s{sTmp}, v29""")
    vTrO = 62
    WOT = {(t, kb): 14 + 8 * (2 * i + kb) for i, t in enumerate(RES_WO_T) for kb in range(2)}
    def wo_reads(kb):
        for t in range(9):
            dst = TUP[("O", t, kb)] if t not in RES_WO_T else WOT[(t, kb)]
            for kh in range(2):
                for sub in range(2):
                    off = (64 * kb + 8 * kh + 2 * sub) * 288 + t * 32
                    a(f"ds_read_b64_tr_b16 {vr(dst + 4*kh + 2*sub, 2)}, v{vTrO} offset:{off}")
    seq = REG_QKV + RES_QKV
    srd_of = {"Q": KA["Wq"], "K": KA["Wk"], "V": KA["Wv"]}
    sM = {"Q": 64, "K": 68, "V": 72}
    for m in "QKV":
        srd(a, sM[m], srd_of[m], 576 * 32 * 128 * 2)
    a(f"""s_lshl_b32 s{sTmp}, s{sH}, 8
s_lshl_b32 s{sTmp2}, s{sW}, 6
s_add_u32 s{sTmp}, s{sTmp}, s{sTmp2}
s_add_u32 s76, s{sTmp}, {8*16*8192}""")
    for sl in range(1, 9):
        x = [None, 0, 0, 1, 2, 3, 1, 2, 3][sl]
        up = sl in (2, 6, 7, 8)
        a(f"s_xor_b32 s{sTmp2}, s{sW}, {x}")
        if up: a(f"s_add_u32 s{sTmp2}, s{sTmp2}, 4")
        a(f"s_lshl_b32 s{sTmp2}, s{sTmp2}, 17")
        a(f"s_add_u32 s{76+sl}, s{sTmp}, s{sTmp2}")
    a(f"s_mul_i32 s{sTmp3}, s{sW}, {WREG}")
    def dma_block(n):
        m, sl = seq[n]
        blk = n % 9
        for i in range(4):
            a(f"s_add_u32 s{sTmp}, s{76+sl}, {144*i*8192}")
            a(f"s_add_u32 m0, s{sTmp3}, {blk*4096 + i*1024}")
            vm.op(f"buffer_load_dwordx4 v{vDma}, s[{sM[m]}:{sM[m]+3}], s{sTmp} offen lds", f"b{n}")
    vm.wait("wo0")
    wo_reads(0)
    a("s_waitcnt lgkmcnt(0)")
    for n in range(4): dma_block(n)
    vm.wait("wo1")
    wo_reads(1)
    a("s_waitcnt lgkmcnt(0)")
    for n in range(4, 9): dma_block(n)
    RT = 62
    for n in range(27):
        m, sl = seq[n]
        blk = n % 9
        vm.wait(f"b{n}")
        res = (m, sl) in RES_QKV
        for tau in range(2):
            dst = TUP[(m, sl, tau)] if not res else (tuple_tmp[tau])
            for kh in range(2):
                for sub in range(2):
                    a(f"ds_read_b64_tr_b16 {vr(dst + 4*kh + 2*sub, 2)}, v{vTr0 if tau == 0 else vTr1} offset:{blk*4096 + sub*256 + kh*2048}")
        a("s_waitcnt lgkmcnt(0)")
        if n + 9 < 27:
            dma_block(n + 9)
        if n in (18, 19, 20):
            t = RES_WO_T[n - 18]
            for kb in range(2):
                for hf in range(2):
                    a(f"ds_write_b128 v{vWT}, {vr(WOT[(t,kb)] + 4*hf, 4)} offset:{blk*4096 + kb*2048 + hf*1024}")
        if res:
            for tau in range(2):
                for hf in range(2):
                    a(f"ds_write_b128 v{vWT}, {vr(tuple_tmp[tau] + 4*hf, 4)} offset:{blk*4096 + tau*2048 + hf*1024}")
            a("s_waitcnt lgkmcnt(0)")
    a("s_waitcnt lgkmcnt(0)")

tuple_tmp = [14, 22]

def emit_scalars(a):
    a(f"""
s_lshl_b32 s{sTmp}, s{sW}, 10
s_add_u32 s{sIWB}, s{sTmp}, {IMG}
; sPstB = P + h*9216 + w*2304
s_mul_i32 s{sTmp}, s{sH}, 9216
s_mul_i32 s{sTmp2}, s{sW}, 2304
s_add_u32 s{sTmp}, s{sTmp}, s{sTmp2}
s_add_u32 s{sPstB}, s{sTmp}, {P}
s_lshl_b32 s{sTmp}, s{sW}, 5
s_add_u32 s{sU}, s{sTmp}, s{sH}
s_cmp_lt_u32 s{sU}, 72
s_cselect_b32 s{sHas}, 1, 0
s_lshr_b32 s{sTmp}, s{sU}, 1
s_lshl_b32 s{sTmp}, s{sTmp}, 8
s_and_b32 s{sTmp2}, s{sU}, 1
s_lshl_b32 s{sTmp2}, s{sTmp2}, 5
s_add_u32 s{sTmp}, s{sTmp}, s{sTmp2}
s_add_u32 s{sPrdB}, s{sTmp}, {P}
; T = u>>1 ; g' = T/9 ; t = T%9 ; sIwrB = IMG + t*1024 + g'*256 + (u&1)*8
s_lshr_b32 s{sTmp}, s{sU}, 1
s_mul_i32 s{sTmp2}, s{sTmp}, 57
s_lshr_b32 s{sTmp2}, s{sTmp2}, 9          ; T/9 for T<64 (57/512)
s_mul_i32 s{sTmp3}, s{sTmp2}, 9
s_sub_u32 s{sTmp}, s{sTmp}, s{sTmp3}      ; t
s_lshl_b32 s{sTmp}, s{sTmp}, 10
s_lshl_b32 s{sTmp2}, s{sTmp2}, 8
s_add_u32 s{sTmp}, s{sTmp}, s{sTmp2}
s_and_b32 s{sTmp2}, s{sU}, 1
s_lshl_b32 s{sTmp2}, s{sTmp2}, 3
s_add_u32 s{sTmp}, s{sTmp}, s{sTmp2}
s_add_u32 s{sIwrB}, s{sTmp}, {IMG}
s_lshl_b32 s{sTmp}, s{sH}, 2
s_add_u32 s{sTmp}, s{sTmp}, s{sW}
s_lshl_b32 s{sTmp2}, s{sTmp}, 11
s_add_u32 s{sKT}, s{sTmp2}, {KT}
s_add_u32 s{sVT}, s{sTmp2}, {VT}
s_lshl_b32 s{sTmp2}, s{sTmp}, 10
s_add_u32 s{sKM}, s{sTmp2}, {KM}
s_add_u32 s{sVM}, s{sTmp2}, {VM}
s_lshl_b32 s{sTmp}, s{sH}, 8
s_add_u32 s{sFlg}, s{sTmp}, {FLAGS}
s_mov_b32 s{sS}, 0
""")

def emit_gather_scalars(a):
    a(f"""
s_add_u32 s{sTmp}, s{sS}, 1
s_and_b32 s{sTmp}, s{sTmp}, 3
s_mul_i32 s{sTmp}, s{sTmp}, 9216
s_add_u32 s{sIW}, s{sIWB}, s{sTmp}
s_add_u32 s{sIW4}, s{sIW}, 4096
s_add_u32 s{sI8}, s{sTmp}, {IMG + 8192}
s_add_u32 s{sIwr}, s{sIwrB}, s{sTmp}
""")

def emit_part_scalars(a):
    a(f"""
s_add_u32 s{sTmp}, s{sS}, 3
s_and_b32 s{sTmp}, s{sTmp}, 3
s_mul_i32 s{sTmp}, s{sTmp}, 9216
s_add_u32 s{sIrst}, s{sIwrB}, s{sTmp}
s_and_b32 s{sTmp}, s{sS}, 1
s_mul_i32 s{sTmp}, s{sTmp}, {PSLOT}
s_add_u32 s{sPst}, s{sPstB}, s{sTmp}
s_add_u32 s{sPrd}, s{sPrdB}, s{sTmp}
s_add_u32 s{sPrd+1}, s{sPrd}, {8*9216}
s_add_u32 s{sPrd+2}, s{sPrd}, {16*9216}
s_add_u32 s{sPrd+3}, s{sPrd}, {24*9216}
""")

def emit_mem0(a):
    srd(a, sT, KA["mem0"], 8 * 576 * 2)
    a(f"""
v_lshrrev_b32 v58, 4, v{vL16}          ; lane
v_and_b32 v59, 15, v58                 ; m
v_lshrrev_b32 v60, 4, v58              ; g
v_lshrrev_b32 v61, 2, v59
v_lshlrev_b32 v61, 1, v61
v_and_b32 v62, 1, v59
v_add_u32 v61, v61, v62                ; rho
v_mul_u32_u24 v61, 1152, v61
v_mul_u32_u24 v60, 288, v60
v_add_u32 v61, v61, v60
v_lshrrev_b32 v62, 1, v59
v_and_b32 v62, 1, v62
v_lshl_add_u32 v61, v62, 1, v61
s_lshl_b32 s{sTmp}, s{sW}, 5
s_add_u32 s{sTmp2}, s{sTmp}, 128
s_movk_i32 s{sTmp3}, 256
""")
    for k, so in enumerate((sTmp3, sTmp, sTmp2)):
        for jp in range(4):
            o = 16*(jp >> 1) + 4*(jp & 1)
            a(f"buffer_load_ushort v{AR[k]+jp}, v61, s[{sT}:{sT+3}], s{so} offen offset:{o}")
            a(f"buffer_load_ushort v{62+4*k+jp}, v61, s[{sT}:{sT+3}], s{so} offen offset:{o+8}")
    a("s_waitcnt vmcnt(0)")
    for k in range(3):
        for jp in range(4):
            a(f"v_lshl_or_b32 v{AR[k]+jp}, v{62+4*k+jp}, 16, v{AR[k]+jp}")

def stage_load(a, lg, blk, half, tag):
    if "nostage" in X: return
    for hf in range(2):
        lg.op(f"ds_read_b128 {vr(ST[half]+4*hf,4)}, v{vWT} offset:{blk*4096 + half*2048 + hf*1024}", tag)

def zero(a, regs):
    for r in regs: a(f"v_mov_b32 v{r}, 0")

def bounded(a, lab_retry, lab_fail):
    a(f"s_add_u32 s{sPoll}, s{sPoll}, 1")
    a(f"s_cmp_lt_u32 s{sPoll}, {POLL_MAX}")
    a(f"s_cbranch_scc1 {lab_retry}")
    a(f"s_branch {lab_fail}")

POLL_MAX = 400000
DBG_LAST = 63
X = set()
DBG_DUMP = False
def dump(a, k, base, n=4):
    if not DBG_DUMP: return
    lab = a.uid("L_dump")
    a(f"s_cmp_lg_u32 s{sS}, 0")
    a(f"s_cbranch_scc1 {lab}")
    a(f"s_lshl_b32 s{sTmp}, s{sH}, 2")
    a(f"s_add_u32 s{sTmp}, s{sTmp}, s{sW}")
    a(f"s_lshl_b32 s{sTmp}, s{sTmp}, 14")
    a(f"s_add_u32 s{sTmp}, s{sTmp}, {DBG + 0x10000 + k*1024}")
    a("s_nop 7\ns_nop 7")
    op = {1: "dword", 2: "dwordx2", 4: "dwordx4"}[n]
    a(f"buffer_store_{op} {vr(base,n)}, v{vL16}, s[{sWS}:{sWS+3}], s{sTmp} offen")
    a("s_waitcnt vmcnt(0)")
    a.label(lab)

def emit_loop(a, sc, tm, sfx):
    WS = f"s[{sWS}:{sWS+3}]"
    L = lambda n: f"L_{n}_{sfx}"
    lg = Cnt(a, "lgkmcnt"); vm = Cnt(a, "vmcnt")
    a(f"s_branch {L('got')}")
    def gloads():
        a(f"buffer_load_dwordx4 {vr(AR[0],4)}, v{vL16}, {WS}, s{sI8} offen sc1")
        a(f"buffer_load_dwordx4 {vr(AR[1],4)}, v{vL16}, {WS}, s{sIW} offen sc1")
        a(f"buffer_load_dwordx4 {vr(AR[2],4)}, v{vL16}, {WS}, s{sIW4} offen sc1")
    a.label(L("loop"))
    gloads()
    stamp(a, 0, tm)
    zero(a, range(34, 58))
    a(f"s_mov_b32 s{sPoll}, 0")
    a(f"s_add_u32 s{sS}, s{sS}, 1")
    a("s_waitcnt vmcnt(0)")
    a(f"s_branch {L('gchk')}")
    a.label(L("gpoll"))
    gloads()
    a("s_waitcnt vmcnt(0)")
    a.label(L("gchk"))
    a(f"""v_max3_u32 v{T0}, v14, v15, v16
v_max3_u32 v{T1}, v17, v18, v19
v_max3_u32 v{T0}, v{T0}, v20, v21
v_max3_u32 v{T1}, v{T1}, v22, v23
v_max3_u32 v{T0}, v{T0}, v24, v25
v_max3_u32 v{T0}, v{T0}, v{T1}, v{T1}
v_cmp_eq_u32 vcc, -1, v{T0}
s_cbranch_vccz {L('got')}""")
    if "nosync" not in X: bounded(a, L("gpoll"), "L_fail")
    a.label(L("got"))
    stamp(a, 1, tm)
    lg.q = ["st0", "st0", "st1", "st1"]
    lg.op(f"ds_write_b128 v{vIMGw}, {vr(AR[1],4)}", "iw")
    lg.op(f"ds_write_b128 v{vIMGw}, {vr(AR[2],4)} offset:4096", "iw")
    order = {0: "QKV", 1: "KQV", 2: "QKV", 3: "QKV", 4: "KQV", 5: "QKV", 6: "QKV", 7: "KQV", 8: "QKV"}
    acc = {"Q": (Q0, Q1), "K": (K0, K1), "V": (V0, V1)}
    ring = {3: 3, 4: 4, 5: 0, 6: 1, 7: 2, 8: 3}
    def ring_read(sl):
        x = [None, 0, 0, 1, 2, 3, 1, 2, 3][sl]
        up = sl in (2, 6, 7, 8)
        a(f"v_xor_b32 v{T0}, {x << 10}, v{vIMGw}")
        lg.op(f"ds_read_b128 {vr(AR[ring[sl]],4)}, v{T0} offset:{4096 if up else 0}", f"r{sl}")
    res_next = {("K",1): ("V",2), ("V",2): ("K",4), ("K",4): ("V",5), ("V",5): ("K",7), ("K",7): ("V",8)}
    arof = lambda sl: AR[sl] if sl < 3 else AR[ring[sl]]
    for sl in range(9):
        if sl >= 3: lg.wait(f"r{sl}")
        for m in order[sl]:
            for tau in range(2):
                if (m, sl) in RES_QKV:
                    if lg.has(f"st{tau}"): lg.wait(f"st{tau}")
                    smf(a, acc[m][tau], arof(sl), ST[tau])
                    if (m, sl) in res_next:
                        stage_load(a, lg, RESBLK[res_next[(m, sl)]], tau, f"st{tau}")
                else:
                    smf(a, acc[m][tau], arof(sl), TUP[(m, sl, tau)])
        if sl == 0:
            lg.wait("iw")
            a("s_barrier")
            ring_read(3); ring_read(4)
            if "noflag" not in X:
                a(f"s_cmp_lg_u32 s{sW}, 3")
                a(f"s_cbranch_scc1 {L('nf')}")
                a(f"v_mov_b32 v{T0}, s{sS}")
                a("s_mov_b64 exec, 1")
                a(f"buffer_store_dword v{T0}, off, {WS}, s{sFlg} sc1")
                a("s_mov_b64 exec, -1")
                a.label(L("nf"))
            ring_read(5)
        if sl == 1: ring_read(6)
        if sl == 2: emit_part_scalars(a)
        if sl == 6: emit_gather_scalars(a)
        if sl == 2: ring_read(7)
        if sl == 3: ring_read(8)
        if sl == 4: a(f"buffer_load_dwordx4 {vr(AR[4],4)}, v{vL16}, {WS}, s{sKT} offen")
        if sl == 5: a(f"buffer_load_dwordx4 {vr(AR[0],4)}, v{vL16}, {WS}, s{sKT} offen offset:1024")
        if sl == 6: a(f"buffer_load_dwordx4 {vr(AR[1],4)}, v{vL16}, {WS}, s{sVT} offen")
        if sl == 7: a(f"buffer_load_dwordx4 {vr(AR[2],4)}, v{vL16}, {WS}, s{sVT} offen offset:1024")
    stamp(a, 2, tm)
    cvt = lambda d, x, y: a(f"v_cvt_pk_bf16_f32 v{d}, v{x}, v{y}")
    for base in (Q0, Q1, K0, K1):
        cvt(base, base, base + 1); cvt(base + 1, base + 2, base + 3)
        a(f"v_mfma_f32_16x16x16_bf16 {vr(58 + (base-Q0),4)}, {vr(base,2)}, {vr(SelQ if base < K0 else SelK,2)}, 0")
    cvt(50, 50, 51); cvt(51, 52, 53); cvt(52, 54, 55); cvt(53, 56, 57)
    a(f"buffer_store_dwordx4 v[50:53], v{vL16}, {WS}, s{sVM} offen sc1")
    for i in range(4): cvt(34 + i, 58 + 2*i, 59 + 2*i)
    for i in range(4): cvt(42 + i, 66 + 2*i, 67 + 2*i)
    a(f"buffer_store_dwordx4 v[42:45], v{vL16}, {WS}, s{sKM} offen sc1")
    a(f"s_cmp_eq_u32 s{sS}, {DBG_LAST}")
    a(f"s_cbranch_scc1 {L('done')}")
    dump(a, 0, 34)
    a("s_waitcnt vmcnt(4)")
    a(f"v_mfma_f32_16x16x32_bf16 v[58:61], {vr(AR[4],4)}, v[34:37], 0")
    a(f"v_mfma_f32_16x16x32_bf16 v[62:65], {vr(AR[0],4)}, v[34:37], 0")
    a(f"v_mfma_f32_16x16x32_bf16 v[66:69], v[42:45], v[34:37], 0")
    zero(a, range(38, 42)); zero(a, range(46, 50))
    for i in range(4):
        a(f"v_cndmask_b32 v{70+i}, v{62+i}, v{58+i}, s[{mLo8}:{mLo8+1}]")
    a(f"ds_write_b128 v{vIMGw}, v[70:73] offset:9216")
    a(f"ds_write_b64 v{vMSw}, v[66:67]")
    zero(a, range(34, 38)); zero(a, range(42, 46))
    a("s_waitcnt lgkmcnt(0)")
    a("s_barrier")
    stamp(a, 3, tm)
    lg.reset()
    for w2 in range(4):
        lg.op(f"ds_read_b128 {vr(58+4*w2,4)}, v{vIMG0} offset:{9216 + w2*1024}", f"t{w2}")
    lg.op(f"ds_read_b128 v[14:17], v{vMSr}", "m0")
    lg.op(f"ds_read_b128 v[26:29], v{vMSr} offset:16", "m1")
    lg.wait("t1")
    for i in range(4): a(f"v_add_f32 v{58+i}, v{58+i}, v{62+i}")
    lg.wait("t3")
    for i in range(4): a(f"v_add_f32 v{66+i}, v{66+i}, v{70+i}")
    for i in range(4): a(f"v_add_f32 v{58+i}, v{58+i}, v{66+i}")
    lg.wait("m1")
    a("""v_add_f32 v14, v14, v16
v_add_f32 v15, v15, v17
v_add_f32 v26, v26, v28
v_add_f32 v27, v27, v29
v_add_f32 v62, v14, v26
v_add_f32 v63, v15, v27""")
    dump(a, 1, 58); dump(a, 2, 62, 2)
    a(f"""v_max3_f32 v{T0}, v58, v59, v60
v_max3_f32 v{T1}, v61, v62, v63
v_max_f32 v{T0}, v{T0}, v{T1}
v_max_f32_dpp v{T0}, v{T0}, v{T0} row_ror:8 row_mask:0xf bank_mask:0xf
v_mov_b32 v{T1}, v{T0}
v_permlane16_swap_b32 v{T0}, v{T1}
v_max_f32 v{T0}, v{T0}, v{T1}
v_mov_b32 v{T1}, v{T0}
v_permlane32_swap_b32 v{T0}, v{T1}
v_max_f32 v{T0}, v{T0}, v{T1}
v_mul_f32 v{T0}, s{sC}, v{T0}""")
    for i in range(6): a(f"v_fma_f32 v{58+i}, v{58+i}, s{sC}, -v{T0}")
    for i in range(6): a(f"v_exp_f32 v{58+i}, v{58+i}")
    for r in range(64, 69): a(f"v_mov_b32 v{r}, 0x3f803f80")
    a("v_mov_b32 v69, 0")
    a("""v_cvt_pk_bf16_f32 v58, v58, v59
v_cvt_pk_bf16_f32 v59, v60, v61
v_cvt_pk_bf16_f32 v62, v62, v63
v_mov_b32_dpp v60, v58 row_ror:8 row_mask:0xf bank_mask:0xf
v_mov_b32_dpp v61, v59 row_ror:8 row_mask:0xf bank_mask:0xf
v_mov_b32 v63, v62""")
    stamp(a, 4, tm)
    dump(a, 3, 58); dump(a, 4, 62, 2)
    a("s_waitcnt vmcnt(2)")
    a(f"""v_mfma_f32_16x16x32_bf16 v[26:29], v[64:67], v[58:61], 0
v_mfma_f32_16x16x32_bf16 v[30:33], {vr(AR[1],4)}, v[58:61], 0
v_mfma_f32_16x16x32_bf16 v[14:17], {vr(AR[2],4)}, v[58:61], 0
v_mfma_f32_16x16x16_bf16 v[26:29], v[68:69], v[62:63], v[26:29]
v_mfma_f32_16x16x16_bf16 v[30:33], v[50:51], v[62:63], v[30:33]
v_mfma_f32_16x16x16_bf16 v[14:17], v[52:53], v[62:63], v[14:17]""")
    a(f"s_add_u32 s{sTmp}, s{sKT}, {32*4*2048}")
    a(f"buffer_load_dword v{vDum}, v{vPF}, {WS}, s{sTmp} offen")
    dump(a, 5, 26); dump(a, 6, 30); dump(a, 7, 14)
    a(f"v_rcp_f32 v{T0}, v26")
    zero(a, range(18, 26))
    for i in range(4): a(f"v_mul_f32 v{30+i}, v{30+i}, v{T0}")
    for i in range(4): a(f"v_mul_f32 v{14+i}, v{14+i}, v{T0}")
    a("""v_cvt_pk_bf16_f32 v70, v30, v31
v_cvt_pk_bf16_f32 v71, v32, v33
v_cvt_pk_bf16_f32 v72, v14, v15
v_cvt_pk_bf16_f32 v73, v16, v17""")
    a(f"s_mov_b64 exec, s[{mLo8}:{mLo8+1}]")
    lg.reset()
    lg.op(f"ds_write_b128 v{vOBw}, v[70:73]", "ow")
    a("s_mov_b64 exec, -1")
    wo_order = [2, 0, 1, 3, 5, 4, 6, 7, 8]
    stage_load(a, lg, RESBLK[("O", 2)], 0, "st0")
    stage_load(a, lg, RESBLK[("O", 2)], 1, "st1")
    zero(a, range(14, 18)); zero(a, range(26, 34))
    lg.wait("ow")
    a("s_barrier")
    lg.op(f"ds_read_b128 v[50:53], v{vIMG0} offset:{LOB-LIMG}", "a0")
    lg.op(f"ds_read_b128 v[54:57], v{vIMG0} offset:{LOB-LIMG+1024}", "a1")
    stamp(a, 5, tm)
    lg.wait("a1")
    dump(a, 8, 50); dump(a, 9, 54)
    nxt = {2: 5, 5: 8}
    def wo_epi(t):
        d = 14 + 4 * t
        a(f"v_add_f32 v{d}, v{d}, v{d+2}")
        a(f"v_add_f32 v{d+1}, v{d+1}, v{d+3}")
        a(f"v_cvt_pk_bf16_f32 v{d}, v{d}, v{d+1}")
        if "nopst" not in X: a(f"buffer_store_dword v{d}, v{vPst}, {WS}, s{sPst} offen offset:{t*256}{sc}")
    for i, t in enumerate(wo_order):
        d = 14 + 4 * t
        for kb in range(2):
            if t in RES_WO_T:
                if lg.has(f"st{kb}"): lg.wait(f"st{kb}")
                smf(a, d, 50 + 4*kb, ST[kb])
                if t in nxt: stage_load(a, lg, RESBLK[("O", nxt[t])], kb, f"st{kb}")
            else:
                smf(a, d, 50 + 4*kb, TUP[("O", t, kb)])
        if i == 0:
            a(f"""s_add_u32 s{sKT}, s{sKT}, {32*4*2048}
s_add_u32 s{sVT}, s{sVT}, {32*4*2048}
s_add_u32 s{sKM}, s{sKM}, {32*4*1024}
s_add_u32 s{sVM}, s{sVM}, {32*4*1024}""")
        if i >= 2: wo_epi(wo_order[i-2])
    wo_epi(wo_order[-2]); wo_epi(wo_order[-1])
    stamp(a, 6, tm)
    lg.reset()
    stage_load(a, lg, RESBLK[("K", 1)], 0, "st0")
    stage_load(a, lg, RESBLK[("K", 1)], 1, "st1")
    def tdump():
        if not tm: return
        lab = a.uid("L_td")
        a(f"s_cmp_lg_u32 s{sS}, 41")
        a(f"s_cbranch_scc1 {lab}")
        a("s_waitcnt lgkmcnt(0)")
        a(f"s_lshl_b32 s{sTmp}, s{sH}, 2")
        a(f"s_add_u32 s{sTmp}, s{sTmp}, s{sW}")
        a(f"s_lshl_b32 s{sTmp}, s{sTmp}, 6")
        a(f"s_add_u32 s{sTmp}, s{sTmp}, {DBG}")
        for k in range(NSTAMP):
            a(f"v_mov_b32 v{T0}, s{sTS+2*k}")
            a(f"buffer_store_dword v{T0}, off, {WS}, s{sTmp} offset:{4*k}")
        a("s_waitcnt vmcnt(0)")
        a.label(lab)
    a(f"s_cmp_eq_u32 s{sHas}, 0")
    a(f"s_cbranch_scc1 {L('nored')}")
    a(f"s_mov_b32 s{sPoll}, 0")
    for p in range(4):
        a(f"v_cndmask_b32 v{30+p}, 0, v{vOnePos}, s[{mR+2*p}:{mR+2*p+1}]")
    for r in range(38, 42): a(f"v_mov_b32 v{r}, -1")
    a.label(L("rpoll"))
    for ld in range(4):
        a(f"buffer_load_dwordx4 {vr(14+4*ld,4)}, v{vRld}, {WS}, s{sPrd+ld} offen sc1")
    a("s_waitcnt vmcnt(0)")
    a(f"""v_max3_u32 v{T0}, v14, v15, v16
v_max3_u32 v{T1}, v17, v18, v19
v_max3_u32 v{T0}, v{T0}, v20, v21
v_max3_u32 v{T1}, v{T1}, v22, v23
v_max3_u32 v{T0}, v{T0}, v24, v25
v_max3_u32 v{T1}, v{T1}, v26, v27
v_max3_u32 v{T0}, v{T0}, v28, v29
v_max_u32 v{T0}, v{T0}, v{T1}
v_cmp_eq_u32 vcc, -1, v{T0}
s_cbranch_vccz {L('rgot')}""")
    if "nosync" not in X: bounded(a, L("rpoll"), "L_fail")
    a.label(L("rgot"))
    stamp(a, 7, tm)
    dump(a, 10, 14); dump(a, 11, 18)
    for ld in range(4):
        a(f"v_mfma_f32_16x16x32_bf16 v[34:37], {vr(14+4*ld,4)}, v[30:33], {'0' if ld == 0 else 'v[34:37]'}")
    a("""v_add_f32 v34, v34, v36
v_add_f32 v35, v35, v37
v_cvt_pk_bf16_f32 v34, v34, v35""")
    a(f"s_mov_b64 exec, s[{mLo8}:{mLo8+1}]")
    a(f"buffer_store_dword v34, v{vIst}, {WS}, s{sIwr} offen{sc}")
    a("s_mov_b64 exec, -1")
    gloads()
    a(f"s_mov_b64 exec, s[{mLo8}:{mLo8+1}]")
    a(f"buffer_store_dword v38, v{vIst}, {WS}, s{sIrst} offen{sc}")
    a("s_mov_b64 exec, -1")
    for ld in range(4):
        a(f"buffer_store_dwordx4 v[38:41], v{vRld}, {WS}, s{sPrd+ld} offen{sc}")
    stamp(a, 8, tm)
    tdump()
    zero(a, range(34, 38)); zero(a, range(42, 58)); zero(a, range(38, 42))
    a(f"s_mov_b32 s{sPoll}, 0")
    a(f"s_add_u32 s{sS}, s{sS}, 1")
    a("s_waitcnt vmcnt(5)")
    a(f"s_branch {L('gchk')}")
    a.label(L("nored"))
    tdump()
    a(f"s_branch {L('loop')}")
    a.label(L("done"))
    if tm:
        a("s_memtime s[86:87]")
        a("s_waitcnt lgkmcnt(0)")
        a(f"s_sub_u32 s86, s86, s84")
        a(f"s_lshl_b32 s{sTmp}, s{sH}, 2")
        a(f"s_add_u32 s{sTmp}, s{sTmp}, s{sW}")
        a(f"s_lshl_b32 s{sTmp}, s{sTmp}, 6")
        a(f"s_add_u32 s{sTmp}, s{sTmp}, {DBG}")
        a(f"v_mov_b32 v{T0}, s86")
        a(f"buffer_store_dword v{T0}, off, {WS}, s{sTmp} offset:{4*NSTAMP}")
        a(f"s_sub_u32 s86, s84, s88")
        a(f"v_mov_b32 v{T0}, s86")
        a(f"buffer_store_dword v{T0}, off, {WS}, s{sTmp} offset:{4*NSTAMP+4}")
    a("s_waitcnt vmcnt(0)")
    a("s_barrier")
    a(f"s_cmp_lg_u32 s{sW}, 3")
    a(f"s_cbranch_scc1 L_exit")
    a(f"v_mov_b32 v{T0}, 64")
    a(f"buffer_store_dword v{T0}, off, {WS}, s{sFlg} sc1")
    a("s_branch L_exit")

def emit_chain(a, tm=False):
    a.label("L_chain")
    if tm: a("s_memtime s[88:89]")
    a(f"s_mov_b32 s{sH}, s{sRole}")
    emit_init(a)
    emit_scalars(a)
    a(f"""s_waitcnt vmcnt(0)
s_barrier
s_cmp_lg_u32 s{sW}, 0
s_cbranch_scc1 L_cb_wait
s_mov_b64 exec, 1
v_mov_b32 v58, 1
buffer_atomic_add v58, off, s[{sDBG}:{sDBG+3}], 0 offset:{4*D_CHB} sc1
s_mov_b64 exec, -1
L_cb_wait:""")
    emit_mem0(a)
    lg = Cnt(a, "lgkmcnt")
    stage_load(a, lg, RESBLK[("K", 1)], 0, "st0")
    stage_load(a, lg, RESBLK[("K", 1)], 1, "st1")
    zero(a, range(34, 58))
    a(f"""s_mov_b32 s{sPoll}, 0
L_cb_poll:
buffer_load_dwordx4 v[26:29], off, s[{sDBG}:{sDBG+3}], 0 sc1
s_waitcnt vmcnt(0)
v_readfirstlane_b32 s{sTmp}, v{26+D_CHB}
v_readfirstlane_b32 s{sTmp2}, v{26+D_OFFX}
s_cmp_ge_u32 s{sTmp}, 32
s_cbranch_scc1 L_cb_ok""")
    bounded(a, "L_cb_poll", "L_fail")
    a.label("L_cb_ok")
    if tm: a("s_memtime s[84:85]")
    a(f"s_cmp_lg_u32 s{sTmp2}, 0")
    a("s_cbranch_scc1 L_chain_slow")
    emit_loop(a, "", tm, "f")
    a.label("L_chain_slow")
    emit_loop(a, " sc1", tm, "s")
```

```python
from asm import *
from layout import *

sWS, sT, sDBG = 4, 8, 12
sW, sRole, sXcc = 17, 97, 98
D_CNT0, D_CNTG, D_OFFX, D_CHB = 0, 1, 2, 3
D_ERR = 8

def prologue(a, nwg=256, nchain=32, lab_exit="L_exit"):
    import os
    if "ts" in os.environ.get("XF", "").split(","): a("s_memtime s[86:87]")
    a(f"s_cmp_ge_u32 s2, {nwg}")
    a(f"s_cbranch_scc1 {lab_exit}")
    srd(a, sWS, KA["ws"], WS_BYTES)
    srd(a, sDBG, KA["dbg"], 256)
    a(f"""
v_lshrrev_b32 v1, 6, v0
v_readfirstlane_b32 s{sW}, v1
s_getreg_b32 s{sXcc}, hwreg(HW_REG_XCC_ID)
s_and_b32 s{sXcc}, s{sXcc}, 15
s_cmp_lg_u32 s{sW}, 0
s_cbranch_scc1 L_role_wait
s_mov_b64 exec, 1
v_mov_b32 v1, 1
s_cmp_lg_u32 s{sXcc}, 0
s_cbranch_scc1 L_role_glob
buffer_atomic_add v1, off, s[{sDBG}:{sDBG+3}], 0 offset:{4*D_CNT0} sc0 sc1
s_waitcnt vmcnt(0)
v_readfirstlane_b32 s{sRole}, v1
s_cmp_lt_u32 s{sRole}, {nchain}
s_cbranch_scc1 L_role_done
L_role_glob:
v_mov_b32 v1, 1
buffer_atomic_add v1, off, s[{sDBG}:{sDBG+3}], 0 offset:{4*D_CNTG} sc0 sc1
s_waitcnt vmcnt(0)
v_readfirstlane_b32 s{sRole}, v1
s_add_u32 s{sRole}, s{sRole}, {nchain}
s_cmp_lt_u32 s{sRole}, {nwg}
s_cbranch_scc1 L_role_done
v_mov_b32 v1, 1
buffer_atomic_add v1, off, s[{sDBG}:{sDBG+3}], 0 offset:{4*D_CNT0} sc0 sc1
s_waitcnt vmcnt(0)
v_readfirstlane_b32 s{sRole}, v1
v_mov_b32 v1, 1
buffer_atomic_or v1, off, s[{sDBG}:{sDBG+3}], 0 offset:{4*D_OFFX} sc1
s_waitcnt vmcnt(0)
L_role_done:
v_mov_b32 v1, s{sRole}
v_mov_b32 v2, 0
ds_write_b32 v2, v1
s_waitcnt lgkmcnt(0)
s_mov_b64 exec, -1
L_role_wait:
s_barrier
v_mov_b32 v2, 0
ds_read_b32 v1, v2
s_waitcnt lgkmcnt(0)
v_readfirstlane_b32 s{sRole}, v1
s_barrier
""")

def prologue_simple(a, nwg, lab_exit):
    a(f"s_cmp_ge_u32 s2, {nwg}")
    a(f"s_cbranch_scc1 {lab_exit}")
    srd(a, sWS, KA["ws"], WS_BYTES)
    srd(a, sDBG, KA["dbg"], 256)
    a(f"""
v_lshrrev_b32 v1, 6, v0
v_readfirstlane_b32 s{sW}, v1
s_mov_b32 s{sRole}, s2
""")
```

```python
from asm import *
from layout import *
from common import *

sTile, sFS, sSeg, sA, sB, sCn, sW1, sW2, sFt, sLw, sC0, sC1 = 18, 19, 20, 21, 22, 23, 24, 25, 26, 27, 28, 29
sT1, sT2 = 8, 32
vL16, vD1, vA1, vA2, vSt, vB1, vA1b, vA2b = 1, 2, 3, 4, 5, 6, 7, 208
RING = [8 + 4 * i for i in range(8)]
H, PK, XR, GT = 40, 56, 64, 210
LB = [0, 73728]
LBIAS = 147456
def oreg(dt): return 256 + 16 * dt if dt < 16 else 224 + 16 * (dt - 16)
C0 = -2.0 * 0.7978845608028654 * 1.4426950408889634
C1 = C0 * 0.044715

def dma(a, buf):
    for k in range(9):
        a(f"s_add_u32 s{sCn}, s{sW1}, {k*16*9216}")
        a(f"s_add_u32 m0, s{sLw}, {LB[buf] + 1024*k}")
        a(f"buffer_load_dwordx4 v{vD1}, s[{sT1}:{sT1+3}], s{sCn} offen lds")
    for k in range(9):
        a(f"s_add_u32 s{sCn}, s{sW2}, {k*1024}")
        a(f"s_add_u32 m0, s{sLw}, {LB[buf] + 36864 + 1024*k}")
        a(f"buffer_load_dwordx4 v{vL16}, s[{sT2}:{sT2+3}], s{sCn} offen lds")
    a(f"s_add_u32 s{sW1}, s{sW1}, 64")
    a(f"s_add_u32 s{sW2}, s{sW2}, 36864")

def emit_ffn(a, lab_end, fused=None):
    WS = f"s[{sWS}:{sWS+3}]"
    srd(a, sT1, KA["w1"], 576 * 4608 * 2)
    srd(a, sT2, KA["w2"], 576 * 4608 * 2)
    a(f"""
s_lshr_b32 s{sTile}, s96, 2
s_and_b32 s{sFS}, s96, 3
s_lshl_b32 s{sSeg}, s{sTile}, 2
s_add_u32 s{sSeg}, s{sSeg}, s{sW}
v_and_b32 v9, 63, v0
v_lshlrev_b32 v{vL16}, 4, v9
; W1 DMA lane offset: (l>>2)*9216 + (l&3)*16
v_lshrrev_b32 v10, 2, v9
v_mul_u32_u24 v10, 9216, v10
v_and_b32 v11, 3, v9
v_lshl_add_u32 v{vD1}, v11, 4, v10
; sW1 = fs*2304 + w*9*16*9216 ; sW2 = fs*1152*1152 + w*9216 ; sLw = w*9216
s_mul_i32 s{sW1}, s{sFS}, 2304
s_mul_i32 s{sA}, s{sW}, {9*16*9216}
s_add_u32 s{sW1}, s{sW1}, s{sA}
s_mul_i32 s{sW2}, s{sFS}, {1152*1152}
s_mul_i32 s{sLw}, s{sW}, 9216
s_add_u32 s{sW2}, s{sW2}, s{sLw}
; A1 tr address: (8hi + r)*64 + (q&1)*32 + c*8
v_lshrrev_b32 v10, 5, v9          ; hi
v_bfe_u32 v11, v9, 2, 2           ; r
v_lshl_add_u32 v12, v10, 3, v11
v_lshlrev_b32 v12, 6, v12
v_bfe_u32 v13, v9, 4, 1
v_lshlrev_b32 v13, 5, v13
v_and_b32 v14, 3, v9
v_lshl_add_u32 v13, v14, 3, v13   ; (q&1)*32 + c*8
v_add_u32 v{vA1}, v12, v13
v_add_u32 v{vA1b}, {LB[1]}, v{vA1}
; A2 tr address: 36864 + (4hi + r)*1152 + (q&1)*32 + c*8
v_lshl_add_u32 v12, v10, 2, v11
v_mul_u32_u24 v12, 1152, v12
v_add_u32 v12, v12, v13
v_add_u32 v{vA2}, 36864, v12
v_add_u32 v{vA2b}, {LB[1]}, v{vA2}
; bias read address: LBIAS + 4hi*4
v_lshlrev_b32 v12, 4, v10
v_add_u32 v{vB1}, {LBIAS}, v12
; store lane offset: hi*256 + (tok&15)*16 + (tok>>4)*8
v_lshlrev_b32 v12, 8, v10
v_and_b32 v13, 15, v9
v_lshl_add_u32 v12, v13, 4, v12
v_bfe_u32 v13, v9, 4, 1
v_lshl_add_u32 v{vSt}, v13, 3, v12
s_mov_b32 s{sC0}, {C0!r}
s_mov_b32 s{sC1}, {C1!r}
""".replace(f"s_mov_b32 s{sC0}, {C0!r}", f"s_mov_b32 s{sC0}, {f32bits(C0)}").replace(f"s_mov_b32 s{sC1}, {C1!r}", f"s_mov_b32 s{sC1}, {f32bits(C1)}"))
    dma(a, 0)
    sTb = 36
    srd(a, sTb, KA["b1"], 4608 * 2)
    a(f"""
s_mul_i32 s{sA}, s{sFS}, 2304
v_lshlrev_b32 v10, 3, v0
buffer_load_dwordx2 v[12:13], v10, s[{sTb}:{sTb+3}], s{sA} offen
v_lshlrev_b32 v11, 4, v0
v_add_u32 v11, {LBIAS}, v11
s_add_u32 s{sB}, s{sA}, 2048
v_cmp_gt_u32 vcc, 32, v0
s_and_saveexec_b64 s[40:41], vcc
s_cbranch_execz L_ffn_b1
buffer_load_dwordx2 v[14:15], v10, s[{sTb}:{sTb+3}], s{sB} offen
s_waitcnt vmcnt(0)
v_lshlrev_b32 v16, 16, v14
v_and_b32 v17, 0xffff0000, v14
v_lshlrev_b32 v18, 16, v15
v_and_b32 v19, 0xffff0000, v15
ds_write_b128 v11, v[16:19] offset:4096
L_ffn_b1:
s_mov_b64 exec, s[40:41]
s_waitcnt vmcnt(0)
v_lshlrev_b32 v16, 16, v12
v_and_b32 v17, 0xffff0000, v12
v_lshlrev_b32 v18, 16, v13
v_and_b32 v19, 0xffff0000, v13
ds_write_b128 v11, v[16:19]
""")
    if fused: fused["wait_xn"](a)
    a(f"s_mul_i32 s{sA}, s{sSeg}, 36864")
    a(f"s_add_u32 s{sA}, s{sA}, {XN}")
    for ks in range(36):
        a(f"s_add_u32 s{sB}, s{sA}, {1024*ks}")
        a(f"buffer_load_dwordx4 {vr(XR + 4*ks, 4)}, v{vL16}, {WS}, s{sB} offen")
    for r in range(256): a(f"v_accvgpr_write_b32 a{r}, 0")
    for r in range(224, 256): a(f"v_mov_b32 v{r}, 0")
    a(f"s_mov_b32 s{sFt}, 0")
    a("s_waitcnt lgkmcnt(0)")

    def body(buf):
        a("s_waitcnt vmcnt(0)")
        a("s_barrier")
        lab = a.uid("L_fnd")
        a(f"s_cmp_ge_u32 s{sFt}, 35")
        a(f"s_cbranch_scc1 {lab}")
        dma(a, buf ^ 1)
        a.label(lab)
        lg = Cnt(a, "lgkmcnt")
        A1, A2 = (vA1b, vA2b) if buf else (vA1, vA2)
        for q in range(4):
            lg.op(f"ds_read_b128 {vr(H+4*q,4)}, v{vB1} offset:{32*q}", "bias")
        a(f"v_add_u32 v{vB1}, 128, v{vB1}")
        frs = [("1", ks) for ks in range(36)] + [("2", kk, dt) for kk in range(2) for dt in range(18)]
        def rd(n):
            f = frs[n]; d = RING[n % 8]
            if f[0] == "1":
                o = f[1] * 1024
                lg.op(f"ds_read_b64_tr_b16 {vr(d,2)}, v{A1} offset:{o}")
                lg.op(f"ds_read_b64_tr_b16 {vr(d+2,2)}, v{A1} offset:{o+256}", f"f{n}")
            else:
                o = f[1] * 18432 + f[2] * 64
                lg.op(f"ds_read_b64_tr_b16 {vr(d,2)}, v{A2} offset:{o}")
                lg.op(f"ds_read_b64_tr_b16 {vr(d+2,2)}, v{A2} offset:{o+9216}", f"f{n}")
        D = 5
        for n in range(D): rd(n)
        for n in range(72):
            f = frs[n]
            if n == 36:
                for g in range(4):
                    xs = [H + 4*g + i for i in range(4)]; ts = [GT + 4*(g & 1) + i for i in range(4)]
                    for x, t in zip(xs, ts): a(f"v_mul_f32 v{t}, v{x}, v{x}")
                    for x, t in zip(xs, ts): a(f"v_fma_f32 v{t}, v{t}, s{sC1}, v{GT+8}")
                    for x, t in zip(xs, ts): a(f"v_mul_f32 v{t}, v{t}, v{x}")
                    for x, t in zip(xs, ts): a(f"v_exp_f32 v{t}, v{t}")
                    for x, t in zip(xs, ts): a(f"v_add_f32 v{t}, 1.0, v{t}")
                    for x, t in zip(xs, ts): a(f"v_rcp_f32 v{t}, v{t}")
                    for x, t in zip(xs, ts): a(f"v_mul_f32 v{x}, v{x}, v{t}")
                    a(f"v_cvt_pk_bf16_f32 v{PK + 2*g}, v{xs[0]}, v{xs[1]}")
                    a(f"v_cvt_pk_bf16_f32 v{PK + 2*g + 1}, v{xs[2]}, v{xs[3]}")
            lg.wait(f"f{n}")
            d = RING[n % 8]
            if f[0] == "1":
                a(f"v_mfma_f32_32x32x16_bf16 {vr(H,16)}, {vr(d,4)}, {vr(XR+4*f[1],4)}, {vr(H,16)}")
            else:
                a(f"v_mfma_f32_32x32x16_bf16 {vr(oreg(f[2]),16)}, {vr(d,4)}, {vr(PK+4*f[1],4)}, {vr(oreg(f[2]),16)}")
            if n + D < 72: rd(n + D)
        a(f"s_add_u32 s{sFt}, s{sFt}, 1")
    a(f"v_mov_b32 v{GT+8}, s{sC0}")
    a.label("L_ffn_loop")
    body(0)
    body(1)
    a(f"s_cmp_lt_u32 s{sFt}, 36")
    a("s_cbranch_scc1 L_ffn_loop")
    a(f"""s_lshl_b32 s{sA}, s{sSeg}, 2
s_add_u32 s{sA}, s{sA}, s{sFS}
s_mul_i32 s{sA}, s{sA}, 36864
s_add_u32 s{sA}, s{sA}, {FB}""")
    for dt in range(18):
        for q in range(4):
            o = oreg(dt) + 4 * q
            t = 8 + 8 * ((dt * 4 + q) % 4)
            if o >= 256:
                for i in range(4): a(f"v_accvgpr_read_b32 v{t+i}, {vr(o+i)}")
                src = t
            else: src = o
            a(f"v_cvt_pk_bf16_f32 v{t+4}, v{src}, v{src+1}")
            a(f"v_cvt_pk_bf16_f32 v{t+5}, v{src+2}, v{src+3}")
            off = (2 * dt + (q >> 1)) * 1024 + (q & 1) * 512
            a(f"s_add_u32 s{sB}, s{sA}, {off}")
            a(f"buffer_store_dwordx2 v[{t+4}:{t+5}], v{vSt}, {WS}, s{sB} offen sc1")
    a("s_waitcnt vmcnt(0)")
    if fused: fused["fin"](a)
    a(f"s_branch {lab_end}")

import struct
def f32bits(x):
    return "0x%08x" % struct.unpack("<I", struct.pack("<f", x))[0]
```

```python
from asm import *
from layout import *
from common import *

sA, sB, sCn, sS, sCh = 21, 22, 23, 24, 25
sTx, sTo, sTb = 8, 32, 36
vL16, vRow = 1, 2

def emit_final_init(a):
    srd(a, sTx, KA["x"], 2048 * 576 * 2)
    srd(a, sTo, KA["out"], 2048 * 576 * 2)
    srd(a, sTb, KA["b2"], 576 * 2)
    a(f"""
v_and_b32 v5, 63, v0
v_lshlrev_b32 v{vL16}, 4, v5
v_and_b32 v6, 15, v5
v_lshrrev_b32 v7, 4, v5
v_mul_u32_u24 v6, 1152, v6
v_lshl_add_u32 v{vRow}, v7, 3, v6        ; n*1152 + g*8
v_lshlrev_b32 v3, 3, v7                  ; g*8
""")

def emit_final_task(a, sTask):
    WS = f"s[{sWS}:{sWS+3}]"
    a(f"""
s_mul_i32 s{sS}, s{sTask}, 1821
s_lshr_b32 s{sS}, s{sS}, 16
s_mul_i32 s{sA}, s{sS}, 36
s_sub_u32 s{sCh}, s{sTask}, s{sA}
s_mul_i32 s{sA}, s{sS}, {16*36864}
s_lshl_b32 s{sB}, s{sCh}, 10
s_add_u32 s{sA}, s{sA}, s{sB}
s_add_u32 s{sA}, s{sA}, {PO}
""")
    P0 = 8
    for p in range(16):
        a(f"buffer_load_dwordx4 {vr(P0+4*p,4)}, v{vL16}, {WS}, s{sA} offen")
        if p < 15: a(f"s_add_u32 s{sA}, s{sA}, 36864")
    a(f"""s_mul_i32 s{sA}, s{sS}, {4*36864}
s_add_u32 s{sA}, s{sA}, s{sB}
s_add_u32 s{sA}, s{sA}, {FB}""")
    F0 = 72
    for p in range(4):
        a(f"buffer_load_dwordx4 {vr(F0+4*p,4)}, v{vL16}, {WS}, s{sA} offen")
        if p < 3: a(f"s_add_u32 s{sA}, s{sA}, 36864")
    a(f"""s_mul_i32 s{sA}, s{sS}, 36864
s_lshl_b32 s{sB}, s{sCh}, 5
s_add_u32 s{sA}, s{sA}, s{sB}
s_add_u32 s{sCn}, s{sA}, {16*1152}
buffer_load_dwordx2 v[88:89], v{vRow}, s[{sTx}:{sTx+3}], s{sA} offen
buffer_load_dwordx2 v[90:91], v{vRow}, s[{sTx}:{sTx+3}], s{sCn} offen
buffer_load_dwordx2 v[92:93], v3, s[{sTb}:{sTb+3}], s{sB} offen""")
    A = 96
    def accum(dst, src, first):
        for i in range(4):
            if first:
                a(f"v_lshlrev_b32 v{dst+2*i}, 16, v{src+i}")
                a(f"v_and_b32 v{dst+2*i+1}, 0xffff0000, v{src+i}")
            else:
                a(f"v_lshlrev_b32 v112, 16, v{src+i}")
                a(f"v_and_b32 v113, 0xffff0000, v{src+i}")
                a(f"v_add_f32 v{dst+2*i}, v{dst+2*i}, v112")
                a(f"v_add_f32 v{dst+2*i+1}, v{dst+2*i+1}, v113")
    for p in range(16):
        a(f"s_waitcnt vmcnt({22 - p})")
        accum(A, P0 + 4*p, p == 0)
    for p in range(4):
        a(f"s_waitcnt vmcnt({6 - p})")
        accum(A + 8, F0 + 4*p, p == 0)
    a("s_waitcnt vmcnt(0)")
    for i in range(4):
        xa = 88 + i; b2 = 92 + (i & 1)
        a(f"""v_cvt_pk_bf16_f32 v112, v{A+2*i}, v{A+2*i+1}
v_cvt_pk_bf16_f32 v113, v{A+8+2*i}, v{A+8+2*i+1}
v_lshlrev_b32 v114, 16, v112
v_and_b32 v115, 0xffff0000, v112
v_lshlrev_b32 v116, 16, v{xa}
v_and_b32 v117, 0xffff0000, v{xa}
v_add_f32 v114, v114, v116
v_add_f32 v115, v115, v117
v_cvt_pk_bf16_f32 v112, v114, v115
v_lshlrev_b32 v114, 16, v113
v_and_b32 v115, 0xffff0000, v113
v_lshlrev_b32 v116, 16, v{b2}
v_and_b32 v117, 0xffff0000, v{b2}
v_add_f32 v114, v114, v116
v_add_f32 v115, v115, v117
v_cvt_pk_bf16_f32 v113, v114, v115
v_lshlrev_b32 v114, 16, v112
v_and_b32 v115, 0xffff0000, v112
v_lshlrev_b32 v116, 16, v113
v_and_b32 v117, 0xffff0000, v113
v_add_f32 v114, v114, v116
v_add_f32 v115, v115, v117
v_cvt_pk_bf16_f32 v{120+i}, v114, v115""")
    a(f"buffer_store_dwordx2 v[120:121], v{vRow}, s[{sTo}:{sTo+3}], s{sA} offen")
    a(f"buffer_store_dwordx2 v[122:123], v{vRow}, s[{sTo}:{sTo+3}], s{sCn} offen")
```

```python
from asm import *
from layout import *
from common import *

sHP, sPar, sSeg, sA, sB, sCn, sTok, sMem, sPO, sQt, sC, sIt = 18, 19, 20, 21, 22, 23, 24, 25, 26, 27, 28, 29
sM0, sM1 = 40, 48
sT = 8
vL16, vOBw, vOBr, vOBr1 = 1, 2, 3, 4
S0, S1, S2, PT, PM, SUM, ONES, ONZ, T0, T1 = 8, 12, 16, 20, 24, 26, 30, 34, 36, 37
KMR, VMR, QR, KR, VR, ACC = 40, 56, 72, 88, 120, 152
OPK = 184
WREG = 36864
def wreg(t, hl, kb):
    i = (t * 2 + hl) * 4 + kb
    return 256 + 4 * i if i < 64 else 224 + 4 * (i - 64)
OB = [0, 16384]

def emit_follow_init(a):
    a(f"""
s_and_b32 s{sHP}, s96, 15
s_lshr_b32 s{sPar}, s96, 4
v_and_b32 v5, 63, v0
v_lshlrev_b32 v{vL16}, 4, v5
""")
    srd(a, sT, KA["Wo"], 32 * 128 * 576 * 2)
    for i in range(9):
        a(f"""v_add_u32 v6, {64*i}, v5
v_mul_u32_u24 v7, 3641, v6
v_lshrrev_b32 v7, 16, v7
v_mul_u32_u24 v8, 18, v7
v_sub_u32 v8, v6, v8
v_mul_u32_u24 v7, 1152, v7
v_lshl_add_u32 v{10+i}, v8, 4, v7""")
    a(f"""s_mul_i32 s{sA}, s{sHP}, {2*147456}
s_mul_i32 s{sB}, s{sW}, 288
s_add_u32 s{sA}, s{sA}, s{sB}
s_mul_i32 s{sB}, s{sW}, {WREG}
v_lshrrev_b32 v6, 4, v5
v_lshlrev_b32 v6, 2, v6
v_bfe_u32 v7, v5, 2, 2
v_add_u32 v6, v6, v7
v_mul_u32_u24 v6, 288, v6
v_and_b32 v7, 3, v5
v_lshl_add_u32 v6, v7, 3, v6
v_add_u32 v6, s{sB}, v6
""")
    for hl in range(2):
        for r in range(4):
            for i in range(9):
                a(f"s_add_u32 m0, s{sB}, {(r*9+i)*1024}")
                a(f"buffer_load_dwordx4 v{10+i}, s[{sT}:{sT+3}], s{sA} offen lds")
            a(f"s_add_u32 s{sA}, s{sA}, {32*1152}")
        for kb in range(4):
            a(f"s_waitcnt vmcnt({27 - 9*kb})")
            for t in range(9):
                for half in range(2):
                    a(f"ds_read_b64_tr_b16 {vr(wreg(t,hl,kb) + 2*half, 2)}, v6 offset:{(32*kb + 16*half)*288 + t*32}")
            a("s_waitcnt lgkmcnt(0)")
    a(f"""
s_and_b32 s{sQt}, s{sW}, 1
s_lshr_b32 s{sA}, s{sW}, 1
s_lshl_b32 s{sB}, s{sHP}, 1
s_add_u32 s{sB}, s{sB}, s{sA}           ; head
s_lshl_b32 s{sCn}, s{sPar}, 5
s_add_u32 s{sCn}, s{sCn}, s{sB}
s_lshl_b32 s{sTok}, s{sCn}, 13
s_lshl_b32 s{sMem}, s{sCn}, 12
s_lshl_b32 s{sCn}, s{sPar}, 4
s_add_u32 s{sCn}, s{sCn}, s{sHP}
s_mul_i32 s{sCn}, s{sCn}, 36864
s_mul_i32 s{sB}, s{sW}, 9216
s_add_u32 s{sCn}, s{sCn}, s{sB}
s_add_u32 s{sPO}, s{sCn}, {PO}
s_lshl_b32 s{sCn}, s{sW}, 12
v_add_u32 v{vOBw}, s{sCn}, v{vL16}
s_mov_b32 s{sC}, 0x3e0293ee
s_mov_b32 s{sSeg}, s{sPar}
; masks : M_i = (4g+i <= n)
v_and_b32 v6, 15, v5
v_lshrrev_b32 v7, 4, v5
v_lshlrev_b32 v7, 2, v7
""")
    for i in range(4):
        a(f"v_add_u32 v8, {i}, v7")
        a(f"v_cmp_le_u32 s[{sM0+2*i}:{sM0+2*i+1}], v8, v6")
    a(f"s_cmp_eq_u32 s{sQt}, 0")
    for i in range(4):
        a(f"s_cselect_b64 s[{sM1+2*i}:{sM1+2*i+1}], 0, s[{sM0+2*i}:{sM0+2*i+1}]")
        a(f"s_cselect_b64 s[{sM0+2*i}:{sM0+2*i+1}], s[{sM0+2*i}:{sM0+2*i+1}], -1")
    for r in range(ONES, ONES + 5): a(f"v_mov_b32 v{r}, 0x3f803f80")
    a(f"v_mov_b32 v{ONZ+1}, 0")
    a("s_barrier")

def tok_loads(a):
    WS = f"s[{sWS}:{sWS+3}]"
    a(f"s_add_u32 s{sA}, s{sTok}, {KT}")
    a(f"s_add_u32 s{sB}, s{sTok}, {QT}")
    a(f"s_lshl_b32 s{sCn}, s{sQt}, 10")
    a(f"s_add_u32 s{sB}, s{sB}, s{sCn}")
    for kb in range(4):
        a(f"buffer_load_dwordx4 {vr(QR+4*kb,4)}, v{vL16}, {WS}, s{sB} offen")
        a(f"buffer_load_dwordx4 {vr(KR+8*kb,4)}, v{vL16}, {WS}, s{sA} offen")
        a(f"buffer_load_dwordx4 {vr(KR+8*kb+4,4)}, v{vL16}, {WS}, s{sA} offen offset:1024")
        if kb < 3:
            a(f"s_add_u32 s{sA}, s{sA}, 2048")
            a(f"s_add_u32 s{sB}, s{sB}, 2048")
    a(f"s_add_u32 s{sA}, s{sTok}, {VT}")
    for kb in range(4):
        a(f"buffer_load_dwordx4 {vr(VR+8*kb,4)}, v{vL16}, {WS}, s{sA} offen")
        a(f"buffer_load_dwordx4 {vr(VR+8*kb+4,4)}, v{vL16}, {WS}, s{sA} offen offset:1024")
        if kb < 3: a(f"s_add_u32 s{sA}, s{sA}, 2048")
    a(f"s_add_u32 s{sTok}, s{sTok}, {2*32*8192}")

def emit_follow(a, lab_end, fused=None):
    WS = f"s[{sWS}:{sWS+3}]"
    emit_follow_init(a)
    if fused: fused["wait_tok"](a, 0)
    tok_loads(a)
    a("s_waitcnt vmcnt(0)")
    a(f"s_mov_b32 s{sIt}, 0")
    def item(buf):
        if fused: fused["wait_mem"](a)
        a(f"s_add_u32 s{sA}, s{sMem}, {KM}")
        a(f"s_add_u32 s{sB}, s{sMem}, {VM}")
        for kb in range(4):
            a(f"buffer_load_dwordx4 {vr(KMR+4*kb,4)}, v{vL16}, {WS}, s{sA} offen offset:{1024*kb}")
        for kb in range(4):
            a(f"buffer_load_dwordx4 {vr(VMR+4*kb,4)}, v{vL16}, {WS}, s{sB} offen offset:{1024*kb}")
        a(f"s_add_u32 s{sMem}, s{sMem}, {2*32*4096}")
        a("s_waitcnt vmcnt(17)")
        for kb in range(4):
            c1 = "0" if kb == 0 else vr(S1, 4); c2 = "0" if kb == 0 else vr(S2, 4)
            a(f"v_mfma_f32_16x16x32_bf16 {vr(S1,4)}, {vr(KR+8*kb,4)}, {vr(QR+4*kb,4)}, {c1}")
            a(f"v_mfma_f32_16x16x32_bf16 {vr(S2,4)}, {vr(KR+8*kb+4,4)}, {vr(QR+4*kb,4)}, {c2}")
        a("s_waitcnt vmcnt(4)")
        for kb in range(4):
            c0 = "0" if kb == 0 else vr(S0, 4)
            a(f"v_mfma_f32_16x16x32_bf16 {vr(S0,4)}, {vr(KMR+4*kb,4)}, {vr(QR+4*kb,4)}, {c0}")
        a(f"v_mov_b32 v{T1}, 0xce6e6b28")
        for i in range(4): a(f"v_cndmask_b32 v{S1+i}, v{T1}, v{S1+i}, s[{sM0+2*i}:{sM0+2*i+1}]")
        for i in range(4): a(f"v_cndmask_b32 v{S2+i}, v{T1}, v{S2+i}, s[{sM1+2*i}:{sM1+2*i+1}]")
        a(f"""v_max3_f32 v{T0}, v{S1}, v{S1+1}, v{S1+2}
v_max3_f32 v{T1}, v{S1+3}, v{S2}, v{S2+1}
v_max3_f32 v{T0}, v{T0}, v{S2+2}, v{S2+3}
v_max3_f32 v{T1}, v{T1}, v{S0}, v{S0+1}
v_max_f32 v{T0}, v{T0}, v{T1}
v_mov_b32 v{T1}, v{T0}
v_permlane16_swap_b32 v{T0}, v{T1}
v_max_f32 v{T0}, v{T0}, v{T1}
v_mov_b32 v{T1}, v{T0}
v_permlane32_swap_b32 v{T0}, v{T1}
v_max_f32 v{T0}, v{T0}, v{T1}
v_mul_f32 v{T0}, s{sC}, v{T0}""")
        vals = [S0, S0 + 1] + [S1 + i for i in range(4)] + [S2 + i for i in range(4)]
        for r in vals: a(f"v_fma_f32 v{r}, v{r}, s{sC}, -v{T0}")
        for r in vals: a(f"v_exp_f32 v{r}, v{r}")
        a(f"""v_cvt_pk_bf16_f32 v{PT}, v{S1}, v{S1+1}
v_cvt_pk_bf16_f32 v{PT+1}, v{S1+2}, v{S1+3}
v_cvt_pk_bf16_f32 v{PT+2}, v{S2}, v{S2+1}
v_cvt_pk_bf16_f32 v{PT+3}, v{S2+2}, v{S2+3}
v_cvt_pk_bf16_f32 v{PM}, v{S0}, v{S0+1}
v_mov_b32 v{PM+1}, v{PM}""")
        a(f"v_mfma_f32_16x16x32_bf16 {vr(SUM,4)}, {vr(ONES,4)}, {vr(PT,4)}, 0")
        for et in range(8):
            a(f"v_mfma_f32_16x16x32_bf16 {vr(ACC+4*et,4)}, {vr(VR+4*et,4)}, {vr(PT,4)}, 0")
        a("s_waitcnt vmcnt(0)")
        a(f"v_mfma_f32_16x16x16_bf16 {vr(SUM,4)}, {vr(ONZ,2)}, {vr(PM,2)}, {vr(SUM,4)}")
        for et in range(8):
            a(f"v_mfma_f32_16x16x16_bf16 {vr(ACC+4*et,4)}, {vr(VMR+2*et,2)}, {vr(PM,2)}, {vr(ACC+4*et,4)}")
        lab = a.uid("L_fnp")
        a(f"s_cmp_ge_u32 s{sIt}, 31")
        a(f"s_cbranch_scc1 {lab}")
        if fused: fused["wait_tok"](a, 1)
        tok_loads(a)
        a.label(lab)
        a(f"v_rcp_f32 v{T0}, v{SUM}")
        for et in range(8):
            for i in range(4): a(f"v_mul_f32 v{ACC+4*et+i}, v{ACC+4*et+i}, v{T0}")
            a(f"v_cvt_pk_bf16_f32 v{OPK+2*et}, v{ACC+4*et}, v{ACC+4*et+1}")
            a(f"v_cvt_pk_bf16_f32 v{OPK+2*et+1}, v{ACC+4*et+2}, v{ACC+4*et+3}")
            if et & 1:
                a(f"ds_write_b128 v{vOBw}, {vr(OPK+4*(et>>1),4)} offset:{OB[buf] + 1024*(et>>1)}")
        a("s_waitcnt lgkmcnt(0)")
        a("s_barrier")
        if fused: fused["sig"](a)
        lg = Cnt(a, "lgkmcnt")
        seq = [(hl, kb, qt) for hl in range(2) for kb in range(4) for qt in range(2)]
        def rd(n):
            hl, kb, qt = seq[n]
            lg.op(f"ds_read_b128 {vr(KMR+4*(n%4),4)}, v{vL16} offset:{OB[buf] + (hl*2+qt)*4096 + kb*1024}", f"o{n}")
        for n in range(3): rd(n)
        for n in range(16):
            hl, kb, qt = seq[n]
            lg.wait(f"o{n}")
            for t in range(9):
                d = ACC + 8 * t + 4 * qt
                c = "0" if n < 2 else vr(d, 4)
                a(f"v_mfma_f32_16x16x32_bf16 {vr(d,4)}, {vr(wreg(t,hl,kb),4)}, {vr(KMR+4*(n%4),4)}, {c}")
                if t == 0 and n + 3 < 16: rd(n + 3)
        for t in range(9):
            d = ACC + 8 * t; e = 8 + 4 * (t % 4)
            for i in range(4): a(f"v_cvt_pk_bf16_f32 v{e+i}, v{d+2*i}, v{d+2*i+1}")
            a(f"s_add_u32 s{sA}, s{sPO}, {1024*t}")
            a(f"buffer_store_dwordx4 {vr(e,4)}, v{vL16}, {WS}, s{sA} offen sc1")
        a(f"s_add_u32 s{sPO}, s{sPO}, {2*16*36864}")
        a(f"s_add_u32 s{sIt}, s{sIt}, 1")
        a(f"s_add_u32 s{sSeg}, s{sSeg}, 2")
    a.label("L_fol_loop")
    item(0)
    item(1)
    a(f"s_cmp_lt_u32 s{sIt}, 32")
    a("s_cbranch_scc1 L_fol_loop")
    a("s_waitcnt vmcnt(0)")
    if fused: fused["fin"](a)
    a(f"s_branch {lab_end}")
```

```python
FLAGS = 0x0
IMG   = 0x10000
P     = 0x19000
PSLOT = 294912
XN    = 0x100000
KT    = 0x400000
VT    = 0x1400000
QT    = 0x2400000
KM    = 0x3400000
VM    = 0x3C00000
PO    = 0x4400000
FB    = 0x6800000
DBG   = 0x8000000
WS_BYTES = 0x10000000
NAME = "parallel_sum__memory_aug_recurrent_mem_tr__dense_activation_gelu__prompt"
KA = dict(x=0, mem0=8, Wq=16, Wk=24, Wv=32, Wo=40, seg=48, bx=56, w1=64, b1=72, w2=80, b2=88, out=96, dbg=104, ws=112)

def srd(a, dst, koff, nbytes):
    a(f"""s_load_dwordx2 s[{dst}:{dst+1}], s[0:1], {koff}
s_waitcnt lgkmcnt(0)
s_and_b32 s{dst+1}, s{dst+1}, 0xffff
s_mov_b32 s{dst+2}, {nbytes}
s_mov_b32 s{dst+3}, 0x00020000""")

HEADER = """{launch}
.amdgcn_target "amdgcn-amd-amdhsa--gfx950"
.text
"""
def kernel_open(name):
    return f""".globl {name}
.p2align 8
.type {name},@function
{name}:
"""
def kernel_desc(name, vgpr=512, acc=256):
    return f""".amdhsa_kernel {name}
  .amdhsa_next_free_vgpr {vgpr}
  .amdhsa_next_free_sgpr 102
  .amdhsa_accum_offset {acc}
  .amdhsa_group_segment_fixed_size 0
  .amdhsa_kernarg_size 120
  .amdhsa_user_sgpr_count 2
  .amdhsa_user_sgpr_kernarg_segment_ptr 1
  .amdhsa_system_sgpr_workgroup_id_x 1
.end_amdhsa_kernel
"""
```

```python
from asm import *
from layout import *
from common import *

def emit_ln(a, sSeg, sT=8, sA=20, lds0=0, mid=None):
    srd(a, sT, KA["x"], 2048 * 576 * 2)
    X0 = 8
    F0 = 44
    a(f"""
v_and_b32 v1, 63, v0
v_and_b32 v2, 31, v1
v_lshrrev_b32 v3, 5, v1
v_mul_u32_u24 v2, 1152, v2
v_lshl_add_u32 v2, v3, 4, v2
s_mul_i32 s{sA}, s{sW}, 288
v_add_u32 v2, s{sA}, v2
s_mul_i32 s{sA+1}, s{sSeg}, 36864
""")
    for k in range(9):
        a(f"buffer_load_dwordx4 {vr(X0+4*k,4)}, v2, s[{sT}:{sT+3}], s{sA+1} offen offset:{32*k}")
    a(f"""
v_lshlrev_b32 v4, 2, v0
v_add_u32 v4, {lds0}, v4
v_lshlrev_b32 v5, 2, v1
v_add_u32 v5, {lds0}, v5
v_lshlrev_b32 v6, 4, v1
s_mul_i32 s{sA+2}, s{sW}, 9216
s_add_u32 s{sA+1}, s{sA+1}, s{sA+2}
s_add_u32 s{sA+1}, s{sA+1}, {XN}
""")
    for k in range(9):
        a(f"s_waitcnt vmcnt({8-k})")
        for i in range(4):
            r = X0 + 4*k + i
            a(f"v_lshlrev_b32 v{F0+8*k+2*i}, 16, v{r}")
            a(f"v_and_b32 v{F0+8*k+2*i+1}, 0xffff0000, v{r}")
    if mid: mid(a)
    def reduce(acc):
        a(f"v_add_f32 v{acc}, v{acc}, v{acc+1}")
        a(f"v_add_f32 v{acc+2}, v{acc+2}, v{acc+3}")
        a(f"v_add_f32 v{acc}, v{acc}, v{acc+2}")
        a(f"v_mov_b32 v{acc+1}, v{acc}")
        a(f"v_permlane32_swap_b32 v{acc}, v{acc+1}")
        a(f"v_add_f32 v{acc}, v{acc}, v{acc+1}")
    A = 116
    for i in range(4): a(f"v_add_f32 v{A+i}, v{F0+i}, v{F0+4+i}")
    for j in range(8, 72): a(f"v_add_f32 v{A+(j&3)}, v{A+(j&3)}, v{F0+j}")
    reduce(A)
    a(f"ds_write_b32 v4, v{A}")
    a("s_waitcnt lgkmcnt(0)")
    a("s_barrier")
    for w in range(4): a(f"ds_read_b32 v{A+w}, v5 offset:{256*w}")
    a("s_waitcnt lgkmcnt(0)")
    a(f"""v_add_f32 v{A}, v{A}, v{A+1}
v_add_f32 v{A+2}, v{A+2}, v{A+3}
v_add_f32 v{A}, v{A}, v{A+2}
v_mul_f32 v120, {1.0/576.0!r}, v{A}""")
    for j in range(72):
        t = 124 + (j & 7)
        a(f"v_sub_f32 v{t}, v{F0+j}, v120")
        if j < 4: a(f"v_mul_f32 v{A+j}, v{t}, v{t}")
        else: a(f"v_fmac_f32 v{A+(j&3)}, v{t}, v{t}")
    reduce(A)
    a(f"ds_write_b32 v4, v{A} offset:1024")
    a("s_waitcnt lgkmcnt(0)")
    a("s_barrier")
    for w in range(4): a(f"ds_read_b32 v{A+w}, v5 offset:{1024+256*w}")
    a("s_waitcnt lgkmcnt(0)")
    a(f"""v_add_f32 v{A}, v{A}, v{A+1}
v_add_f32 v{A+2}, v{A+2}, v{A+3}
v_add_f32 v{A}, v{A}, v{A+2}
v_mul_f32 v121, {1.0/576.0!r}, v{A}
v_cvt_pk_bf16_f32 v122, v120, v121
v_lshlrev_b32 v120, 16, v122
v_and_b32 v121, 0xffff0000, v122
v_add_f32 v121, 0x3727c5ac, v121
v_cvt_pk_bf16_f32 v122, v121, v121
v_lshlrev_b32 v121, 16, v122
v_sqrt_f32 v121, v121
v_cvt_pk_bf16_f32 v122, v121, v121
v_lshlrev_b32 v121, 16, v122
v_rcp_f32 v121, v121""")
    for k in range(9):
        for i in range(4):
            f = F0 + 8*k + 2*i
            t = 124 + 2 * (i & 1)
            a(f"v_sub_f32 v{f}, v{f}, v120")
            a(f"v_sub_f32 v{f+1}, v{f+1}, v120")
            a(f"v_cvt_pk_bf16_f32 v{t}, v{f}, v{f+1}")
            a(f"v_lshlrev_b32 v{f}, 16, v{t}")
            a(f"v_and_b32 v{f+1}, 0xffff0000, v{t}")
            a(f"v_mul_f32 v{f}, v{f}, v121")
            a(f"v_mul_f32 v{f+1}, v{f+1}, v121")
            a(f"v_cvt_pk_bf16_f32 v{X0+4*k+i}, v{f}, v{f+1}")
        a(f"s_add_u32 s{sA+2}, s{sA+1}, {1024*k}")
        a(f"buffer_store_dwordx4 {vr(X0+4*k,4)}, v6, s[{sWS}:{sWS+3}], s{sA+2} offen sc1")
    a("s_waitcnt vmcnt(0)")
```

```python
from asm import *
from layout import *
from common import *

sG, sMat, sHP, sSeg, sOut, sXs, sA, sB, sCn = 18, 19, 20, 21, 22, 23, 24, 25, 26
sT = 8
vL16, vXR, vSt, vTmp = 1, 2, 3, 4
BR = [8 + 4 * i for i in range(8)]
ACC = [40, 56]
EP = 72
def wreg(tile, ks):
    i = tile * 36 + ks
    return 256 + 4 * i if i < 64 else 224 + 4 * (i - 64)
XBUF = [0, 36864]

def emit_qkv_init(a):
    a(f"""
s_cmp_ge_u32 s96, 48
s_cselect_b32 s{sG}, 1, 0
s_mul_i32 s{sA}, s{sG}, 48
s_sub_u32 s{sA}, s96, s{sA}
s_lshr_b32 s{sMat}, s{sA}, 4
s_and_b32 s{sHP}, s{sA}, 15
v_and_b32 v5, 63, v0
v_lshlrev_b32 v{vL16}, 4, v5
v_add_u32 v{vXR}, {XBUF[1]}, v{vL16}
""")
    a(f"""
s_mov_b32 s{sA}, {KA['Wk']}
s_cmp_eq_u32 s{sMat}, 1
s_cselect_b32 s{sA}, {KA['Wv']}, s{sA}
s_cmp_eq_u32 s{sMat}, 2
s_cselect_b32 s{sA}, {KA['Wq']}, s{sA}
s_load_dwordx2 s[{sT}:{sT+1}], s[0:1], s{sA}
s_waitcnt lgkmcnt(0)
s_and_b32 s{sT+1}, s{sT+1}, 0xffff
s_mov_b32 s{sT+2}, {576*4096*2}
s_mov_b32 s{sT+3}, 0x00020000
""")
    a(f"""
v_lshrrev_b32 v6, 3, v5
v_lshlrev_b32 v6, 13, v6
v_and_b32 v7, 7, v5
v_lshl_add_u32 v6, v7, 4, v6
s_lshl_b32 s{sA}, s{sHP}, 1
s_lshr_b32 s{sB}, s{sW}, 1
s_add_u32 s{sA}, s{sA}, s{sB}          ; head
s_lshl_b32 s{sOut}, s{sA}, 2           ; head*4
s_lshl_b32 s{sA}, s{sA}, 8
s_and_b32 s{sB}, s{sW}, 1
s_lshl_b32 s{sCn}, s{sB}, 1
s_add_u32 s{sOut}, s{sOut}, s{sCn}
s_lshl_b32 s{sB}, s{sB}, 7
s_add_u32 s{sA}, s{sA}, s{sB}
s_mul_i32 s{sB}, s{sW}, 36864
""")
    a(f"""
v_lshrrev_b32 v7, 5, v5
v_lshlrev_b32 v7, 3, v7
v_bfe_u32 v8, v5, 2, 2
v_add_u32 v7, v7, v8
v_lshlrev_b32 v7, 7, v7
v_bfe_u32 v8, v5, 4, 1
v_lshl_add_u32 v7, v8, 5, v7
v_and_b32 v8, 3, v5
v_lshl_add_u32 v7, v8, 3, v7
v_add_u32 v7, s{sB}, v7
""")
    for rnd in range(2):
        for k in range(18):
            ks = 18 * rnd + k
            for hf in range(2):
                a(f"s_add_u32 s{sCn}, s{sA}, {(ks*16 + hf*8) * 8192}")
                a(f"s_add_u32 m0, s{sB}, {k*2048 + hf*1024}")
                a(f"buffer_load_dwordx4 v6, s[{sT}:{sT+3}], s{sCn} offen lds")
        for k in range(18):
            ks = 18 * rnd + k
            a(f"s_waitcnt vmcnt({34 - 2*k})")
            for tile in range(2):
                for half in range(2):
                    a(f"ds_read_b64_tr_b16 {vr(wreg(tile, ks) + 2*half, 2)}, v7 offset:{k*2048 + half*512 + tile*64}")
        a("s_waitcnt lgkmcnt(0)")
    a(f"""
s_lshl_b32 s{sOut}, s{sOut}, 11
s_mov_b32 s{sA}, {KT}
s_cmp_eq_u32 s{sMat}, 1
s_cselect_b32 s{sA}, {VT}, s{sA}
s_cmp_eq_u32 s{sMat}, 2
s_cselect_b32 s{sA}, {QT}, s{sA}
s_add_u32 s{sOut}, s{sOut}, s{sA}
s_lshl_b32 s{sA}, s{sG}, 18
s_add_u32 s{sOut}, s{sOut}, s{sA}
v_bfe_u32 v6, v5, 4, 1
v_lshlrev_b32 v6, 10, v6
v_lshrrev_b32 v7, 5, v5
v_lshl_add_u32 v6, v7, 8, v6
v_and_b32 v7, 15, v5
v_lshl_add_u32 v{vSt}, v7, 4, v6
s_mul_i32 s{sXs}, s{sG}, 36864
s_mul_i32 s{sA}, s{sW}, 9216
s_add_u32 s{sXs}, s{sXs}, s{sA}
s_add_u32 s{sXs}, s{sXs}, {XN}
s_mov_b32 s{sSeg}, 0
""")
    a("s_barrier")

def dma_x(a, buf):
    for k in range(9):
        a(f"s_add_u32 s{sCn}, s{sXs}, {1024*k}")
        a(f"s_mul_i32 s{sA}, s{sW}, 9216")
        a(f"s_add_u32 m0, s{sA}, {XBUF[buf] + 1024*k}")
        a(f"buffer_load_dwordx4 v{vL16}, s[{sWS}:{sWS+3}], s{sCn} offen lds")
    a(f"s_add_u32 s{sXs}, s{sXs}, {2*36864}")

def emit_qkv_loop(a, isV, sfx, fused=None):
    WS = f"s[{sWS}:{sWS+3}]"
    L = lambda n: f"L_q{n}_{sfx}"
    def body(buf, first):
        a(f"s_waitcnt vmcnt({0 if first else 4})")
        a("s_barrier")
        if fused: fused["sig"](a)
        lab = a.uid("L_qnd")
        a(f"s_cmp_ge_u32 s{sSeg}, 31")
        a(f"s_cbranch_scc1 {lab}")
        dma_x(a, buf ^ 1)
        a.label(lab)
        lg = Cnt(a, "lgkmcnt")
        D = 5
        def rd(ks): lg.op(f"ds_read_b128 {vr(BR[ks % 8],4)}, v{vXR if buf else vL16} offset:{1024*ks}", f"b{ks}")
        for ks in range(D): rd(ks)
        for ks in range(36):
            lg.wait(f"b{ks}")
            for tile in range(2):
                c = "0" if ks == 0 else vr(ACC[tile], 16)
                w_, x_ = vr(wreg(tile, ks), 4), vr(BR[ks % 8], 4)
                if isV: a(f"v_mfma_f32_32x32x16_bf16 {vr(ACC[tile],16)}, {x_}, {w_}, {c}")
                else:   a(f"v_mfma_f32_32x32x16_bf16 {vr(ACC[tile],16)}, {w_}, {x_}, {c}")
            if ks + D < 36: rd(ks + D)
        for tile in range(2):
            A_ = ACC[tile]
            for fr in range(2):
                e = EP + 8 * tile + 4 * fr
                for hh in range(2):
                    q = fr + 2 * hh
                    a(f"v_cvt_pk_bf16_f32 v{e+2*hh}, v{A_+4*q}, v{A_+4*q+1}")
                    a(f"v_cvt_pk_bf16_f32 v{e+2*hh+1}, v{A_+4*q+2}, v{A_+4*q+3}")
                a(f"s_add_u32 s{sCn}, s{sOut}, {tile*2048 + fr*512}")
                a(f"buffer_store_dwordx4 {vr(e,4)}, v{vSt}, {WS}, s{sCn} offen sc1")
        a(f"s_add_u32 s{sOut}, s{sOut}, {2*32*4*2048}")
        a(f"s_add_u32 s{sSeg}, s{sSeg}, 1")
    dma_x(a, 0)
    body(0, True)
    a.label(L("loop"))
    body(1, False)
    a(f"s_cmp_ge_u32 s{sSeg}, 32")
    a(f"s_cbranch_scc1 {L('done')}")
    body(0, False)
    a(f"s_branch {L('loop')}")
    a.label(L("done"))
    a("s_waitcnt vmcnt(0)")

def emit_qkv(a, lab_end, fused=None):
    emit_qkv_init(a)
    if fused: fused["wait_xn"](a)
    a(f"s_cmp_eq_u32 s{sMat}, 1")
    a("s_cbranch_scc1 L_qkv_v")
    emit_qkv_loop(a, False, "k", fused)
    a(f"s_branch L_qkv_end")
    a.label("L_qkv_v")
    emit_qkv_loop(a, True, "v", fused)
    a.label("L_qkv_end")
    if fused: fused["fin"](a)
    a(f"s_branch {lab_end}")
```

```python
import sys
sys.path.insert(0, 'gen')
from asm import *
from layout import *
from common import *
import ln, qkv, ffn, follow, final, chain
from build_parts import k_ln, k_ffn, k_follow, k_final, obj

def k_qf():
    a = Asm()
    prologue_simple(a, 160, "L_qf_exit")
    a(f"s_cmp_lt_u32 s{sRole}, 96")
    a("s_cbranch_scc1 L_qf_q")
    a(f"s_sub_u32 s96, s{sRole}, 96")
    ffn.emit_ffn(a, "L_qf_exit")
    a("s_branch L_qf_exit")
    a.label("L_qf_q")
    a(f"s_mov_b32 s96, s{sRole}")
    qkv.emit_qkv(a, "L_qf_exit")
    a.label("L_qf_exit")
    a("s_endpgm")
    return a.finalize()

def k_chain():
    a = Asm()
    prologue(a)
    a(f"s_cmp_lt_u32 s{sRole}, 32")
    a("s_cbranch_scc1 L_chain")
    a("s_branch L_exit")
    chain.emit_chain(a, False)
    a.label("L_fail")
    a(f"""s_mov_b64 exec, 1
v_mov_b32 v78, 1
buffer_atomic_add v78, off, s[{sDBG}:{sDBG+3}], 0 offset:{4*D_ERR} sc1
s_waitcnt vmcnt(0)""")
    a.label("L_exit")
    a("s_endpgm")
    return a.finalize()

if __name__ == "__main__":
    ks = [("ln_kernel", k_ln(), (512, 256)), ("qf_kernel", k_qf(), (512, 256)), (NAME + "_kernel", k_chain(), (512, 256)),
          ("fol_kernel", k_follow(), (512, 256)), ("fin_kernel", k_final(), (128, 128))]
    launch = "\n".join([
        "; @launch kernel=ln_kernel grid=(64,1,1) block=(256,1,1) lds=4096",
        "; @launch kernel=qf_kernel grid=(160,1,1) block=(256,1,1) lds=163840",
        f"; @launch kernel={NAME}_kernel grid=(256,1,1) block=(256,1,1) lds=163840",
        "; @launch kernel=fol_kernel grid=(32,1,1) block=(256,1,1) lds=163840",
        "; @launch kernel=fin_kernel grid=(576,1,1) block=(256,1,1) lds=0"])
    out = sys.argv[1] if len(sys.argv) > 1 else f'cdna_kernels/{NAME}.s'
    open(out, 'w').write(obj(ks, launch))
```

```python
from asm import *
from layout import *
from common import *

WREG = 36864
LIMG = 147456
LSC  = LIMG + 9216
LMS  = LSC + 4096
LOB  = LMS + 1024
assert LOB + 2048 == 163840

sH, sS = 16, 18
sI8, sIW, sIW4 = 19, 20, 21
sPst = 22
sPrd = 24
sIwr, sIrst = 28, 29
sKT, sVT, sKM, sVM = 30, 31, 32, 33
sHas, sPoll = 34, 35
sTmp, sTmp2, sTmp3 = 36, 37, 38
sC = 39
mQ, mK, mLo8 = 40, 42, 44
mR = 46
sU = 54
sFlg = 56
sPstB, sPrdB, sIwrB, sIWB = 57, 58, 59, 55
sTS = 60
NSTAMP = 12
PFE = True

vL16, vIMG0, vIMGw, vWT, vMSw, vMSr, vOBw, vPst, vRld, vIst, vIdx, vOnePos, vPF, vDum = range(14)
AR = [14, 18, 22, 26, 30]
Q0, Q1, K0, K1, V0, V1 = 34, 38, 42, 46, 50, 54
ST = [58, 66]
SelQ, SelK = 74, 76
T0, T1 = 78, 79

def tuple_reg(i):
    return 80 + 8 * i if i < 22 else 256 + 8 * (i - 22)

RES_QKV = [("K", 1), ("V", 2), ("K", 4), ("V", 5), ("K", 7), ("V", 8)]
RES_WO_T = [2, 5, 8]
REG_QKV = [(m, s) for m in "QKV" for s in range(9) if (m, s) not in RES_QKV]
TUP = {}
_i = 0
for (m, s) in REG_QKV:
    for tau in range(2):
        TUP[(m, s, tau)] = tuple_reg(_i); _i += 1
for t in range(9):
    if t not in RES_WO_T:
        for kb in range(2):
            TUP[("O", t, kb)] = tuple_reg(_i); _i += 1
assert _i == 54
RESBLK = {b: 3 + i for i, b in enumerate(RES_QKV)}
RESBLK.update({("O", t): i for i, t in enumerate(RES_WO_T)})

def smf(a, d, areg, breg):
    a(f"v_smfmac_f32_16x16x64_bf16 {vr(d,4)}, {vr(areg,4)}, {vr(breg,8)}, v{vIdx}")

STAMPS = None
def stamp(a, k, on):
    if on and (STAMPS is None or k in STAMPS):
        a(f"s_memtime s[{sTS+2*k}:{sTS+2*k+1}]")

def emit_init(a, h_from_ticket=True):
    a(f"v_and_b32 v14, 63, v0")
    lane = 14
    a(f"""
v_lshlrev_b32 v{vL16}, 4, v{lane}
v_add_u32 v{vIMG0}, {LIMG}, v{vL16}
s_lshl_b32 s{sTmp}, s{sW}, 10
v_add_u32 v{vIMGw}, s{sTmp}, v{vIMG0}
s_mul_i32 s{sTmp}, s{sW}, {WREG}
v_add_u32 v{vWT}, s{sTmp}, v{vL16}
v_and_b32 v15, 15, v{lane}            ; n / m
v_lshrrev_b32 v16, 4, v{lane}         ; g / rg
v_and_b32 v17, 7, v15                 ; n&7
v_lshl_add_u32 v18, v16, 3, v17
v_lshlrev_b32 v18, 5, v18
v_add_u32 v{vMSr}, {LMS}, v18
s_lshl_b32 s{sTmp}, s{sW}, 3
v_add_u32 v{vMSw}, s{sTmp}, v{vMSr}
v_lshrrev_b32 v18, 1, v17
v_lshlrev_b32 v18, 2, v18
v_and_b32 v19, 1, v17
v_add_u32 v18, v18, v19               ; 4*(r>>1) + (r&1)
v_lshl_add_u32 v19, v16, 4, v18
s_and_b32 s{sTmp}, s{sW}, 1
s_lshl_b32 s{sTmp}, s{sTmp}, 1
v_add_u32 v19, s{sTmp}, v19
v_lshlrev_b32 v19, 4, v19
s_lshr_b32 s{sTmp}, s{sW}, 1
s_lshl_b32 s{sTmp}, s{sTmp}, 10
s_add_u32 s{sTmp}, s{sTmp}, {LOB}
v_add_u32 v{vOBw}, s{sTmp}, v19
v_and_b32 v19, 3, v15
v_lshl_add_u32 v19, v16, 2, v19
v_lshlrev_b32 v19, 4, v19
v_lshrrev_b32 v20, 2, v15
v_and_b32 v20, 1, v20
v_lshl_add_u32 v{vIst}, v20, 2, v19
v_lshlrev_b32 v{vPst}, 2, v{lane}
v_lshrrev_b32 v19, 2, v15
v_lshlrev_b32 v19, 6, v19
v_and_b32 v20, 1, v15
v_lshl_add_u32 v19, v20, 4, v19
v_lshrrev_b32 v20, 1, v15
v_and_b32 v20, 1, v20                 ; eta(m)
v_lshl_add_u32 v21, v16, 1, v20
v_mul_u32_u24 v21, 9216, v21
v_add_u32 v{vRld}, v19, v21
v_mov_b32 v21, 0x4444
v_mov_b32 v22, 0xeeee
v_cmp_eq_u32 vcc, 1, v20
v_cndmask_b32 v{vIdx}, v21, v22, vcc
; vOnePos = (n&1) ? 0x3f800000 : 0x3f80
v_and_b32 v21, 1, v15
v_mov_b32 v22, 0x3f80
v_mov_b32 v23, 0x3f800000
v_cmp_eq_u32 vcc, 1, v21
v_cndmask_b32 v{vOnePos}, v22, v23, vcc
; masks
v_lshrrev_b32 v21, 1, v17             ; (n&7)>>1
v_cmp_eq_u32 s[{mQ}:{mQ+1}], v21, v16
v_lshrrev_b32 v22, 2, v15             ; n>>2
v_cmp_eq_u32 s[{mK}:{mK+1}], v22, v16
v_cmp_gt_u32 s[{mLo8}:{mLo8+1}], 8, v15
v_cmp_eq_u32 s[{mR}:{mR+1}], 0, v21
v_cmp_eq_u32 s[{mR+2}:{mR+3}], 1, v21
v_cmp_eq_u32 s[{mR+4}:{mR+5}], 2, v21
v_cmp_eq_u32 s[{mR+6}:{mR+7}], 3, v21
v_lshlrev_b32 v21, 7, v15
v_and_b32 v22, 1, v16
v_mul_u32_u24 v22, {(VT-KT)>>12}, v22
v_lshlrev_b32 v22, 12, v22
v_add_u32 v{vPF}, v21, v22
v_cndmask_b32 v{SelQ}, 0, v{vOnePos}, s[{mQ}:{mQ+1}]
v_cndmask_b32 v{SelQ+1}, 0, v{vOnePos}, s[{mQ}:{mQ+1}]
v_cndmask_b32 v{SelK}, 0, v{vOnePos}, s[{mK}:{mK+1}]
v_cndmask_b32 v{SelK+1}, 0, v{vOnePos}, s[{mK}:{mK+1}]
s_mov_b32 s{sC}, 0x3e0293ee          ; 128^-0.5 * log2(e)
""")
    a(f"""
s_lshl_b32 s{sTmp}, s{sH}, 2
s_add_u32 s{sTmp}, s{sTmp}, s{sW}
s_mul_i32 s{sTmp}, s{sTmp}, 5120
s_add_u32 s{sTmp}, s{sTmp}, {IMG}
v_mov_b32 v24, -1
v_mov_b32 v25, -1
v_mov_b32 v26, -1
v_mov_b32 v27, -1
""")
    for i in range(5):
        a(f"buffer_store_dwordx4 v[24:27], v{vL16}, s[{sWS}:{sWS+3}], s{sTmp} offen sc1")
        if i < 4: a(f"s_add_u32 s{sTmp}, s{sTmp}, 1024")
    vm = Cnt(a, "vmcnt"); vm.q = ["rst"] * 5
    srd(a, sT, KA["Wo"], 32 * 128 * 576 * 2)
    for i in range(9):
        a(f"""v_add_u32 v28, {64*i}, v{lane}
v_mul_u32_u24 v29, 3641, v28
v_lshrrev_b32 v29, 16, v29
v_mul_u32_u24 v39, 18, v29
v_sub_u32 v39, v28, v39
v_mul_u32_u24 v29, 1152, v29
v_lshl_add_u32 v{30+i}, v39, 4, v29""")
    a(f"""s_mul_i32 s{sTmp}, s{sH}, 147456
s_mul_i32 s{sTmp2}, s{sW}, 288
s_add_u32 s{sTmp}, s{sTmp}, s{sTmp2}
s_mul_i32 s{sTmp3}, s{sW}, {WREG}""")
    for r in range(4):
        for i in range(9):
            a(f"s_add_u32 m0, s{sTmp3}, {(r*9+i)*1024}")
            vm.op(f"buffer_load_dwordx4 v{30+i}, s[{sT}:{sT+3}], s{sTmp} offen lds", "wo%d" % (r // 2))
        if r < 3: a(f"s_add_u32 s{sTmp}, s{sTmp}, {32*1152}")
    a(f"""v_lshrrev_b32 v28, 5, v{lane}
v_lshlrev_b32 v28, 3, v28              ; 8*b3
v_bfe_u32 v29, v{lane}, 2, 1
v_lshl_add_u32 v28, v29, 2, v28        ; + 4*b0
v_bfe_u32 v29, v{lane}, 4, 1
v_lshl_add_u32 v28, v29, 1, v28        ; + 2*b2
v_bfe_u32 v29, v{lane}, 3, 1
v_add_u32 v28, v28, v29                ; + b1
v_lshlrev_b32 v28, 13, v28
v_lshrrev_b32 v29, 5, v{lane}
v_lshlrev_b32 v29, 1, v29
v_and_b32 v39, 3, v{lane}
v_xor_b32 v29, v29, v39
v_lshl_add_u32 v28, v29, 4, v28""")
    vDma = 78
    a(f"v_mov_b32 v{vDma}, v28")
    a(f"""v_lshrrev_b32 v28, 2, v15           ; r
v_lshl_add_u32 v28, v16, 3, v28        ; 8gb + r
v_lshlrev_b32 v28, 6, v28
v_and_b32 v29, 1, v16
v_lshlrev_b32 v29, 5, v29              ; 2*(gb&1)*16
v_and_b32 v39, 3, v15                  ; c
v_lshlrev_b32 v39, 3, v39              ; c*8 = (c>>1)*16 + (c&1)*8
v_add3_u32 v28, v28, v29, v39
s_mul_i32 s{sTmp}, s{sW}, {WREG}
v_add_u32 v{vDum}, s{sTmp}, v28
v_xor_b32 v79, 32, v{vDum}""")
    vTr0, vTr1 = vDum, 79
    vTrO = 77
    a(f"""v_lshrrev_b32 v28, 2, v15           ; r
v_lshrrev_b32 v29, 1, v28
v_lshlrev_b32 v29, 5, v29              ; 32*(r>>1)
v_and_b32 v28, 1, v28
v_add_u32 v29, v29, v28
v_and_b32 v28, 1, v16
v_lshl_add_u32 v29, v28, 4, v29
v_lshrrev_b32 v28, 1, v16
v_lshl_add_u32 v29, v28, 2, v29
v_mul_u32_u24 v29, 288, v29
v_and_b32 v28, 3, v15
v_lshl_add_u32 v29, v28, 3, v29
v_add_u32 v62, s{sTmp}, v29""")
    vTrO = 62
    WOT = {(t, kb): 14 + 8 * (2 * i + kb) for i, t in enumerate(RES_WO_T) for kb in range(2)}
    def wo_reads(kb):
        for t in range(9):
            dst = TUP[("O", t, kb)] if t not in RES_WO_T else WOT[(t, kb)]
            for kh in range(2):
                for sub in range(2):
                    off = (64 * kb + 8 * kh + 2 * sub) * 288 + t * 32
                    a(f"ds_read_b64_tr_b16 {vr(dst + 4*kh + 2*sub, 2)}, v{vTrO} offset:{off}")
    seq = REG_QKV + RES_QKV
    srd_of = {"Q": KA["Wq"], "K": KA["Wk"], "V": KA["Wv"]}
    sM = {"Q": 64, "K": 68, "V": 72}
    for m in "QKV":
        srd(a, sM[m], srd_of[m], 576 * 32 * 128 * 2)
    a(f"""s_lshl_b32 s{sTmp}, s{sH}, 8
s_lshl_b32 s{sTmp2}, s{sW}, 6
s_add_u32 s{sTmp}, s{sTmp}, s{sTmp2}
s_add_u32 s76, s{sTmp}, {8*16*8192}""")
    for sl in range(1, 9):
        x = [None, 0, 0, 1, 2, 3, 1, 2, 3][sl]
        up = sl in (2, 6, 7, 8)
        a(f"s_xor_b32 s{sTmp2}, s{sW}, {x}")
        if up: a(f"s_add_u32 s{sTmp2}, s{sTmp2}, 4")
        a(f"s_lshl_b32 s{sTmp2}, s{sTmp2}, 17")
        a(f"s_add_u32 s{76+sl}, s{sTmp}, s{sTmp2}")
    a(f"s_mul_i32 s{sTmp3}, s{sW}, {WREG}")
    def dma_block(n):
        m, sl = seq[n]
        blk = n % 9
        for i in range(4):
            a(f"s_add_u32 s{sTmp}, s{76+sl}, {144*i*8192}")
            a(f"s_add_u32 m0, s{sTmp3}, {blk*4096 + i*1024}")
            vm.op(f"buffer_load_dwordx4 v{vDma}, s[{sM[m]}:{sM[m]+3}], s{sTmp} offen lds", f"b{n}")
    vm.wait("wo0")
    wo_reads(0)
    a("s_waitcnt lgkmcnt(0)")
    for n in range(4): dma_block(n)
    vm.wait("wo1")
    wo_reads(1)
    a("s_waitcnt lgkmcnt(0)")
    for n in range(4, 9): dma_block(n)
    RT = 62
    for n in range(27):
        m, sl = seq[n]
        blk = n % 9
        vm.wait(f"b{n}")
        res = (m, sl) in RES_QKV
        for tau in range(2):
            dst = TUP[(m, sl, tau)] if not res else (tuple_tmp[tau])
            for kh in range(2):
                for sub in range(2):
                    a(f"ds_read_b64_tr_b16 {vr(dst + 4*kh + 2*sub, 2)}, v{vTr0 if tau == 0 else vTr1} offset:{blk*4096 + sub*256 + kh*2048}")
        a("s_waitcnt lgkmcnt(0)")
        if n + 9 < 27:
            dma_block(n + 9)
        if n in (18, 19, 20):
            t = RES_WO_T[n - 18]
            for kb in range(2):
                for hf in range(2):
                    a(f"ds_write_b128 v{vWT}, {vr(WOT[(t,kb)] + 4*hf, 4)} offset:{blk*4096 + kb*2048 + hf*1024}")
        if res:
            for tau in range(2):
                for hf in range(2):
                    a(f"ds_write_b128 v{vWT}, {vr(tuple_tmp[tau] + 4*hf, 4)} offset:{blk*4096 + tau*2048 + hf*1024}")
            a("s_waitcnt lgkmcnt(0)")
    a("s_waitcnt lgkmcnt(0)")

tuple_tmp = [14, 22]

def emit_scalars(a):
    a(f"""
s_lshl_b32 s{sTmp}, s{sW}, 10
s_add_u32 s{sIWB}, s{sTmp}, {IMG}
; sPstB = P + h*9216 + w*2304
s_mul_i32 s{sTmp}, s{sH}, 9216
s_mul_i32 s{sTmp2}, s{sW}, 2304
s_add_u32 s{sTmp}, s{sTmp}, s{sTmp2}
s_add_u32 s{sPstB}, s{sTmp}, {P}
s_lshl_b32 s{sTmp}, s{sW}, 5
s_add_u32 s{sU}, s{sTmp}, s{sH}
s_cmp_lt_u32 s{sU}, 72
s_cselect_b32 s{sHas}, 1, 0
s_lshr_b32 s{sTmp}, s{sU}, 1
s_lshl_b32 s{sTmp}, s{sTmp}, 8
s_and_b32 s{sTmp2}, s{sU}, 1
s_lshl_b32 s{sTmp2}, s{sTmp2}, 5
s_add_u32 s{sTmp}, s{sTmp}, s{sTmp2}
s_add_u32 s{sPrdB}, s{sTmp}, {P}
; T = u>>1 ; g' = T/9 ; t = T%9 ; sIwrB = IMG + t*1024 + g'*256 + (u&1)*8
s_lshr_b32 s{sTmp}, s{sU}, 1
s_mul_i32 s{sTmp2}, s{sTmp}, 57
s_lshr_b32 s{sTmp2}, s{sTmp2}, 9          ; T/9 for T<64 (57/512)
s_mul_i32 s{sTmp3}, s{sTmp2}, 9
s_sub_u32 s{sTmp}, s{sTmp}, s{sTmp3}      ; t
s_lshl_b32 s{sTmp}, s{sTmp}, 10
s_lshl_b32 s{sTmp2}, s{sTmp2}, 8
s_add_u32 s{sTmp}, s{sTmp}, s{sTmp2}
s_and_b32 s{sTmp2}, s{sU}, 1
s_lshl_b32 s{sTmp2}, s{sTmp2}, 3
s_add_u32 s{sTmp}, s{sTmp}, s{sTmp2}
s_add_u32 s{sIwrB}, s{sTmp}, {IMG}
s_lshl_b32 s{sTmp}, s{sH}, 2
s_add_u32 s{sTmp}, s{sTmp}, s{sW}
s_lshl_b32 s{sTmp2}, s{sTmp}, 11
s_add_u32 s{sKT}, s{sTmp2}, {KT}
s_add_u32 s{sVT}, s{sTmp2}, {VT}
s_lshl_b32 s{sTmp2}, s{sTmp}, 10
s_add_u32 s{sKM}, s{sTmp2}, {KM}
s_add_u32 s{sVM}, s{sTmp2}, {VM}
s_lshl_b32 s{sTmp}, s{sH}, 8
s_add_u32 s{sFlg}, s{sTmp}, {FLAGS}
s_mov_b32 s{sS}, 0
""")

def emit_gather_scalars(a):
    a(f"""
s_add_u32 s{sTmp}, s{sS}, 1
s_and_b32 s{sTmp}, s{sTmp}, 3
s_mul_i32 s{sTmp}, s{sTmp}, 9216
s_add_u32 s{sIW}, s{sIWB}, s{sTmp}
s_add_u32 s{sIW4}, s{sIW}, 4096
s_add_u32 s{sI8}, s{sTmp}, {IMG + 8192}
s_add_u32 s{sIwr}, s{sIwrB}, s{sTmp}
""")

def emit_part_scalars(a):
    a(f"""
s_add_u32 s{sTmp}, s{sS}, 3
s_and_b32 s{sTmp}, s{sTmp}, 3
s_mul_i32 s{sTmp}, s{sTmp}, 9216
s_add_u32 s{sIrst}, s{sIwrB}, s{sTmp}
s_and_b32 s{sTmp}, s{sS}, 1
s_mul_i32 s{sTmp}, s{sTmp}, {PSLOT}
s_add_u32 s{sPst}, s{sPstB}, s{sTmp}
s_add_u32 s{sPrd}, s{sPrdB}, s{sTmp}
s_add_u32 s{sPrd+1}, s{sPrd}, {8*9216}
s_add_u32 s{sPrd+2}, s{sPrd}, {16*9216}
s_add_u32 s{sPrd+3}, s{sPrd}, {24*9216}
""")

def emit_mem0(a):
    srd(a, sT, KA["mem0"], 8 * 576 * 2)
    a(f"""
v_lshrrev_b32 v58, 4, v{vL16}          ; lane
v_and_b32 v59, 15, v58                 ; m
v_lshrrev_b32 v60, 4, v58              ; g
v_lshrrev_b32 v61, 2, v59
v_lshlrev_b32 v61, 1, v61
v_and_b32 v62, 1, v59
v_add_u32 v61, v61, v62                ; rho
v_mul_u32_u24 v61, 1152, v61
v_mul_u32_u24 v60, 288, v60
v_add_u32 v61, v61, v60
v_lshrrev_b32 v62, 1, v59
v_and_b32 v62, 1, v62
v_lshl_add_u32 v61, v62, 1, v61
s_lshl_b32 s{sTmp}, s{sW}, 5
s_add_u32 s{sTmp2}, s{sTmp}, 128
s_movk_i32 s{sTmp3}, 256
""")
    for k, so in enumerate((sTmp3, sTmp, sTmp2)):
        for jp in range(4):
            o = 16*(jp >> 1) + 4*(jp & 1)
            a(f"buffer_load_ushort v{AR[k]+jp}, v61, s[{sT}:{sT+3}], s{so} offen offset:{o}")
            a(f"buffer_load_ushort v{62+4*k+jp}, v61, s[{sT}:{sT+3}], s{so} offen offset:{o+8}")
    a("s_waitcnt vmcnt(0)")
    for k in range(3):
        for jp in range(4):
            a(f"v_lshl_or_b32 v{AR[k]+jp}, v{62+4*k+jp}, 16, v{AR[k]+jp}")

def stage_load(a, lg, blk, half, tag):
    if "nostage" in X: return
    for hf in range(2):
        lg.op(f"ds_read_b128 {vr(ST[half]+4*hf,4)}, v{vWT} offset:{blk*4096 + half*2048 + hf*1024}", tag)

def zero(a, regs):
    for r in regs: a(f"v_mov_b32 v{r}, 0")

def bounded(a, lab_retry, lab_fail):
    a(f"s_add_u32 s{sPoll}, s{sPoll}, 1")
    a(f"s_cmp_lt_u32 s{sPoll}, {POLL_MAX}")
    a(f"s_cbranch_scc1 {lab_retry}")
    a(f"s_branch {lab_fail}")

POLL_MAX = 400000
DBG_LAST = 63
X = set()
DBG_DUMP = False
def dump(a, k, base, n=4):
    if not DBG_DUMP: return
    lab = a.uid("L_dump")
    a(f"s_cmp_lg_u32 s{sS}, 0")
    a(f"s_cbranch_scc1 {lab}")
    a(f"s_lshl_b32 s{sTmp}, s{sH}, 2")
    a(f"s_add_u32 s{sTmp}, s{sTmp}, s{sW}")
    a(f"s_lshl_b32 s{sTmp}, s{sTmp}, 14")
    a(f"s_add_u32 s{sTmp}, s{sTmp}, {DBG + 0x10000 + k*1024}")
    a("s_nop 7\ns_nop 7")
    op = {1: "dword", 2: "dwordx2", 4: "dwordx4"}[n]
    a(f"buffer_store_{op} {vr(base,n)}, v{vL16}, s[{sWS}:{sWS+3}], s{sTmp} offen")
    a("s_waitcnt vmcnt(0)")
    a.label(lab)

FUSED = False
sRdy0, sRdy1, sQF0, sNd = 90, 91, 92, 93
D_LN = 32
def qkv_ready(a, first=False):
    if not FUSED: return
    WS = f"s[{sWS}:{sWS+3}]"
    l1, l2, l3 = a.uid("L_qr"), a.uid("L_qr"), a.uid("L_qr")
    if first: a(f"s_mov_b32 s{sTmp}, 0")
    else:
        a(f"s_add_u32 s{sTmp}, s{sS}, 1")
        a(f"s_min_u32 s{sTmp}, s{sTmp}, 63")
    a(f"s_lshr_b32 s{sNd}, s{sTmp}, 1")
    a(f"s_bitcmp1_b32 s{sTmp}, 0")
    a(f"s_cselect_b32 s{sTmp2}, s{sRdy1}, s{sRdy0}")
    a(f"s_cmp_gt_u32 s{sTmp2}, s{sNd}")
    a(f"s_cbranch_scc1 {l2}")
    a(f"s_and_b32 s{sTmp}, s{sTmp}, 1")
    a(f"s_mul_i32 s{sTmp3}, s{sTmp}, {48*256}")
    a(f"s_add_u32 s{sTmp3}, s{sTmp3}, s{sQF0}")
    a(f"s_mov_b32 s{sPoll}, 0")
    a.label(l1)
    a(f"buffer_load_dword v{T0}, off, {WS}, s{sTmp3} sc1")
    a(f"buffer_load_dword v{T1}, off, {WS}, s{sTmp3} offset:0 sc1".replace(f"s{sTmp3} offset:0", f"s{sTmp3} offset:0"))
    a.items.pop()
    a(f"s_add_u32 s{sTmp2}, s{sTmp3}, 4096")
    a(f"buffer_load_dword v{T1}, off, {WS}, s{sTmp2} sc1")
    a("s_waitcnt vmcnt(0)")
    a(f"v_min_u32 v{T0}, v{T0}, v{T1}")
    a(f"v_readfirstlane_b32 s{sTmp2}, v{T0}")
    a(f"s_cmp_gt_u32 s{sTmp2}, s{sNd}")
    a(f"s_cbranch_scc1 {l3}")
    bounded(a, l1, "L_fail")
    a.label(l3)
    a(f"s_cmp_eq_u32 s{sTmp}, 0")
    a(f"s_cselect_b32 s{sRdy0}, s{sTmp2}, s{sRdy0}")
    a(f"s_cselect_b32 s{sRdy1}, s{sRdy1}, s{sTmp2}")
    a.label(l2)

def emit_loop(a, sc, tm, sfx):
    WS = f"s[{sWS}:{sWS+3}]"
    L = lambda n: f"L_{n}_{sfx}"
    lg = Cnt(a, "lgkmcnt"); vm = Cnt(a, "vmcnt")
    a(f"s_branch {L('got')}")
    def gloads():
        a(f"buffer_load_dwordx4 {vr(AR[0],4)}, v{vL16}, {WS}, s{sI8} offen sc1")
        a(f"buffer_load_dwordx4 {vr(AR[1],4)}, v{vL16}, {WS}, s{sIW} offen sc1")
        a(f"buffer_load_dwordx4 {vr(AR[2],4)}, v{vL16}, {WS}, s{sIW4} offen sc1")
    a.label(L("loop"))
    gloads()
    stamp(a, 0, tm)
    zero(a, range(34, 58))
    a(f"s_mov_b32 s{sPoll}, 0")
    a(f"s_add_u32 s{sS}, s{sS}, 1")
    a("s_waitcnt vmcnt(0)")
    a(f"s_branch {L('gchk')}")
    a.label(L("gpoll"))
    gloads()
    a("s_waitcnt vmcnt(0)")
    a.label(L("gchk"))
    a(f"""v_max3_u32 v{T0}, v14, v15, v16
v_max3_u32 v{T1}, v17, v18, v19
v_max3_u32 v{T0}, v{T0}, v20, v21
v_max3_u32 v{T1}, v{T1}, v22, v23
v_max3_u32 v{T0}, v{T0}, v24, v25
v_max3_u32 v{T0}, v{T0}, v{T1}, v{T1}
v_cmp_eq_u32 vcc, -1, v{T0}
s_cbranch_vccz {L('got')}""")
    if "nosync" not in X: bounded(a, L("gpoll"), "L_fail")
    a.label(L("got"))
    stamp(a, 1, tm)
    lg.q = ["st0", "st0", "st1", "st1"]
    lg.op(f"ds_write_b128 v{vIMGw}, {vr(AR[1],4)}", "iw")
    lg.op(f"ds_write_b128 v{vIMGw}, {vr(AR[2],4)} offset:4096", "iw")
    order = {0: "QKV", 1: "KQV", 2: "QKV", 3: "QKV", 4: "KQV", 5: "QKV", 6: "QKV", 7: "KQV", 8: "QKV"}
    acc = {"Q": (Q0, Q1), "K": (K0, K1), "V": (V0, V1)}
    ring = {3: 3, 4: 4, 5: 0, 6: 1, 7: 2, 8: 3}
    def ring_read(sl):
        x = [None, 0, 0, 1, 2, 3, 1, 2, 3][sl]
        up = sl in (2, 6, 7, 8)
        a(f"v_xor_b32 v{T0}, {x << 10}, v{vIMGw}")
        lg.op(f"ds_read_b128 {vr(AR[ring[sl]],4)}, v{T0} offset:{4096 if up else 0}", f"r{sl}")
    res_next = {("K",1): ("V",2), ("V",2): ("K",4), ("K",4): ("V",5), ("V",5): ("K",7), ("K",7): ("V",8)}
    arof = lambda sl: AR[sl] if sl < 3 else AR[ring[sl]]
    for sl in range(9):
        if sl >= 3: lg.wait(f"r{sl}")
        for m in order[sl]:
            for tau in range(2):
                if (m, sl) in RES_QKV:
                    if lg.has(f"st{tau}"): lg.wait(f"st{tau}")
                    smf(a, acc[m][tau], arof(sl), ST[tau])
                    if (m, sl) in res_next:
                        stage_load(a, lg, RESBLK[res_next[(m, sl)]], tau, f"st{tau}")
                else:
                    smf(a, acc[m][tau], arof(sl), TUP[(m, sl, tau)])
        if sl == 0:
            lg.wait("iw")
            a("s_barrier")
            ring_read(3); ring_read(4)
            if "noflag" not in X:
                a(f"s_cmp_lg_u32 s{sW}, 3")
                a(f"s_cbranch_scc1 {L('nf')}")
                a(f"v_mov_b32 v{T0}, s{sS}")
                a("s_mov_b64 exec, 1")
                a(f"buffer_store_dword v{T0}, off, {WS}, s{sFlg} sc1")
                a("s_mov_b64 exec, -1")
                a.label(L("nf"))
            ring_read(5)
        if sl == 1: ring_read(6)
        if sl == 2: emit_part_scalars(a)
        if sl == 6: emit_gather_scalars(a)
        if sl == 2: ring_read(7)
        if sl == 3: ring_read(8)
        if sl == 4: a(f"buffer_load_dwordx4 {vr(AR[4],4)}, v{vL16}, {WS}, s{sKT} offen")
        if sl == 5: a(f"buffer_load_dwordx4 {vr(AR[0],4)}, v{vL16}, {WS}, s{sKT} offen offset:1024")
        if sl == 6: a(f"buffer_load_dwordx4 {vr(AR[1],4)}, v{vL16}, {WS}, s{sVT} offen")
        if sl == 7: a(f"buffer_load_dwordx4 {vr(AR[2],4)}, v{vL16}, {WS}, s{sVT} offen offset:1024")
        if sl == 7 and PFE:
            qkv_ready(a)
            a(f"s_add_u32 s{sTmp}, s{sKT}, {32*4*2048}")
            a(f"buffer_load_dword v{vDum}, v{vPF}, {WS}, s{sTmp} offen")
    stamp(a, 2, tm)
    cvt = lambda d, x, y: a(f"v_cvt_pk_bf16_f32 v{d}, v{x}, v{y}")
    for base in (Q0, Q1, K0, K1):
        cvt(base, base, base + 1); cvt(base + 1, base + 2, base + 3)
        a(f"v_mfma_f32_16x16x16_bf16 {vr(58 + (base-Q0),4)}, {vr(base,2)}, {vr(SelQ if base < K0 else SelK,2)}, 0")
    cvt(50, 50, 51); cvt(51, 52, 53); cvt(52, 54, 55); cvt(53, 56, 57)
    a(f"buffer_store_dwordx4 v[50:53], v{vL16}, {WS}, s{sVM} offen sc1")
    for i in range(4): cvt(34 + i, 58 + 2*i, 59 + 2*i)
    for i in range(4): cvt(42 + i, 66 + 2*i, 67 + 2*i)
    a(f"buffer_store_dwordx4 v[42:45], v{vL16}, {WS}, s{sKM} offen sc1")
    a(f"s_cmp_eq_u32 s{sS}, {DBG_LAST}")
    a(f"s_cbranch_scc1 {L('done')}")
    dump(a, 0, 34)
    a(f"s_waitcnt vmcnt({5 if PFE else 4})")
    a(f"v_mfma_f32_16x16x32_bf16 v[58:61], {vr(AR[4],4)}, v[34:37], 0")
    a(f"v_mfma_f32_16x16x32_bf16 v[62:65], {vr(AR[0],4)}, v[34:37], 0")
    a(f"v_mfma_f32_16x16x32_bf16 v[66:69], v[42:45], v[34:37], 0")
    zero(a, range(38, 42)); zero(a, range(46, 50))
    for i in range(4):
        a(f"v_cndmask_b32 v{70+i}, v{62+i}, v{58+i}, s[{mLo8}:{mLo8+1}]")
    a(f"ds_write_b128 v{vIMGw}, v[70:73] offset:9216")
    a(f"ds_write_b64 v{vMSw}, v[66:67]")
    zero(a, range(34, 38)); zero(a, range(42, 46))
    a("s_waitcnt lgkmcnt(0)")
    a("s_barrier")
    stamp(a, 3, tm)
    lg.reset()
    for w2 in range(4):
        lg.op(f"ds_read_b128 {vr(58+4*w2,4)}, v{vIMG0} offset:{9216 + w2*1024}", f"t{w2}")
    lg.op(f"ds_read_b128 v[14:17], v{vMSr}", "m0")
    lg.op(f"ds_read_b128 v[26:29], v{vMSr} offset:16", "m1")
    lg.wait("t1")
    for i in range(4): a(f"v_add_f32 v{58+i}, v{58+i}, v{62+i}")
    lg.wait("t3")
    for i in range(4): a(f"v_add_f32 v{66+i}, v{66+i}, v{70+i}")
    for i in range(4): a(f"v_add_f32 v{58+i}, v{58+i}, v{66+i}")
    lg.wait("m1")
    a("""v_add_f32 v14, v14, v16
v_add_f32 v15, v15, v17
v_add_f32 v26, v26, v28
v_add_f32 v27, v27, v29
v_add_f32 v62, v14, v26
v_add_f32 v63, v15, v27""")
    dump(a, 1, 58); dump(a, 2, 62, 2)
    a(f"""v_max3_f32 v{T0}, v58, v59, v60
v_max3_f32 v{T1}, v61, v62, v63
v_max_f32 v{T0}, v{T0}, v{T1}
v_max_f32_dpp v{T0}, v{T0}, v{T0} row_ror:8 row_mask:0xf bank_mask:0xf
v_mov_b32 v{T1}, v{T0}
v_permlane16_swap_b32 v{T0}, v{T1}
v_max_f32 v{T0}, v{T0}, v{T1}
v_mov_b32 v{T1}, v{T0}
v_permlane32_swap_b32 v{T0}, v{T1}
v_max_f32 v{T0}, v{T0}, v{T1}
v_mul_f32 v{T0}, s{sC}, v{T0}""")
    for i in range(6): a(f"v_fma_f32 v{58+i}, v{58+i}, s{sC}, -v{T0}")
    for i in range(6): a(f"v_exp_f32 v{58+i}, v{58+i}")
    for r in range(64, 69): a(f"v_mov_b32 v{r}, 0x3f803f80")
    a("v_mov_b32 v69, 0")
    a("""v_cvt_pk_bf16_f32 v58, v58, v59
v_cvt_pk_bf16_f32 v59, v60, v61
v_cvt_pk_bf16_f32 v62, v62, v63
v_mov_b32_dpp v60, v58 row_ror:8 row_mask:0xf bank_mask:0xf
v_mov_b32_dpp v61, v59 row_ror:8 row_mask:0xf bank_mask:0xf
v_mov_b32 v63, v62""")
    stamp(a, 4, tm)
    dump(a, 3, 58); dump(a, 4, 62, 2)
    a(f"s_waitcnt vmcnt({3 if PFE else 2})")
    a(f"""v_mfma_f32_16x16x32_bf16 v[26:29], v[64:67], v[58:61], 0
v_mfma_f32_16x16x32_bf16 v[30:33], {vr(AR[1],4)}, v[58:61], 0
v_mfma_f32_16x16x32_bf16 v[14:17], {vr(AR[2],4)}, v[58:61], 0
v_mfma_f32_16x16x16_bf16 v[26:29], v[68:69], v[62:63], v[26:29]
v_mfma_f32_16x16x16_bf16 v[30:33], v[50:51], v[62:63], v[30:33]
v_mfma_f32_16x16x16_bf16 v[14:17], v[52:53], v[62:63], v[14:17]""")
    if not PFE:
        qkv_ready(a)
        a(f"s_add_u32 s{sTmp}, s{sKT}, {32*4*2048}")
        a(f"buffer_load_dword v{vDum}, v{vPF}, {WS}, s{sTmp} offen")
    dump(a, 5, 26); dump(a, 6, 30); dump(a, 7, 14)
    a(f"v_rcp_f32 v{T0}, v26")
    zero(a, range(18, 26))
    for i in range(4): a(f"v_mul_f32 v{30+i}, v{30+i}, v{T0}")
    for i in range(4): a(f"v_mul_f32 v{14+i}, v{14+i}, v{T0}")
    a("""v_cvt_pk_bf16_f32 v70, v30, v31
v_cvt_pk_bf16_f32 v71, v32, v33
v_cvt_pk_bf16_f32 v72, v14, v15
v_cvt_pk_bf16_f32 v73, v16, v17""")
    a(f"s_mov_b64 exec, s[{mLo8}:{mLo8+1}]")
    lg.reset()
    lg.op(f"ds_write_b128 v{vOBw}, v[70:73]", "ow")
    a("s_mov_b64 exec, -1")
    wo_order = [2, 0, 1, 3, 5, 4, 6, 7, 8]
    stage_load(a, lg, RESBLK[("O", 2)], 0, "st0")
    stage_load(a, lg, RESBLK[("O", 2)], 1, "st1")
    zero(a, range(14, 18)); zero(a, range(26, 34))
    lg.wait("ow")
    a("s_barrier")
    lg.op(f"ds_read_b128 v[50:53], v{vIMG0} offset:{LOB-LIMG}", "a0")
    lg.op(f"ds_read_b128 v[54:57], v{vIMG0} offset:{LOB-LIMG+1024}", "a1")
    stamp(a, 5, tm)
    lg.wait("a1")
    dump(a, 8, 50); dump(a, 9, 54)
    nxt = {2: 5, 5: 8}
    def wo_epi(t):
        d = 14 + 4 * t
        a(f"v_add_f32 v{d}, v{d}, v{d+2}")
        a(f"v_add_f32 v{d+1}, v{d+1}, v{d+3}")
        a(f"v_cvt_pk_bf16_f32 v{d}, v{d}, v{d+1}")
        if "nopst" not in X: a(f"buffer_store_dword v{d}, v{vPst}, {WS}, s{sPst} offen offset:{t*256}{sc}")
    for i, t in enumerate(wo_order):
        d = 14 + 4 * t
        for kb in range(2):
            if t in RES_WO_T:
                if lg.has(f"st{kb}"): lg.wait(f"st{kb}")
                smf(a, d, 50 + 4*kb, ST[kb])
                if t in nxt: stage_load(a, lg, RESBLK[("O", nxt[t])], kb, f"st{kb}")
            else:
                smf(a, d, 50 + 4*kb, TUP[("O", t, kb)])
        if i == 0:
            a(f"""s_add_u32 s{sKT}, s{sKT}, {32*4*2048}
s_add_u32 s{sVT}, s{sVT}, {32*4*2048}
s_add_u32 s{sKM}, s{sKM}, {32*4*1024}
s_add_u32 s{sVM}, s{sVM}, {32*4*1024}""")
        if i >= 2: wo_epi(wo_order[i-2])
    wo_epi(wo_order[-2]); wo_epi(wo_order[-1])
    stamp(a, 6, tm)
    lg.reset()
    stage_load(a, lg, RESBLK[("K", 1)], 0, "st0")
    stage_load(a, lg, RESBLK[("K", 1)], 1, "st1")
    def tdump():
        if not tm: return
        lab = a.uid("L_td")
        a(f"s_cmp_lg_u32 s{sS}, 41")
        a(f"s_cbranch_scc1 {lab}")
        a("s_waitcnt lgkmcnt(0)")
        a(f"s_lshl_b32 s{sTmp}, s{sH}, 2")
        a(f"s_add_u32 s{sTmp}, s{sTmp}, s{sW}")
        a(f"s_lshl_b32 s{sTmp}, s{sTmp}, 6")
        a(f"s_add_u32 s{sTmp}, s{sTmp}, {DBG}")
        for k in range(NSTAMP):
            a(f"v_mov_b32 v{T0}, s{sTS+2*k}")
            a(f"buffer_store_dword v{T0}, off, {WS}, s{sTmp} offset:{4*k}")
        a("s_waitcnt vmcnt(0)")
        a.label(lab)
    a(f"s_cmp_eq_u32 s{sHas}, 0")
    a(f"s_cbranch_scc1 {L('nored')}")
    a(f"s_mov_b32 s{sPoll}, 0")
    for p in range(4):
        a(f"v_cndmask_b32 v{30+p}, 0, v{vOnePos}, s[{mR+2*p}:{mR+2*p+1}]")
    for r in range(38, 42): a(f"v_mov_b32 v{r}, -1")
    a.label(L("rpoll"))
    for ld in range(4):
        a(f"buffer_load_dwordx4 {vr(14+4*ld,4)}, v{vRld}, {WS}, s{sPrd+ld} offen sc1")
    a("s_waitcnt vmcnt(0)")
    a(f"""v_max3_u32 v{T0}, v14, v15, v16
v_max3_u32 v{T1}, v17, v18, v19
v_max3_u32 v{T0}, v{T0}, v20, v21
v_max3_u32 v{T1}, v{T1}, v22, v23
v_max3_u32 v{T0}, v{T0}, v24, v25
v_max3_u32 v{T1}, v{T1}, v26, v27
v_max3_u32 v{T0}, v{T0}, v28, v29
v_max_u32 v{T0}, v{T0}, v{T1}
v_cmp_eq_u32 vcc, -1, v{T0}
s_cbranch_vccz {L('rgot')}""")
    if "nosync" not in X: bounded(a, L("rpoll"), "L_fail")
    a.label(L("rgot"))
    stamp(a, 7, tm)
    dump(a, 10, 14); dump(a, 11, 18)
    for ld in range(4):
        a(f"v_mfma_f32_16x16x32_bf16 v[34:37], {vr(14+4*ld,4)}, v[30:33], {'0' if ld == 0 else 'v[34:37]'}")
    a("""v_add_f32 v34, v34, v36
v_add_f32 v35, v35, v37
v_cvt_pk_bf16_f32 v34, v34, v35""")
    a(f"s_mov_b64 exec, s[{mLo8}:{mLo8+1}]")
    a(f"buffer_store_dword v34, v{vIst}, {WS}, s{sIwr} offen{sc}")
    a("s_mov_b64 exec, -1")
    gloads()
    a(f"s_mov_b64 exec, s[{mLo8}:{mLo8+1}]")
    a(f"buffer_store_dword v38, v{vIst}, {WS}, s{sIrst} offen{sc}")
    a("s_mov_b64 exec, -1")
    for ld in range(4):
        a(f"buffer_store_dwordx4 v[38:41], v{vRld}, {WS}, s{sPrd+ld} offen{sc}")
    stamp(a, 8, tm)
    tdump()
    zero(a, range(34, 38)); zero(a, range(42, 58)); zero(a, range(38, 42))
    a(f"s_mov_b32 s{sPoll}, 0")
    a(f"s_add_u32 s{sS}, s{sS}, 1")
    a("s_waitcnt vmcnt(5)")
    a(f"s_branch {L('gchk')}")
    a.label(L("nored"))
    tdump()
    a(f"s_branch {L('loop')}")
    a.label(L("done"))
    if tm:
        a("s_memtime s[86:87]")
        a("s_waitcnt lgkmcnt(0)")
        a(f"s_sub_u32 s86, s86, s84")
        a(f"s_lshl_b32 s{sTmp}, s{sH}, 2")
        a(f"s_add_u32 s{sTmp}, s{sTmp}, s{sW}")
        a(f"s_lshl_b32 s{sTmp}, s{sTmp}, 6")
        a(f"s_add_u32 s{sTmp}, s{sTmp}, {DBG}")
        a(f"v_mov_b32 v{T0}, s86")
        a(f"buffer_store_dword v{T0}, off, {WS}, s{sTmp} offset:{4*NSTAMP}")
        a(f"s_sub_u32 s86, s84, s88")
        a(f"v_mov_b32 v{T0}, s86")
        a(f"buffer_store_dword v{T0}, off, {WS}, s{sTmp} offset:{4*NSTAMP+4}")
    a("s_waitcnt vmcnt(0)")
    a("s_barrier")
    a(f"s_cmp_lg_u32 s{sW}, 3")
    a(f"s_cbranch_scc1 L_exit")
    a(f"v_mov_b32 v{T0}, 64")
    a(f"buffer_store_dword v{T0}, off, {WS}, s{sFlg} sc1")
    a("s_branch L_exit")

def emit_chain(a, tm=False, fused=False):
    global FUSED
    FUSED = fused
    a.label("L_chain")
    if tm: a("s_memtime s[88:89]")
    a(f"s_mov_b32 s{sH}, s{sRole}")
    emit_init(a)
    emit_scalars(a)
    a(f"""s_waitcnt vmcnt(0)
s_barrier
s_cmp_lg_u32 s{sW}, 0
s_cbranch_scc1 L_cb_wait
s_mov_b64 exec, 1
v_mov_b32 v58, 1
buffer_atomic_add v58, off, s[{sDBG}:{sDBG+3}], 0 offset:{4*D_CHB} sc1
s_mov_b64 exec, -1
L_cb_wait:""")
    emit_mem0(a)
    lg = Cnt(a, "lgkmcnt")
    stage_load(a, lg, RESBLK[("K", 1)], 0, "st0")
    stage_load(a, lg, RESBLK[("K", 1)], 1, "st1")
    zero(a, range(34, 58))
    a(f"""s_mov_b32 s{sPoll}, 0
L_cb_poll:
buffer_load_dwordx4 v[26:29], off, s[{sDBG}:{sDBG+3}], 0 sc1
buffer_load_dword v30, off, s[{sDBG}:{sDBG+3}], 0 offset:{4*D_LN} sc1
s_waitcnt vmcnt(0)
v_readfirstlane_b32 s{sTmp}, v{26+D_CHB}
v_readfirstlane_b32 s{sTmp2}, v{26+D_OFFX}
v_readfirstlane_b32 s{sTmp3}, v30""")
    if fused:
        a(f"s_cmp_lt_u32 s{sTmp3}, 64")
        a(f"s_cselect_b32 s{sTmp}, 0, s{sTmp}")
    a(f"s_cmp_ge_u32 s{sTmp}, 32")
    a("s_cbranch_scc1 L_cb_ok")
    bounded(a, "L_cb_poll", "L_fail")
    a.label("L_cb_ok")
    if fused:
        a(f"s_mov_b32 s{sU}, s{sTmp2}")
        a(f"""s_lshr_b32 s{sQF0}, s{sH}, 1
s_add_u32 s{sQF0}, s{sQF0}, 32
s_lshl_b32 s{sQF0}, s{sQF0}, 8
s_add_u32 s{sQF0}, s{sQF0}, {FLAGS}
s_mov_b32 s{sRdy0}, 0
s_mov_b32 s{sRdy1}, 0""")
        qkv_ready(a, first=True)
        a(f"s_mov_b32 s{sTmp2}, s{sU}")
    if tm: a("s_memtime s[84:85]")
    a(f"s_cmp_lg_u32 s{sTmp2}, 0")
    a("s_cbranch_scc1 L_chain_slow")
    emit_loop(a, "", tm, "f")
    a.label("L_chain_slow")
    emit_loop(a, " sc1", tm, "s")
```

```python
import sys
sys.path.insert(0, 'gen')
from asm import *
from layout import *
from common import *
import ln, qkv, ffn, follow, final, chain

D_LN = 32
FL_CH, FL_QK, FL_FO, FL_FF = 0, 32, 128, 160
POLL_MAX = 400000
WS = f"s[{sWS}:{sWS+3}]"
DBGS = f"s[{sDBG}:{sDBG+3}]"
sP = 94
sQ, sQ2 = 92, 93

def bounded(a, retry):
    a(f"s_add_u32 s{sP}, s{sP}, 1")
    a(f"s_cmp_lt_u32 s{sP}, {POLL_MAX}")
    a(f"s_cbranch_scc1 {retry}")
    a("s_branch L_fail")

def wait_ln(a, vt):
    l1, l2 = a.uid("L_wl"), a.uid("L_wl")
    a(f"s_cmp_lg_u32 s{sW}, 0")
    a(f"s_cbranch_scc1 {l2}")
    a(f"s_mov_b32 s{sP}, 0")
    a.label(l1)
    a(f"buffer_load_dword v{vt}, off, {DBGS}, 0 offset:{4*D_LN} sc1")
    a("s_waitcnt vmcnt(0)")
    a(f"v_readfirstlane_b32 s{sQ}, v{vt}")
    a(f"s_cmp_ge_u32 s{sQ}, 64")
    a(f"s_cbranch_scc1 {l2}")
    bounded(a, l1)
    a.label(l2)
    a("s_barrier")

def flag_store(a, vt, sval, soff, wave=0):
    l = a.uid("L_fs")
    a(f"s_cmp_lg_u32 s{sW}, {wave}")
    a(f"s_cbranch_scc1 {l}")
    a(f"v_mov_b32 v{vt}, {sval}")
    a("s_mov_b64 exec, 1")
    a(f"buffer_store_dword v{vt}, off, {WS}, s{soff} sc1")
    a("s_mov_b64 exec, -1")
    a.label(l)

def emit_ln_role(a, sSeg):
    ln.emit_ln(a, sSeg)
    l = a.uid("L_zf")
    a(f"s_cmp_lg_u32 s{sW}, 0")
    a(f"s_cbranch_scc1 {l}")
    a(f"s_lshl_b32 s{sQ}, s{sSeg}, 10")
    a(f"s_add_u32 s{sQ}, s{sQ}, {FLAGS}")
    a("v_mov_b32 v8, 0\nv_mov_b32 v9, 0\nv_mov_b32 v10, 0\nv_mov_b32 v11, 0")
    a(f"buffer_store_dwordx4 v[8:11], v6, {WS}, s{sQ} offen sc1")
    a("s_waitcnt vmcnt(0)")
    a.label(l)
    a("s_barrier")
    l = a.uid("L_lna")
    a(f"s_cmp_lg_u32 s{sW}, 0")
    a(f"s_cbranch_scc1 {l}")
    a("s_mov_b64 exec, 1")
    a("v_mov_b32 v8, 1")
    a(f"buffer_atomic_add v8, off, {DBGS}, 0 offset:{4*D_LN} sc1")
    a("s_mov_b64 exec, -1")
    a.label(l)

sQF = 95
def qkv_hooks():
    def wait_xn(a):
        a(f"s_add_u32 s{sQF}, s96, {FL_QK}")
        a(f"s_lshl_b32 s{sQF}, s{sQF}, 8")
        a(f"s_add_u32 s{sQF}, s{sQF}, {FLAGS}")
        wait_ln(a, qkv.vTmp)
    def sig(a):
        a(f"s_sub_u32 s{sQ}, s{qkv.sSeg}, 1")
        a(f"s_max_i32 s{sQ}, s{sQ}, 0")
        flag_store(a, qkv.vTmp, f"s{sQ}", sQF)
    def fin(a):
        a("s_barrier")
        flag_store(a, qkv.vTmp, "32", sQF)
    return dict(wait_xn=wait_xn, sig=sig, fin=fin)

def ffn_hooks():
    def wait_xn(a):
        a(f"s_add_u32 s{sQF}, s96, {FL_FF}")
        a(f"s_lshl_b32 s{sQF}, s{sQF}, 8")
        a(f"s_add_u32 s{sQF}, s{sQF}, {FLAGS}")
        wait_ln(a, 16)
    def fin(a):
        a("s_barrier")
        flag_store(a, 16, "1", sQF)
    return dict(wait_xn=wait_xn, fin=fin)

vFT, vFM, vF0 = 5, 6, 38
sKT_, sKM_ = 90, 91
def follow_hooks():
    F = follow
    def wait_tok(a, which):
        if which == 0:
            a(f"s_add_u32 s{sQF}, s96, {FL_FO}")
            a(f"s_lshl_b32 s{sQF}, s{sQF}, 8")
            a(f"s_add_u32 s{sQF}, s{sQF}, {FLAGS}")
            a(f"""s_mul_i32 s{sQ}, s{F.sPar}, 48
s_add_u32 s{sQ}, s{sQ}, s{F.sHP}
s_add_u32 s{sQ}, s{sQ}, {FL_QK}
s_lshl_b32 s{sQ}, s{sQ}, 8
s_add_u32 s{sQ}, s{sQ}, {FLAGS}
v_and_b32 v{vF0}, 63, v0
v_cmp_gt_u32 vcc, 3, v{vF0}
v_cndmask_b32 v{vF0}, 0, v{vF0}, vcc
v_lshlrev_b32 v{vF0}, 12, v{vF0}
v_add_u32 v{vFT}, s{sQ}, v{vF0}
s_lshl_b32 s{sQ}, s{F.sHP}, 1
s_lshr_b32 s{sQ2}, s{sW}, 1
s_add_u32 s{sQ}, s{sQ}, s{sQ2}
s_add_u32 s{sQ}, s{sQ}, {FL_CH}
s_lshl_b32 s{sQ}, s{sQ}, 8
s_add_u32 s{sQ}, s{sQ}, {FLAGS}
v_mov_b32 v{vFM}, s{sQ}
s_mov_b32 s{sKT_}, 0
s_mov_b32 s{sKM_}, 0""")
            wait_ln(a, vF0)
            a(f"s_mov_b32 s{sQ2}, 1")
        else:
            a(f"s_add_u32 s{sQ2}, s{F.sIt}, 2")
        l1, l2 = a.uid("L_wt"), a.uid("L_wt")
        a(f"s_cmp_ge_u32 s{sKT_}, s{sQ2}")
        a(f"s_cbranch_scc1 {l2}")
        a(f"s_mov_b32 s{sP}, 0")
        a.label(l1)
        a(f"buffer_load_dword v{vF0}, v{vFT}, {WS}, 0 offen sc1")
        a("s_waitcnt vmcnt(0)")
        a(f"v_readlane_b32 s{sKT_}, v{vF0}, 0")
        a(f"v_readlane_b32 s{sQ}, v{vF0}, 1")
        a(f"s_min_u32 s{sKT_}, s{sKT_}, s{sQ}")
        a(f"v_readlane_b32 s{sQ}, v{vF0}, 2")
        a(f"s_min_u32 s{sKT_}, s{sKT_}, s{sQ}")
        a(f"s_cmp_ge_u32 s{sKT_}, s{sQ2}")
        a(f"s_cbranch_scc1 {l2}")
        bounded(a, l1)
        a.label(l2)
    def wait_mem(a):
        l1, l2 = a.uid("L_wm"), a.uid("L_wm")
        a(f"s_cmp_gt_u32 s{sKM_}, s{F.sSeg}")
        a(f"s_cbranch_scc1 {l2}")
        a(f"s_mov_b32 s{sP}, 0")
        a.label(l1)
        a(f"buffer_load_dword v{vF0}, v{vFM}, {WS}, 0 offen sc1")
        a("s_waitcnt vmcnt(0)")
        a(f"v_readfirstlane_b32 s{sKM_}, v{vF0}")
        a(f"s_cmp_gt_u32 s{sKM_}, s{F.sSeg}")
        a(f"s_cbranch_scc1 {l2}")
        bounded(a, l1)
        a.label(l2)
    def sig(a):
        flag_store(a, vF0, f"s{F.sIt}", sQF)
    def fin(a):
        a("s_barrier")
        flag_store(a, vF0, "32", sQF)
    return dict(wait_tok=wait_tok, wait_mem=wait_mem, sig=sig, fin=fin)

def emit_final_role(a):
    a.label("L_final")
    final.emit_final_init(a)
    sTask, sNeed = 30, 31
    vFl, vNd, vT = 124, 125, 126
    a(f"""s_lshl_b32 s{sTask}, s96, 2
s_add_u32 s{sTask}, s{sTask}, s{sW}""")
    a.label("L_fin_loop")
    a(f"""s_mul_i32 s{sQ}, s{sTask}, 1821
s_lshr_b32 s{sQ}, s{sQ}, 16                ; segment
s_lshr_b32 s{sNeed}, s{sQ}, 1
s_add_u32 s{sNeed}, s{sNeed}, 1
s_and_b32 s{sQ2}, s{sQ}, 1
s_lshl_b32 s{sQ2}, s{sQ2}, 4
s_add_u32 s{sQ2}, s{sQ2}, {FL_FO}
s_and_b32 s{sQ}, s{sQ}, 0xfffffffc
s_add_u32 s{sQ}, s{sQ}, {FL_FF - 16}
v_and_b32 v{vT}, 63, v0
v_mov_b32 v{vFl}, s{sQ2}
v_mov_b32 v{vNd}, s{sQ}
v_cmp_gt_u32 vcc, 16, v{vT}
v_cndmask_b32 v{vFl}, v{vNd}, v{vFl}, vcc
v_mov_b32 v{vNd}, s{sNeed}
v_cndmask_b32 v{vNd}, 1, v{vNd}, vcc
v_cmp_gt_u32 vcc, 20, v{vT}
v_cndmask_b32 v{vT}, 0, v{vT}, vcc
v_add_u32 v{vFl}, v{vFl}, v{vT}
v_mov_b32 v{vT}, s{sQ2}
v_cndmask_b32 v{vFl}, v{vT}, v{vFl}, vcc
v_mov_b32 v{vT}, s{sNeed}
v_cndmask_b32 v{vNd}, v{vT}, v{vNd}, vcc
v_lshlrev_b32 v{vFl}, 8, v{vFl}
v_add_u32 v{vFl}, {FLAGS}, v{vFl}
s_add_u32 s{sQ}, s{sQ}, 16
s_lshl_b32 s{sQ}, s{sQ}, 8
s_add_u32 s{sQ}, s{sQ}, {FLAGS}
s_mov_b32 s{sP}, 0""")
    a.label("L_fin_p1")
    a("s_mov_b64 exec, 1")
    a(f"buffer_load_dword v{vT}, off, {WS}, s{sQ} sc1")
    a("s_mov_b64 exec, -1")
    a("s_waitcnt vmcnt(0)")
    a(f"v_readfirstlane_b32 s{sQ2}, v{vT}")
    a(f"s_cmp_ge_u32 s{sQ2}, 1")
    a("s_cbranch_scc1 L_fin_p2")
    bounded(a, "L_fin_p1")
    a.label("L_fin_p2")
    a(f"buffer_load_dword v{vT}, v{vFl}, {WS}, 0 offen sc1")
    a("s_waitcnt vmcnt(0)")
    a(f"v_cmp_lt_u32 vcc, v{vT}, v{vNd}")
    a("s_cbranch_vccz L_fin_go")
    bounded(a, "L_fin_p2")
    a.label("L_fin_go")
    final.emit_final_task(a, sTask)
    a(f"s_add_u32 s{sTask}, s{sTask}, 768")
    a(f"s_cmp_lt_u32 s{sTask}, 2304")
    a("s_cbranch_scc1 L_fin_loop")
    a("s_waitcnt vmcnt(0)")
    a("s_branch L_exit")

def build(tm=False):
    a = Asm()
    prologue(a)
    if tm: a("s_memtime s[88:89]")
    a(f"s_cmp_lt_u32 s{sRole}, 32")
    a("s_cbranch_scc1 L_chain")
    a(f"s_sub_u32 s96, s{sRole}, 32")
    a("s_cmp_lt_u32 s96, 64")
    a("s_cbranch_scc1 L_r_ln")
    a("s_cmp_lt_u32 s96, 160")
    a("s_cbranch_scc1 L_r_qkv")
    a("s_sub_u32 s96, s96, 160")
    ffn.emit_ffn(a, "L_r_ffn_end", ffn_hooks())
    a.label("L_r_ffn_end")
    a("s_add_u32 s96, s96, 128")
    a("s_branch L_final")
    a.label("L_r_qkv")
    a("s_sub_u32 s96, s96, 64")
    qkv.emit_qkv(a, "L_r_qkv_end", qkv_hooks())
    a.label("L_r_qkv_end")
    a("s_add_u32 s96, s96, 32")
    a("s_branch L_final")
    a.label("L_r_ln")
    a("s_mov_b32 s30, s96")
    emit_ln_role(a, 30)
    a("s_cmp_lt_u32 s96, 32")
    a("s_cbranch_scc1 L_r_fol")
    a("s_sub_u32 s96, s96, 32")
    wait_ln(a, 8)
    a("s_branch L_final")
    a.label("L_r_fol")
    follow.emit_follow(a, "L_exit", follow_hooks())
    emit_final_role(a)
    chain.emit_chain(a, tm, fused=True)
    a.label("L_fail")
    a(f"""s_mov_b64 exec, 1
v_mov_b32 v78, 1
buffer_atomic_add v78, off, s[{sDBG}:{sDBG+3}], 0 offset:{4*D_ERR} sc1
s_waitcnt vmcnt(0)""")
    a.label("L_exit")
    a("s_endpgm")
    name = NAME + "_kernel"
    txt = HEADER.format(launch="; @launch grid=(256,1,1) block=(256,1,1) lds=163840") + kernel_open(name) + a.finalize() \
        + '.section .rodata,"a"\n.p2align 6\n' + kernel_desc(name)
    return txt

if __name__ == "__main__":
    out = sys.argv[1] if len(sys.argv) > 1 else f'cdna_kernels/{NAME}.s'
    tm = len(sys.argv) > 2 and sys.argv[2] == "tm"
    open(out, 'w').write(build(tm))
```

```python
from asm import *
from layout import *
from common import *

IMG2, ISTR = 0x10000, 0x4000
P2, PTOG = 0x20000, 0x80000
HS = 9344

WREG = 36864
LIMG, LJUNK, LSC, LMS, LOB, LW = 0, 8192, 9216, 13312, 14336, 16384
assert LW + 4 * WREG == 163840

sH, sS = 16, 18
sRD, sFL = 20, 24
sIW, sIW4, sI8, sIwr, sIrst, sPst = 28, 29, 30, 31, 32, 33
sPrd = 34
sKT, sVT, sKM, sVM = 38, 39, 40, 41
sPoll = 42
sTmp, sTmp2, sTmp3 = 43, 44, 45
sC = 46
sOnes, sOne0 = 48, 50
mB1, mR = 52, 54
sIwrB, sIWB = 62, 63
sTS = 64
NSTAMP = 10
sRdy0, sRdy1, sQF0, sNd, sU = 90, 91, 92, 93, 19

vL16, vIMGw, vWT, vMSw, vOBw, vPst, vRld, vIst, vIdx, vOnePos, vPF, vDum, T0, T1 = range(14)
AR = [14, 18, 22, 26, 30]
Q0, Q1, K0, K1, V0, V1 = 34, 38, 42, 46, 50, 54
ST = [58, 66]
Sel = 74
SP = 76

def tuple_reg(i):
    return 80 + 8 * i if i < 22 else 256 + 8 * (i - 22)

RES_QKV = [("Q", 0), ("K", 1), ("V", 2), ("K", 4), ("Q", 7), ("K", 8)]
RES_WO_T = [0, 4, 8]
REG_QKV = [(m, s) for m in "QKV" for s in range(9) if (m, s) not in RES_QKV]
TUP = {}
_i = 0
for (m, s) in REG_QKV:
    for tau in range(2):
        TUP[(m, s, tau)] = tuple_reg(_i); _i += 1
for t in range(9):
    if t not in RES_WO_T:
        for kb in range(2):
            TUP[("O", t, kb)] = tuple_reg(_i); _i += 1
assert _i == 54
RESBLK = {b: 3 + i for i, b in enumerate(RES_QKV)}
RESBLK.update({("O", t): i for i, t in enumerate(RES_WO_T)})
SLOT_X  = [0, 0, None, 1, 2, 3, 1, 2, 3]
SLOT_UP = [0, 1, None, 0, 0, 0, 1, 1, 1]

STAMPS = None
X = set()
POLL_MAX = 400000
LAST = 63
FUSED = False
D_LN = 32

def smf(a, d, areg, breg):
    a(f"v_smfmac_f32_16x16x64_bf16 {vr(d,4)}, {vr(areg,4)}, {vr(breg,8)}, v{vIdx}")
def stamp(a, k, on):
    if on and (STAMPS is None or k in STAMPS):
        a(f"s_memtime s[{sTS+2*k}:{sTS+2*k+1}]")
def cvt(a, d, x, y): a(f"v_cvt_pk_bf16_f32 v{d}, v{x}, v{y}")
sZ, sM1 = 94, 100
def zero2(a, lo, hi, val="0"):
    val = {"0": f"s[{sZ}:{sZ+1}]", "-1": f"s[{sM1}:{sM1+1}]"}.get(val, val)
    for r in range(lo, hi, 2): a(f"v_mov_b64 v[{r}:{r+1}], {val}")

def emit_init(a):
    lane = 14
    a(f"s_mov_b64 s[{sZ}:{sZ+1}], 0")
    a(f"s_mov_b64 s[{sM1}:{sM1+1}], -1")
    a(f"v_and_b32 v{lane}, 63, v0")
    a(f"""
v_lshlrev_b32 v{vL16}, 4, v{lane}
s_lshl_b32 s{sTmp}, s{sW}, 10
v_add_u32 v{vIMGw}, s{sTmp}, v{vL16}
s_mul_i32 s{sTmp}, s{sW}, {WREG}
s_add_u32 s{sTmp}, s{sTmp}, {LW}
v_add_u32 v{vWT}, s{sTmp}, v{vL16}
v_and_b32 v15, 15, v{lane}            ; n
v_lshrrev_b32 v16, 4, v{lane}         ; g
v_lshrrev_b32 v17, 2, v15             ; n>>2
v_and_b32 v18, 1, v15                 ; n&1
v_bfe_u32 v19, v15, 1, 1
v_lshl_add_u32 v20, v17, 1, v18       ; q = 2(n>>2) + (n&1)
v_lshl_add_u32 v21, v16, 3, v20
v_lshlrev_b32 v21, 5, v21
s_lshl_b32 s{sTmp}, s{sW}, 3
s_add_u32 s{sTmp}, s{sTmp}, {LMS}
v_add_u32 v{vMSw}, s{sTmp}, v21
v_and_b32 v21, 13, v15
v_lshl_add_u32 v21, v16, 4, v21
s_and_b32 s{sTmp}, s{sW}, 1
s_lshl_b32 s{sTmp}, s{sTmp}, 1
v_add_u32 v21, s{sTmp}, v21
v_lshlrev_b32 v21, 4, v21
s_lshr_b32 s{sTmp}, s{sW}, 1
s_lshl_b32 s{sTmp}, s{sTmp}, 10
s_add_u32 s{sTmp}, s{sTmp}, {LOB}
v_add_u32 v21, s{sTmp}, v21
v_add_u32 v22, {LJUNK}, v{vL16}
v_cmp_eq_u32 s[{mB1}:{mB1+1}], 1, v19
v_cndmask_b32 v{vOBw}, v21, v22, s[{mB1}:{mB1+1}]
v_lshlrev_b32 v{vPst}, 2, v{lane}
v_lshl_add_u32 v21, v16, 1, v19
v_mul_u32_u24 v21, {HS}, v21
v_lshl_add_u32 v{vRld}, v20, 4, v21
; vIst = (2g + (n&1))*16 + (n>>2)*4
v_lshl_add_u32 v21, v16, 1, v18
v_lshlrev_b32 v21, 4, v21
v_lshl_add_u32 v{vIst}, v17, 2, v21
; vIdx
v_mov_b32 v21, 0x4444
v_mov_b32 v22, 0xeeee
v_cndmask_b32 v{vIdx}, v21, v22, s[{mB1}:{mB1+1}]
; vOnePos = (n&1) ? 0x3f800000 : 0x3f80
v_mov_b32 v22, 0x3f80
v_mov_b32 v23, 0x3f800000
v_cmp_eq_u32 vcc, 1, v18
v_cndmask_b32 v{vOnePos}, v22, v23, vcc
; masks
v_cmp_eq_u32 s[{mR}:{mR+1}], 0, v17
v_cmp_eq_u32 s[{mR+2}:{mR+3}], 1, v17
v_cmp_eq_u32 s[{mR+4}:{mR+5}], 2, v17
v_cmp_eq_u32 s[{mR+6}:{mR+7}], 3, v17
v_cmp_eq_u32 vcc, v17, v16
v_cndmask_b32 v{Sel}, 0, v{vOnePos}, vcc
v_cndmask_b32 v{Sel+1}, 0, v{vOnePos}, vcc
v_lshlrev_b32 v21, 7, v15
v_and_b32 v22, 1, v16
v_mul_u32_u24 v22, {(VT-KT)>>12}, v22
v_lshlrev_b32 v22, 12, v22
v_add_u32 v{vPF}, v21, v22
v_lshlrev_b32 v{vPF}, 5, v{lane}
s_mov_b32 s{sC}, 0x3e0293ee          ; 128^-0.5 * log2(e)
s_mov_b32 s{sC+1}, 0x3e0293ee
s_mov_b32 s{sOnes}, 0x3f803f80
s_mov_b32 s{sOnes+1}, 0x3f803f80
s_mov_b32 s{sOne0}, 0x3f803f80
s_mov_b32 s{sOne0+1}, 0
""")
    emit_scalars(a)
    RD = f"s[{sRD}:{sRD+3}]"
    zero2(a, 24, 28, "-1")
    nst = 0
    for tog in (0, PTOG):
        for ld in range(4):
            a(f"s_xor_b32 s{sTmp}, s{sPrd+ld}, {tog}")
            a(f"buffer_store_dwordx4 v[24:27], v{vRld}, {RD}, s{sTmp} offen sc1"); nst += 1
    for sl in range(4):
        a(f"s_add_u32 s{sTmp}, s{sIwrB}, {sl*ISTR}")
        a(f"buffer_store_dword v24, v{vIst}, {RD}, s{sTmp} offen sc1"); nst += 1
    vm = Cnt(a, "vmcnt"); vm.q = ["rst"] * nst
    srd(a, sT, KA["Wo"], 32 * 128 * 576 * 2)
    for i in range(9):
        a(f"""v_add_u32 v28, {64*i}, v{lane}
v_mul_u32_u24 v29, 3641, v28
v_lshrrev_b32 v29, 16, v29
v_mul_u32_u24 v39, 18, v29
v_sub_u32 v39, v28, v39
v_mul_u32_u24 v29, 1152, v29
v_lshl_add_u32 v{30+i}, v39, 4, v29""")
    sLB = sTmp3
    a(f"""s_mul_i32 s{sTmp}, s{sH}, 147456
s_mul_i32 s{sTmp2}, s{sW}, 288
s_add_u32 s{sTmp}, s{sTmp}, s{sTmp2}
s_mul_i32 s{sLB}, s{sW}, {WREG}
s_add_u32 s{sLB}, s{sLB}, {LW}""")
    for r in range(4):
        for i in range(9):
            a(f"s_add_u32 m0, s{sLB}, {(r*9+i)*1024}")
            vm.op(f"buffer_load_dwordx4 v{30+i}, s[{sT}:{sT+3}], s{sTmp} offen lds", "wo%d" % (r // 2))
        if r < 3: a(f"s_add_u32 s{sTmp}, s{sTmp}, {32*1152}")
    vDma, vTr0, vTr1, vTrO = 76, 77, 78, 62
    a(f"""v_bfe_u32 v28, v{lane}, 3, 1
v_lshlrev_b32 v28, 3, v28              ; 8*b1
v_bfe_u32 v29, v{lane}, 2, 1
v_lshl_add_u32 v28, v29, 2, v28        ; + 4*b0
v_bfe_u32 v29, v{lane}, 5, 1
v_lshl_add_u32 v28, v29, 1, v28        ; + 2*b3
v_bfe_u32 v29, v{lane}, 4, 1
v_add_u32 v28, v28, v29                ; + b2
v_lshlrev_b32 v28, 13, v28
v_lshrrev_b32 v29, 5, v{lane}
v_lshlrev_b32 v29, 1, v29
v_and_b32 v39, 3, v{lane}
v_xor_b32 v29, v29, v39
v_lshl_add_u32 v{vDma}, v29, 4, v28""")
    a(f"""v_lshrrev_b32 v28, 2, v15           ; r
v_lshl_add_u32 v28, v16, 3, v28        ; 8gb + r
v_lshlrev_b32 v28, 6, v28
v_and_b32 v29, 1, v16
v_lshlrev_b32 v29, 5, v29
v_and_b32 v39, 3, v15
v_lshlrev_b32 v39, 3, v39
v_add3_u32 v28, v28, v29, v39
v_add_u32 v{vTr0}, s{sLB}, v28
v_xor_b32 v{vTr1}, 32, v{vTr0}""")
    a(f"""v_lshrrev_b32 v28, 2, v15
v_lshrrev_b32 v29, 1, v28
v_lshlrev_b32 v29, 5, v29
v_and_b32 v28, 1, v28
v_add_u32 v29, v29, v28
v_and_b32 v28, 1, v16
v_lshl_add_u32 v29, v28, 4, v29
v_lshrrev_b32 v28, 1, v16
v_lshl_add_u32 v29, v28, 2, v29
v_mul_u32_u24 v29, 288, v29
v_and_b32 v28, 3, v15
v_lshl_add_u32 v29, v28, 3, v29
v_add_u32 v{vTrO}, s{sLB}, v29""")
    WOT = {(t, kb): 14 + 8 * (2 * i + kb) for i, t in enumerate(RES_WO_T) for kb in range(2)}
    def wo_reads(kb):
        for t in range(9):
            dst = TUP[("O", t, kb)] if t not in RES_WO_T else WOT[(t, kb)]
            for kh in range(2):
                for sub in range(2):
                    off = (64 * kb + 8 * kh + 2 * sub) * 288 + t * 32
                    a(f"ds_read_b64_tr_b16 {vr(dst + 4*kh + 2*sub, 2)}, v{vTrO} offset:{off}")
    seq = REG_QKV + RES_QKV
    sM = {"Q": 64, "K": 68, "V": 72}
    for m in "QKV":
        srd(a, sM[m], KA["W" + m.lower()], 576 * 32 * 128 * 2)
    a(f"""s_lshl_b32 s{sTmp}, s{sH}, 8
s_lshl_b32 s{sTmp2}, s{sW}, 6
s_add_u32 s{sTmp}, s{sTmp}, s{sTmp2}""")
    for sl in range(9):
        if sl == 2:
            a(f"s_add_u32 s{76+sl}, s{sTmp}, {8*16*8192}"); continue
        a(f"s_xor_b32 s{sTmp2}, s{sW}, {SLOT_X[sl]}")
        if SLOT_UP[sl]: a(f"s_add_u32 s{sTmp2}, s{sTmp2}, 4")
        a(f"s_lshl_b32 s{sTmp2}, s{sTmp2}, 17")
        a(f"s_add_u32 s{76+sl}, s{sTmp}, s{sTmp2}")
    def dma_block(n):
        m, sl = seq[n]
        blk = n % 9
        for i in range(4):
            a(f"s_add_u32 s{sTmp}, s{76+sl}, {144*i*8192}")
            a(f"s_add_u32 m0, s{sLB}, {blk*4096 + i*1024}")
            vm.op(f"buffer_load_dwordx4 v{vDma}, s[{sM[m]}:{sM[m]+3}], s{sTmp} offen lds", f"b{n}")
    vm.wait("wo0")
    wo_reads(0)
    a("s_waitcnt lgkmcnt(0)")
    for n in range(4): dma_block(n)
    vm.wait("wo1")
    wo_reads(1)
    a("s_waitcnt lgkmcnt(0)")
    for n in range(4, 9): dma_block(n)
    tuple_tmp = [14, 22]
    for n in range(27):
        m, sl = seq[n]
        blk = n % 9
        vm.wait(f"b{n}")
        res = (m, sl) in RES_QKV
        for tau in range(2):
            dst = TUP[(m, sl, tau)] if not res else tuple_tmp[tau]
            for kh in range(2):
                for sub in range(2):
                    a(f"ds_read_b64_tr_b16 {vr(dst + 4*kh + 2*sub, 2)}, v{vTr0 if tau == 0 else vTr1} offset:{blk*4096 + sub*256 + kh*2048}")
        a("s_waitcnt lgkmcnt(0)")
        if n + 9 < 27:
            dma_block(n + 9)
        if n in (18, 19, 20):
            t = RES_WO_T[n - 18]
            for kb in range(2):
                for hf in range(2):
                    a(f"ds_write_b128 v{vWT}, {vr(WOT[(t,kb)] + 4*hf, 4)} offset:{blk*4096 + kb*2048 + hf*1024}")
            if n == 20: a("s_waitcnt lgkmcnt(0)")
        if res:
            for tau in range(2):
                for hf in range(2):
                    a(f"ds_write_b128 v{vWT}, {vr(tuple_tmp[tau] + 4*hf, 4)} offset:{blk*4096 + tau*2048 + hf*1024}")
            a("s_waitcnt lgkmcnt(0)")
    a("s_waitcnt lgkmcnt(0)")

def emit_scalars(a):
    a(f"""
s_lshl_b32 s{sTmp}, s{sW}, 10
s_add_u32 s{sIWB}, s{sTmp}, {IMG2}
s_mul_i32 s{sTmp}, s{sH}, {HS}
s_mul_i32 s{sTmp2}, s{sW}, 2304
s_add_u32 s{sTmp}, s{sTmp}, s{sTmp2}
s_add_u32 s{sPst}, s{sTmp}, {P2 + PTOG}
s_lshr_b32 s{sTmp}, s{sH}, 3
s_lshl_b32 s{sTmp2}, s{sW}, 2
s_add_u32 s{sTmp}, s{sTmp}, s{sTmp2}        ; t
s_mov_b32 s{sRD}, s{sWS}
s_mov_b32 s{sRD+1}, s{sWS+1}
s_cmp_lt_u32 s{sTmp}, 9
s_cselect_b32 s{sRD+2}, {WS_BYTES}, 0
s_mov_b32 s{sRD+3}, 0x00020000
s_min_u32 s{sTmp}, s{sTmp}, 8
s_lshr_b32 s{sTmp2}, s{sH}, 1
s_and_b32 s{sTmp2}, s{sTmp2}, 3             ; w'
s_and_b32 s{sTmp3}, s{sH}, 1
s_lshl_b32 s{sTmp3}, s{sTmp3}, 7            ; half*128
s_lshl_b32 s{sIwrB}, s{sTmp}, 10
s_lshl_b32 s{sPrd}, s{sTmp2}, 8
s_add_u32 s{sIwrB}, s{sIwrB}, s{sPrd}
s_add_u32 s{sIwrB}, s{sIwrB}, s{sTmp3}
s_add_u32 s{sIwrB}, s{sIwrB}, {IMG2}
s_lshl_b32 s{sPrd}, s{sTmp}, 8
s_mul_i32 s{sTmp2}, s{sTmp2}, 2304
s_add_u32 s{sPrd}, s{sPrd}, s{sTmp2}
s_add_u32 s{sPrd}, s{sPrd}, s{sTmp3}
s_add_u32 s{sPrd}, s{sPrd}, {P2 + PTOG}
s_add_u32 s{sPrd+1}, s{sPrd}, {8*HS}
s_add_u32 s{sPrd+2}, s{sPrd}, {16*HS}
s_add_u32 s{sPrd+3}, s{sPrd}, {24*HS}
s_lshl_b32 s{sTmp}, s{sH}, 2
s_add_u32 s{sTmp}, s{sTmp}, s{sW}
s_lshl_b32 s{sTmp2}, s{sTmp}, 11
s_add_u32 s{sKT}, s{sTmp2}, {KT}
s_add_u32 s{sVT}, s{sTmp2}, {VT}
s_lshl_b32 s{sTmp2}, s{sTmp}, 10
s_add_u32 s{sKM}, s{sTmp2}, {KM}
s_add_u32 s{sVM}, s{sTmp2}, {VM}
s_lshl_b32 s{sTmp}, s{sH}, 8
s_add_u32 s{sTmp}, s{sTmp}, {FLAGS}
s_add_u32 s{sFL}, s{sWS}, s{sTmp}
s_addc_u32 s{sFL+1}, s{sWS+1}, 0
s_cmp_eq_u32 s{sW}, 0
s_cselect_b32 s{sFL+2}, 4, 0
s_mov_b32 s{sFL+3}, 0x00020000
s_mov_b32 s{sS}, 0
s_mov_b32 s{sIrst}, s{sIwrB}
""")

def emit_mem0(a):
    srd(a, sT, KA["mem0"], 8 * 576 * 2)
    a(f"""
v_lshrrev_b32 v58, 4, v{vL16}          ; lane
v_and_b32 v59, 15, v58                 ; m
v_lshrrev_b32 v60, 4, v58              ; g
v_lshrrev_b32 v61, 2, v59
v_lshlrev_b32 v61, 1, v61
v_and_b32 v62, 1, v59
v_add_u32 v61, v61, v62                ; rho
v_mul_u32_u24 v61, 1152, v61
v_mul_u32_u24 v60, 288, v60
v_add_u32 v61, v61, v60
v_bfe_u32 v62, v59, 1, 1
v_lshl_add_u32 v61, v62, 4, v61        ; + eta*16
s_lshl_b32 s{sTmp}, s{sW}, 5
s_add_u32 s{sTmp2}, s{sTmp}, 128
s_movk_i32 s{sTmp3}, 256
s_mov_b32 s86, 0x05040100
s_mov_b32 s87, 0x07060302
""")
    for k, so in enumerate((sTmp, sTmp2, sTmp3)):
        a(f"buffer_load_dwordx4 {vr(62+4*k,4)}, v61, s[{sT}:{sT+3}], s{so} offen")
    a("s_waitcnt vmcnt(0)")
    for k in range(3):
        c = 62 + 4 * k
        a(f"v_perm_b32 v{AR[k]}, v{c+2}, v{c}, s86")
        a(f"v_perm_b32 v{AR[k]+1}, v{c+2}, v{c}, s87")
        a(f"v_perm_b32 v{AR[k]+2}, v{c+3}, v{c+1}, s86")
        a(f"v_perm_b32 v{AR[k]+3}, v{c+3}, v{c+1}, s87")

def stage_reads(blk, half):
    return [f"ds_read_b128 {vr(ST[half]+4*hf,4)}, v{vWT} offset:{blk*4096 + half*2048 + hf*1024}" for hf in range(2)]

def bounded(a, lab_retry):
    a(f"s_add_u32 s{sPoll}, s{sPoll}, 1")
    a(f"s_cmp_lt_u32 s{sPoll}, {POLL_MAX}")
    a(f"s_cbranch_scc1 {lab_retry}")
    a("s_branch L_fail")

def qkv_ready(a, first=False, tail=None):
    if not FUSED: return
    WS = f"s[{sWS}:{sWS+3}]"
    l1, l2, l3 = a.uid("L_qr"), a.uid("L_qr"), a.uid("L_qr")
    if first: a(f"s_mov_b32 s{sTmp}, 0")
    else:
        a(f"s_add_u32 s{sTmp}, s{sS}, 1")
        a(f"s_min_u32 s{sTmp}, s{sTmp}, 63")
    a(f"s_lshr_b32 s{sNd}, s{sTmp}, 1")
    a(f"s_bitcmp1_b32 s{sTmp}, 0")
    a(f"s_cselect_b32 s{sTmp2}, s{sRdy1}, s{sRdy0}")
    a(f"s_cmp_gt_u32 s{sTmp2}, s{sNd}")
    a(f"s_cbranch_scc0 {l1}")
    a.label(l2)
    def ool(a):
        a.label(l1)
        a(f"s_and_b32 s{sTmp}, s{sTmp}, 1")
        a(f"s_mul_i32 s{sTmp3}, s{sTmp}, {48*256}")
        a(f"s_add_u32 s{sTmp3}, s{sTmp3}, s{sQF0}")
        a(f"s_mov_b32 s{sPoll}, 0")
        a.label(l3)
        a(f"buffer_load_dword v{SP+1}, off, {WS}, s{sTmp3} sc1")
        a(f"s_add_u32 s{sTmp2}, s{sTmp3}, 4096")
        a(f"buffer_load_dword v{SP+2}, off, {WS}, s{sTmp2} sc1")
        a("s_waitcnt vmcnt(0)")
        a(f"v_min_u32 v{SP+1}, v{SP+1}, v{SP+2}")
        a(f"v_readfirstlane_b32 s{sTmp2}, v{SP+1}")
        a(f"s_cmp_eq_u32 s{sTmp}, 0")
        a(f"s_cselect_b32 s{sRdy0}, s{sTmp2}, s{sRdy0}")
        a(f"s_cselect_b32 s{sRdy1}, s{sRdy1}, s{sTmp2}")
        a(f"s_cmp_gt_u32 s{sTmp2}, s{sNd}")
        a(f"s_cbranch_scc1 {l2}")
        bounded(a, l3)
    tail.append(ool)

def interleave(a, mains, shadows):
    for i, m in enumerate(mains):
        m()
        lst = shadows.get(i, [])
        key = lambda s: 0 if callable(s) else (0 if s.startswith(("ds_", "buffer_", "s_barrier")) else (2 if s.startswith("v_") else 1))
        for s in sorted(lst, key=key):
            if callable(s): s()
            else: a(s)

def emit_loop(a, sc, tm, sfx):
    WS = f"s[{sWS}:{sWS+3}]"; RD = f"s[{sRD}:{sRD+3}]"; FL = f"s[{sFL}:{sFL+3}]"
    L = lambda n: f"L_{n}_{sfx}"
    lg = Cnt(a, "lgkmcnt"); vm = Cnt(a, "vmcnt")
    tail = []
    XA = {1: T0, 2: T1, 3: vDum}
    kstr = 0 if "kt0" in X else 32*4*2048
    def gloads():
        a(f"buffer_load_dwordx4 {vr(AR[0],4)}, v{vL16}, {WS}, s{sIW} offen sc1")
        a(f"buffer_load_dwordx4 {vr(AR[1],4)}, v{vL16}, {WS}, s{sIW4} offen sc1")
        a(f"buffer_load_dwordx4 {vr(AR[2],4)}, v{vL16}, {WS}, s{sI8} offen sc1")
    def gcheck():
        a(f"""v_max3_u32 v26, v14, v15, v16
v_max3_u32 v27, v17, v18, v19
v_max3_u32 v26, v26, v20, v21
v_max3_u32 v27, v27, v22, v23
v_max3_u32 v26, v26, v24, v25
v_max_u32 v26, v26, v27
v_cmp_eq_u32 vcc, -1, v26""")
    a.label(L("got"))
    stamp(a, 1, tm)
    acc = {"Q": (Q0, Q1), "K": (K0, K1), "V": (V0, V1)}
    areg = {0: AR[0], 1: AR[1], 2: AR[2], 3: AR[3], 4: AR[4], 5: AR[0], 6: AR[1], 7: AR[2], 8: AR[3]}
    order = [(m, s) for s in (0, 1, 2) for m in "QKV"] + [(m, s) for s in (3, 4, 5) for m in "QK"] \
        + [("Q", s) for s in (6, 7, 8)] + [("K", s) for s in (6, 7, 8)]
    steps = [(m, s, tau) for (m, s) in order for tau in range(2)]
    assert len(steps) == 42
    def mk(m, s, tau, ar=None):
        def f():
            r = ar if ar is not None else areg[s]
            if s >= 3 and ar is None and lg.has(f"r{s}"): lg.wait(f"r{s}")
            if (m, s) in RES_QKV:
                if lg.has(f"st{tau}"): lg.wait(f"st{tau}")
                smf(a, acc[m][tau], r, ST[tau])
            else:
                smf(a, acc[m][tau], r, TUP[(m, s, tau)])
        return f
    def lgop(text, tag): return lambda: lg.op(text, tag)
    def vmop(text, tag): return lambda: vm.op(text, tag)
    def stg(b, half): return [lgop(t, f"st{half}") for t in stage_reads(RESBLK[b], half)]
    def ring(s): return lgop(f"ds_read_b128 {vr(areg[s],4)}, v{XA[SLOT_X[s]]} offset:{4096*SLOT_UP[s]}", f"r{s}")
    sh = {i: [] for i in range(60)}
    sh[0] += [lgop(f"ds_write_b128 v{vIMGw}, {vr(AR[0],4)}", "iw")]
    sh[1] += [lgop(f"ds_write_b128 v{vIMGw}, {vr(AR[1],4)} offset:4096", "iw")]
    s0, s1 = stg(("K", 1), 0), stg(("K", 1), 1)
    sh[2] += [s0[0]]; sh[3] += [s0[1]]; sh[4] += [s1[0]]; sh[5] += [s1[1]]
    sh[7] += [lambda: lg.wait("iw"), "s_barrier", ring(3)]
    sh[8] += [ring(4)]
    s0, s1 = stg(("V", 2), 0), stg(("V", 2), 1)
    sh[9] += [s0[0]]; sh[10] += [s0[1]]; sh[11] += [s1[0]]; sh[12] += [s1[1]]
    sh[13] += [ring(5)]; sh[14] += [ring(6)]
    s0, s1 = stg(("K", 4), 0), stg(("K", 4), 1)
    sh[17] += [s0[0]]; sh[18] += [s0[1], ring(7)]; sh[19] += [s1[0]]; sh[20] += [s1[1]]
    sh[22] += [ring(8)]
    s0, s1 = stg(("Q", 7), 0), stg(("Q", 7), 1)
    sh[25] += [s0[0]]; sh[26] += [s0[1]]; sh[27] += [s1[0]]; sh[28] += [s1[1]]
    s0, s1 = stg(("K", 8), 0), stg(("K", 8), 1)
    sh[33] += [s0[0]]; sh[34] += [s0[1]]; sh[35] += [s1[0]]; sh[36] += [s1[1]]
    sh[8] += [f"s_xor_b32 s{sPrd}, s{sPrd}, {PTOG}", f"s_xor_b32 s{sPrd+1}, s{sPrd+1}, {PTOG}"]
    sh[9] += [f"s_xor_b32 s{sPrd+2}, s{sPrd+2}, {PTOG}", f"s_xor_b32 s{sPrd+3}, s{sPrd+3}, {PTOG}"]
    sh[10] += [f"s_xor_b32 s{sPst}, s{sPst}, {PTOG}", f"s_add_u32 s{sTmp}, s{sS}, 1"]
    sh[11] += [f"s_and_b32 s{sTmp}, s{sTmp}, 3", f"s_lshl_b32 s{sTmp}, s{sTmp}, 14"]
    sh[12] += [f"s_add_u32 s{sIwr}, s{sIwrB}, s{sTmp}", f"s_add_u32 s{sIW}, s{sIWB}, s{sTmp}"]
    sh[13] += [f"s_add_u32 s{sIW4}, s{sIW}, 4096", f"s_add_u32 s{sI8}, s{sTmp}, {IMG2 + 8192}"]
    sh[14] += [f"s_and_b32 s{sTmp}, s{sS}, 3", f"s_lshl_b32 s{sTmp}, s{sTmp}, 14"]
    sh[15] += [f"s_add_u32 s{sIrst}, s{sIwrB}, s{sTmp}"]
    sh[25] += [vmop(f"buffer_load_dwordx4 {vr(AR[4],4)}, v{vL16}, {WS}, s{sKT} offen", "kt0")]
    sh[29] += [vmop(f"buffer_load_dwordx4 {vr(AR[0],4)}, v{vL16}, {WS}, s{sKT} offen offset:1024", "kt1")]
    if "nopf" not in X:
        if FUSED: sh[0] += [lambda: qkv_ready(a, tail=tail)]
        sh[0] += [f"s_add_u32 s{sTmp2}, s{sKT}, {kstr}"]
        sh[1] += [vmop(f"buffer_load_dword v{SP}, v{vPF}, {WS}, s{sTmp2} offen", "pf")]
    C = lambda d, x, y: f"v_cvt_pk_bf16_f32 v{d}, v{x}, v{y}"
    sh[37] += [C(Q0, Q0, Q0 + 1)]; sh[38] += [C(Q0 + 1, Q0 + 2, Q0 + 3)]
    sh[39] += [C(Q0 + 2, Q1, Q1 + 1)]; sh[40] += [C(Q0 + 3, Q1 + 2, Q1 + 3)]
    for x in X:
        if x.startswith("a9_"): sh[int(x[3:])].append(lambda: stamp(a, 9, tm))
    interleave(a, [mk(*st) for st in steps], sh)
    stamp(a, 2, tm)
    def sel(d, src): a(f"v_mfma_f32_16x16x16_bf16 {vr(d,4)}, {vr(src,2)}, {vr(Sel,2)}, 0")
    V = lambda s, tau, ar: mk("V", s, tau, ar)()
    def reread(s, dst): lg.op(f"ds_read_b128 {vr(dst,4)}, v{XA[SLOT_X[s]]} offset:{4096*SLOT_UP[s]}", f"v{s}")
    sel(Q1, Q0 + 2); sel(Q0, Q0)
    V(6, 0, AR[1])
    cvt(a, K0, K0, K0 + 1); cvt(a, K0 + 1, K0 + 2, K0 + 3)
    V(6, 1, AR[1]); reread(3, AR[1])
    cvt(a, K0 + 2, K1, K1 + 1); cvt(a, K0 + 3, K1 + 2, K1 + 3)
    cvt(a, Q1 + 3, Q1 + 2, Q1 + 3); cvt(a, Q1 + 2, Q1, Q1 + 1)
    sel(K1, K0 + 2); sel(K0, K0)
    cvt(a, Q1, Q0, Q0 + 1); cvt(a, Q1 + 1, Q0 + 2, Q0 + 3)
    vm.wait("kt1")
    a(f"v_mfma_f32_16x16x32_bf16 {vr(Q0,4)}, {vr(AR[4],4)}, {vr(Q1,4)}, 0")
    a(f"v_mfma_f32_16x16x32_bf16 {vr(ST[0],4)}, {vr(AR[0],4)}, {vr(Q1,4)}, 0")
    cvt(a, K1 + 3, K1 + 2, K1 + 3); cvt(a, K1 + 2, K1, K1 + 1)
    cvt(a, K1, K0, K0 + 1); cvt(a, K1 + 1, K0 + 2, K0 + 3)
    vm.op(f"buffer_load_dwordx4 {vr(K0,4)}, v{vL16}, {WS}, s{sVT} offen offset:1024", "vt")
    a(f"v_mfma_f32_16x16x32_bf16 {vr(ST[0]+4,4)}, {vr(K1,4)}, {vr(Q1,4)}, 0")
    V(7, 0, AR[2])
    for i in range(4):
        a(f"v_cndmask_b32 v{AR[4]+i}, v{Q0+i}, v{ST[0]+i}, s[{mB1}:{mB1+1}]")
    lg.op(f"ds_write_b128 v{vIMGw}, {vr(AR[4],4)} offset:{LSC}", "xw")
    vm.op(f"buffer_load_dwordx4 {vr(Q0,4)}, v{vL16}, {WS}, s{sVT} offen", "vt")
    lg.op(f"ds_write_b64 v{vMSw}, v[{ST[0]+4}:{ST[0]+5}]", "xw")
    V(7, 1, AR[2]); reread(4, AR[2])
    vm.op(f"buffer_store_dwordx4 {vr(K1,4)}, v{vL16}, {WS}, s{sKM} offen sc1", "km")
    a(f"v_mov_b32 v{SP}, s{sS}")
    V(8, 0, AR[3])
    if "noflag" not in X:
        vm.op(f"buffer_store_dword v{SP}, v{vL16}, {FL}, 0 offen sc1", "fl")
    a(f"v_and_b32 v{Q1}, -32, v{vMSw}")
    V(8, 1, AR[3]); reread(5, AR[3])
    lg.wait("v3")
    V(3, 0, AR[1])
    stamp(a, 3, tm)
    lg.wait("xw")
    a("s_barrier")
    lg.op(f"ds_read_b128 {vr(ST[1],4)}, v{XA[1]} offset:{LSC}", "x1")
    lg.op(f"ds_read_b128 {vr(ST[1]+4,4)}, v{XA[2]} offset:{LSC}", "x2")
    lg.op(f"ds_read_b128 {vr(ST[0],4)}, v{XA[3]} offset:{LSC}", "x3")
    lg.op(f"ds_read_b128 {vr(ST[0]+4,4)}, v{Q1}", "m0")
    lg.op(f"ds_read_b128 {vr(SP,4)}, v{Q1} offset:16", "m1")
    V(3, 1, AR[1])
    if "nopf" not in X:
        a(f"s_add_u32 s{sTmp2}, s{sVT}, {kstr}")
        vm.op(f"buffer_load_dword v{vDum}, v{vPF}, {WS}, s{sTmp2} offen", "pf")
    lg.wait("v4")
    V(4, 0, AR[2]); V(4, 1, AR[2])
    lg.wait("v5")
    V(5, 0, AR[3]); V(5, 1, AR[3])
    zero2(a, AR[0], AR[0] + 4, f"s[{sOnes}:{sOnes+1}]")
    a(f"v_mov_b64 v[{K1}:{K1+1}], s[{sOne0}:{sOne0+1}]")
    S, M = ST[1], ST[0] + 4
    pka = lambda d, x, y: a(f"v_pk_add_f32 v[{d}:{d+1}], v[{x}:{x+1}], v[{y}:{y+1}]")
    lg.wait("x1")
    pka(S, AR[4], S); pka(S + 2, AR[4] + 2, S + 2)
    lg.wait("x3")
    pka(S + 4, S + 4, ST[0]); pka(S + 6, S + 6, ST[0] + 2)
    lg.wait("m1")
    pka(M, M, M + 2); pka(SP, SP, SP + 2)
    pka(S, S, S + 4); pka(S + 2, S + 2, S + 6)
    pka(M, M, SP)
    a(f"""v_max3_f32 v{T0}, v{S}, v{S+1}, v{S+2}
v_max3_f32 v{T1}, v{S+3}, v{M}, v{M+1}
v_max_f32 v{T0}, v{T0}, v{T1}
v_max_f32_dpp v{T0}, v{T0}, v{T0} quad_perm:[2,3,0,1] row_mask:0xf bank_mask:0xf""")
    cvt(a, V0, V0, V0 + 1)
    a(f"v_mov_b32 v{T1}, v{T0}")
    cvt(a, V0 + 1, V0 + 2, V0 + 3)
    cvt(a, V0 + 2, V1, V1 + 1)
    a(f"v_permlane16_swap_b32 v{T0}, v{T1}")
    cvt(a, V0 + 3, V1 + 2, V1 + 3)
    a(f"v_max_f32 v{T0}, v{T0}, v{T1}")
    a(f"v_mov_b32 v{T1}, v{T0}")
    vm.op(f"buffer_store_dwordx4 {vr(V0,4)}, v{vL16}, {WS}, s{sVM} offen sc1", "vmst")
    a(f"s_cmp_eq_u32 s{sS}, {LAST}")
    a(f"v_permlane32_swap_b32 v{T0}, v{T1}")
    a(f"v_max_f32 v{T0}, v{T0}, v{T1}")
    a(f"v_mul_f32 v{T0}, s{sC}, v{T0}")
    for r in (S, S + 2, M):
        a(f"v_pk_fma_f32 v[{r}:{r+1}], v[{r}:{r+1}], s[{sC}:{sC+1}], v[{T0}:{T0+1}] op_sel_hi:[1,1,0] neg_lo:[0,0,1] neg_hi:[0,0,1]")
    for r in (S, S + 1, S + 2, S + 3, M, M + 1): a(f"v_exp_f32 v{r}, v{r}")
    cvt(a, S, S, S + 1); cvt(a, S + 1, S + 2, S + 3); cvt(a, M, M, M + 1)
    a(f"v_mov_b32_dpp v{S+2}, v{S} quad_perm:[2,3,0,1] row_mask:0xf bank_mask:0xf")
    a(f"v_mov_b32_dpp v{S+3}, v{S+1} quad_perm:[2,3,0,1] row_mask:0xf bank_mask:0xf")
    a(f"v_mov_b32 v{M+1}, v{M}")
    stamp(a, 4, tm)
    a(f"s_cbranch_scc1 {L('done')}")
    vm.wait("vt")
    a(f"""v_mfma_f32_16x16x32_bf16 {vr(AR[1],4)}, {vr(AR[0],4)}, {vr(S,4)}, 0
v_mfma_f32_16x16x32_bf16 {vr(AR[2],4)}, {vr(Q0,4)}, {vr(S,4)}, 0
v_mfma_f32_16x16x32_bf16 {vr(AR[3],4)}, {vr(K0,4)}, {vr(S,4)}, 0
v_mfma_f32_16x16x16_bf16 {vr(AR[1],4)}, {vr(K1,2)}, {vr(M,2)}, {vr(AR[1],4)}
v_mfma_f32_16x16x16_bf16 {vr(AR[2],4)}, {vr(V0,2)}, {vr(M,2)}, {vr(AR[2],4)}
v_mfma_f32_16x16x16_bf16 {vr(AR[3],4)}, {vr(V0+2,2)}, {vr(M,2)}, {vr(AR[3],4)}""")
    a(f"v_rcp_f32 v{T0}, v{AR[1]}")
    for r in (AR[2], AR[2] + 2, AR[3], AR[3] + 2):
        a(f"v_pk_mul_f32 v[{r}:{r+1}], v[{r}:{r+1}], v[{T0}:{T0+1}] op_sel_hi:[1,0]")
    cvt(a, V1, AR[2], AR[2] + 1); cvt(a, V1 + 1, AR[2] + 2, AR[2] + 3)
    cvt(a, V1 + 2, AR[3], AR[3] + 1); cvt(a, V1 + 3, AR[3] + 2, AR[3] + 3)
    lg.reset()
    a(f"s_andn2_b64 exec, exec, s[{mB1}:{mB1+1}]")
    lg.op(f"ds_write_b128 v{vOBw}, {vr(V1,4)}", "ow")
    a("s_mov_b64 exec, -1")
    for t in stage_reads(RESBLK[("O", 0)], 0): lg.op(t, "st0")
    for t in stage_reads(RESBLK[("O", 0)], 1): lg.op(t, "st1")
    zero2(a, 14, 34)
    lg.wait("ow")
    a("s_barrier")
    lg.op(f"ds_read_b128 {vr(V0,4)}, v{vL16} offset:{LOB}", "a0")
    lg.op(f"ds_read_b128 {vr(V1,4)}, v{vL16} offset:{LOB+1024}", "a1")
    stamp(a, 5, tm)
    zero2(a, 34, 50)
    a(f"""s_add_u32 s{sKT}, s{sKT}, {kstr}
s_add_u32 s{sVT}, s{sVT}, {kstr}
s_add_u32 s{sKM}, s{sKM}, {32*4*1024}
s_add_u32 s{sVM}, s{sVM}, {32*4*1024}""")
    nxt = {0: 4, 4: 8}
    def wo_main(t, kb):
        def f():
            if t == 0: lg.wait("a0" if kb == 0 else "a1")
            d = 14 + 4 * t
            if t in RES_WO_T:
                if lg.has(f"st{kb}"): lg.wait(f"st{kb}")
                smf(a, d, V0 + 4 * kb, ST[kb])
            else:
                smf(a, d, V0 + 4 * kb, TUP[("O", t, kb)])
        return f
    def epi(t):
        d = 14 + 4 * t
        return [f"v_add_f32 v{d}, v{d}, v{d+2}", f"v_add_f32 v{d+1}, v{d+1}, v{d+3}", C(d, d, d + 1),
                vmop(f"buffer_store_dword v{d}, v{vPst}, {WS}, s{sPst} offen offset:{t*256}{sc}", "pst")]
    sh = {i: [] for i in range(20)}
    for t in range(8):
        e = epi(t)
        if t < 7: sh[2 * t + 3] += e[:2]; sh[2 * t + 4] += e[2:3]; sh[2 * t + 5] += e[3:]
        else: sh[17] += e[:2]
    for t, n in (nxt.items() if "wo_nolds" not in X else []):
        for kb in range(2):
            r = [lgop(x, f"st{kb}") for x in stage_reads(RESBLK[("O", n)], kb)]
            sh[2 * t + kb + 1] += [r[0]]; sh[2 * t + kb + 2] += [r[1]]
    for x in X:
        if x.startswith("w9_"): sh[int(x[3:])].append(lambda: stamp(a, 9, tm))
    if "w9pre" in X: stamp(a, 9, tm)
    interleave(a, [wo_main(t, kb) for t in range(9) for kb in range(2)], sh)
    e7, e8 = epi(7), epi(8)
    a(e7[2]); a(e8[0]); a(e8[1]); e7[3](); a(e8[2]); e8[3]()
    stamp(a, 6, tm)
    lg.reset()
    RB = 58
    def q0_stage():
        for t in stage_reads(RESBLK[("Q", 0)], 0): lg.op(t, "st0")
        for t in stage_reads(RESBLK[("Q", 0)], 1): lg.op(t, "st1")
    def prep_regs():
        zero2(a, 34, 58)
        a(f"v_xor_b32 v{T1}, {2 << 10}, v{vIMGw}")
        a(f"s_add_u32 s{sS}, s{sS}, 1")
    prep_regs()
    a(f"s_cmp_eq_u32 s{sRD+2}, 0")
    a(f"s_cbranch_scc1 {L('nu')}")
    a(f"s_mov_b32 s{sPoll}, 0")
    for p in range(4):
        a(f"v_cndmask_b32 v{SP+p}, 0, v{vOnePos}, s[{mR+2*p}:{mR+2*p+1}]")
    def rloads(base=14):
        for ld in range(4):
            vm.op(f"buffer_load_dwordx4 {vr(base+4*ld,4)}, v{vRld}, {RD}, s{sPrd+ld} offen sc1", f"rl{base}_{ld}")
    def reduce_body(base=14):
        for ld in range(4):
            vm.wait(f"rl{base}_{ld}")
            a(f"v_mfma_f32_16x16x32_bf16 v[30:33], {vr(base+4*ld,4)}, {vr(SP,4)}, {'0' if ld == 0 else 'v[30:33]'}")
            b = base + 4 * ld
            if ld == 0:
                a(f"v_max3_u32 v{T0}, v{b}, v{b+1}, v{b+2}")
                a(f"v_max_u32 v{T0}, v{T0}, v{b+3}")
            else:
                a(f"v_max3_u32 v{T0}, v{T0}, v{b}, v{b+1}")
                a(f"v_max3_u32 v{T0}, v{T0}, v{b+2}, v{b+3}")
        a(f"v_cmp_eq_u32 vcc, -1, v{T0}")
    rloads()
    if "rpipe" in X:
        rloads(RB)
        a.label(L("rloop"))
        reduce_body(14)
        a(f"s_cbranch_vccz {L('rgot')}")
        if tm: a("s_add_u32 s98, s98, 1")
        rloads(14)
        reduce_body(RB)
        a(f"s_cbranch_vccz {L('rgot')}")
        if tm: a("s_add_u32 s98, s98, 1")
        rloads(RB)
        bounded(a, L("rloop"))
    else:
        reduce_body()
        if "nosync" not in X: a(f"s_cbranch_vccnz {L('rretry')}")
    a.label(L("rgot"))
    stamp(a, 7, tm)
    a("""v_add_f32 v30, v30, v32
v_add_f32 v31, v31, v33""")
    zero2(a, SP, SP + 4, "-1")
    a("v_cvt_pk_bf16_f32 v30, v30, v31")
    a(f"v_xor_b32 v{T0}, {1 << 10}, v{vIMGw}")
    a(f"buffer_store_dword v30, v{vIst}, {RD}, s{sIwr} offen{sc}")
    for ld in range(4):
        a(f"buffer_store_dwordx4 {vr(SP,4)}, v{vRld}, {RD}, s{sPrd+ld} offen{sc}")
    a(f"buffer_store_dword v{SP}, v{vIst}, {RD}, s{sIrst} offen{sc}")
    if "rpipe" in X: a("s_waitcnt vmcnt(6)")
    a.label(L('gprep'))
    a(f"s_mov_b32 s{sPoll}, 0")
    if tm:
        lab = a.uid("L_td")
        a(f"s_cmp_lg_u32 s{sS}, 42")
        a(f"s_cbranch_scc1 {lab}")
        a("s_waitcnt lgkmcnt(0)")
        a(f"s_lshl_b32 s{sTmp}, s{sH}, 2")
        a(f"s_add_u32 s{sTmp}, s{sTmp}, s{sW}")
        a(f"s_lshl_b32 s{sTmp}, s{sTmp}, 6")
        a(f"s_add_u32 s{sTmp}, s{sTmp}, {DBG}")
        for k in range(NSTAMP):
            a(f"v_mov_b32 v26, s{sTS+2*k}")
            a(f"buffer_store_dword v26, off, {WS}, s{sTmp} offset:{4*k}")
        a("s_waitcnt vmcnt(0)")
        a.label(lab)
    stamp(a, 8, tm)
    if "nob4" not in X: a("s_barrier")
    gloads()
    stamp(a, 0, tm)
    q0_stage()
    a(f"v_xor_b32 v{vDum}, {3 << 10}, v{vIMGw}")
    a("s_waitcnt vmcnt(0) lgkmcnt(0)")
    gcheck()
    if "nosync" in X: a(f"s_branch {L('got')}")
    else: a(f"s_cbranch_vccz {L('got')}")
    a.label(L("gretry"))
    if tm: a("s_add_u32 s99, s99, 1")
    gloads()
    a(f"s_add_u32 s{sPoll}, s{sPoll}, 1")
    a(f"s_cmp_lt_u32 s{sPoll}, {POLL_MAX}")
    a("s_cbranch_scc0 L_fail")
    a("s_waitcnt vmcnt(0)")
    gcheck()
    a(f"s_cbranch_vccz {L('got')}")
    a(f"s_branch {L('gretry')}")
    a.label(L("nu"))
    a(f"v_xor_b32 v{T0}, {1 << 10}, v{vIMGw}")
    stamp(a, 7, tm)
    a(f"s_branch {L('gprep')}")
    if "rpipe" not in X:
        a.label(L("rretry"))
        if tm: a("s_add_u32 s98, s98, 1")
        vm.reset()
        rloads()
        a(f"s_add_u32 s{sPoll}, s{sPoll}, 1")
        a(f"s_cmp_lt_u32 s{sPoll}, {POLL_MAX}")
        a("s_cbranch_scc0 L_fail")
        reduce_body()
        a(f"s_cbranch_vccz {L('rgot')}")
        a(f"s_branch {L('rretry')}")
    for f in tail: f(a)
    a.label(L("done"))
    if tm:
        a("s_memtime s[86:87]")
        a("s_waitcnt lgkmcnt(0)")
        a(f"s_sub_u32 s86, s86, s84")
        a(f"s_lshl_b32 s{sTmp}, s{sH}, 2")
        a(f"s_add_u32 s{sTmp}, s{sTmp}, s{sW}")
        a(f"s_lshl_b32 s{sTmp}, s{sTmp}, 6")
        a(f"s_add_u32 s{sTmp}, s{sTmp}, {DBG}")
        a(f"v_mov_b32 v{T0}, s86")
        a(f"buffer_store_dword v{T0}, off, {WS}, s{sTmp} offset:48")
        a(f"v_mov_b32 v{T0}, s98")
        a(f"buffer_store_dword v{T0}, off, {WS}, s{sTmp} offset:56")
        a(f"v_mov_b32 v{T0}, s99")
        a(f"buffer_store_dword v{T0}, off, {WS}, s{sTmp} offset:60")
        a(f"s_sub_u32 s86, s84, s88")
        a(f"v_mov_b32 v{T0}, s86")
        a(f"buffer_store_dword v{T0}, off, {WS}, s{sTmp} offset:52")
    a("s_waitcnt vmcnt(0)")
    a("s_barrier")
    a(f"v_mov_b32 v{T0}, 64")
    a(f"buffer_store_dword v{T0}, v{vL16}, {FL}, 0 offen sc1")
    a("s_waitcnt vmcnt(0)")
    a("s_branch L_exit")

def emit_chain(a, tm=False, fused=False):
    global FUSED
    FUSED = fused
    a.label("L_chain")
    if tm: a("s_memtime s[88:89]\ns_mov_b32 s98, 0\ns_mov_b32 s99, 0")
    a(f"s_mov_b32 s{sH}, s{sRole}")
    emit_init(a)
    a(f"""s_waitcnt vmcnt(0)
s_barrier
s_cmp_lg_u32 s{sW}, 0
s_cbranch_scc1 L_cb_wait
s_mov_b64 exec, 1
v_mov_b32 v58, 1
buffer_atomic_add v58, off, s[{sDBG}:{sDBG+3}], 0 offset:{4*D_CHB} sc1
s_mov_b64 exec, -1
L_cb_wait:""")
    emit_mem0(a)
    for half in range(2):
        for t in stage_reads(RESBLK[("Q", 0)], half): a(t)
    zero2(a, 34, 58)
    zero2(a, SP, SP + 4, "-1")
    a(f"""s_mov_b32 s{sPoll}, 0
L_cb_poll:
buffer_load_dwordx4 v[26:29], off, s[{sDBG}:{sDBG+3}], 0 sc1
buffer_load_dword v30, off, s[{sDBG}:{sDBG+3}], 0 offset:{4*D_LN} sc1
s_waitcnt vmcnt(0)
v_readfirstlane_b32 s{sTmp}, v{26+D_CHB}
v_readfirstlane_b32 s{sTmp2}, v{26+D_OFFX}
v_readfirstlane_b32 s{sTmp3}, v30""")
    if fused:
        a(f"s_cmp_lt_u32 s{sTmp3}, 64")
        a(f"s_cselect_b32 s{sTmp}, 0, s{sTmp}")
    a(f"s_cmp_ge_u32 s{sTmp}, 32")
    a("s_cbranch_scc1 L_cb_ok")
    bounded(a, "L_cb_poll")
    a.label("L_cb_ok")
    a(f"s_mov_b32 s{sU}, s{sTmp2}")
    if fused:
        a(f"""s_lshr_b32 s{sQF0}, s{sH}, 1
s_add_u32 s{sQF0}, s{sQF0}, 32
s_lshl_b32 s{sQF0}, s{sQF0}, 8
s_add_u32 s{sQF0}, s{sQF0}, {FLAGS}
s_mov_b32 s{sRdy0}, 0
s_mov_b32 s{sRdy1}, 0""")
        tail = []
        qkv_ready(a, first=True, tail=tail)
        lab = a.uid("L_skip")
        a(f"s_branch {lab}")
        for f in tail: f(a)
        a.label(lab)
    for x, r in ((1, T0), (2, T1), (3, vDum)): a(f"v_xor_b32 v{r}, {x << 10}, v{vIMGw}")
    a("s_waitcnt lgkmcnt(0)")
    if tm: a("s_memtime s[84:85]")
    a(f"s_cmp_lg_u32 s{sU}, 0")
    a("s_cbranch_scc1 L_got_s")
    a("s_branch L_got_f")
    emit_loop(a, "", tm, "f")
    emit_loop(a, " sc1", tm, "s")
```

```python
import sys
sys.path.insert(0, 'gen')
from asm import *
from layout import *
from common import *
import ln, qkv, ffn, follow, final
import os
if os.environ.get("CHAIN") == "1":
    import chain
else:
    import chain2 as chain

D_LN = 32
FL_CH, FL_QK, FL_FO, FL_FF = 0, 32, 128, 160
POLL_MAX = 400000
WS = f"s[{sWS}:{sWS+3}]"
DBGS = f"s[{sDBG}:{sDBG+3}]"
sP = 94
sQ, sQ2 = 92, 93

def bounded(a, retry):
    a(f"s_add_u32 s{sP}, s{sP}, 1")
    a(f"s_cmp_lt_u32 s{sP}, {POLL_MAX}")
    a(f"s_cbranch_scc1 {retry}")
    a("s_branch L_fail")

def wait_ln(a, vt):
    l1, l2 = a.uid("L_wl"), a.uid("L_wl")
    a(f"s_cmp_lg_u32 s{sW}, 0")
    a(f"s_cbranch_scc1 {l2}")
    a(f"s_mov_b32 s{sP}, 0")
    a.label(l1)
    a(f"buffer_load_dword v{vt}, off, {DBGS}, 0 offset:{4*D_LN} sc1")
    a("s_waitcnt vmcnt(0)")
    a(f"v_readfirstlane_b32 s{sQ}, v{vt}")
    a(f"s_cmp_ge_u32 s{sQ}, 64")
    a(f"s_cbranch_scc1 {l2}")
    bounded(a, l1)
    a.label(l2)
    a("s_barrier")

def flag_store(a, vt, sval, soff, wave=0):
    l = a.uid("L_fs")
    a(f"s_cmp_lg_u32 s{sW}, {wave}")
    a(f"s_cbranch_scc1 {l}")
    a(f"v_mov_b32 v{vt}, {sval}")
    a("s_mov_b64 exec, 1")
    a(f"buffer_store_dword v{vt}, off, {WS}, s{soff} sc1")
    a("s_mov_b64 exec, -1")
    a.label(l)

def emit_ln_role(a, sSeg):
    ln.emit_ln(a, sSeg)
    l = a.uid("L_zf")
    a(f"s_cmp_lg_u32 s{sW}, 0")
    a(f"s_cbranch_scc1 {l}")
    a(f"s_lshl_b32 s{sQ}, s{sSeg}, 10")
    a(f"s_add_u32 s{sQ}, s{sQ}, {FLAGS}")
    a("v_mov_b32 v8, 0\nv_mov_b32 v9, 0\nv_mov_b32 v10, 0\nv_mov_b32 v11, 0")
    a(f"buffer_store_dwordx4 v[8:11], v6, {WS}, s{sQ} offen sc1")
    a("s_waitcnt vmcnt(0)")
    a.label(l)
    a("s_barrier")
    l = a.uid("L_lna")
    a(f"s_cmp_lg_u32 s{sW}, 0")
    a(f"s_cbranch_scc1 {l}")
    a("s_mov_b64 exec, 1")
    a("v_mov_b32 v8, 1")
    a(f"buffer_atomic_add v8, off, {DBGS}, 0 offset:{4*D_LN} sc1")
    a("s_mov_b64 exec, -1")
    a.label(l)

sQF = 95
def qkv_hooks():
    def wait_xn(a):
        a(f"s_add_u32 s{sQF}, s96, {FL_QK}")
        a(f"s_lshl_b32 s{sQF}, s{sQF}, 8")
        a(f"s_add_u32 s{sQF}, s{sQF}, {FLAGS}")
        wait_ln(a, qkv.vTmp)
    def sig(a):
        a(f"s_sub_u32 s{sQ}, s{qkv.sSeg}, 1")
        a(f"s_max_i32 s{sQ}, s{sQ}, 0")
        flag_store(a, qkv.vTmp, f"s{sQ}", sQF)
    def fin(a):
        a("s_barrier")
        flag_store(a, qkv.vTmp, "32", sQF)
    return dict(wait_xn=wait_xn, sig=sig, fin=fin)

def ffn_hooks():
    def wait_xn(a):
        a(f"s_add_u32 s{sQF}, s96, {FL_FF}")
        a(f"s_lshl_b32 s{sQF}, s{sQF}, 8")
        a(f"s_add_u32 s{sQF}, s{sQF}, {FLAGS}")
        wait_ln(a, 16)
    def fin(a):
        a("s_barrier")
        flag_store(a, 16, "1", sQF)
    return dict(wait_xn=wait_xn, fin=fin)

vFT, vFM, vF0 = 5, 6, 38
sKT_, sKM_ = 90, 91
def follow_hooks():
    F = follow
    def wait_tok(a, which):
        if which == 0:
            a(f"s_add_u32 s{sQF}, s96, {FL_FO}")
            a(f"s_lshl_b32 s{sQF}, s{sQF}, 8")
            a(f"s_add_u32 s{sQF}, s{sQF}, {FLAGS}")
            a(f"""s_mul_i32 s{sQ}, s{F.sPar}, 48
s_add_u32 s{sQ}, s{sQ}, s{F.sHP}
s_add_u32 s{sQ}, s{sQ}, {FL_QK}
s_lshl_b32 s{sQ}, s{sQ}, 8
s_add_u32 s{sQ}, s{sQ}, {FLAGS}
v_and_b32 v{vF0}, 63, v0
v_cmp_gt_u32 vcc, 3, v{vF0}
v_cndmask_b32 v{vF0}, 0, v{vF0}, vcc
v_lshlrev_b32 v{vF0}, 12, v{vF0}
v_add_u32 v{vFT}, s{sQ}, v{vF0}
s_lshl_b32 s{sQ}, s{F.sHP}, 1
s_lshr_b32 s{sQ2}, s{sW}, 1
s_add_u32 s{sQ}, s{sQ}, s{sQ2}
s_add_u32 s{sQ}, s{sQ}, {FL_CH}
s_lshl_b32 s{sQ}, s{sQ}, 8
s_add_u32 s{sQ}, s{sQ}, {FLAGS}
v_mov_b32 v{vFM}, s{sQ}
s_mov_b32 s{sKT_}, 0
s_mov_b32 s{sKM_}, 0""")
            wait_ln(a, vF0)
            a(f"s_mov_b32 s{sQ2}, 1")
        else:
            a(f"s_add_u32 s{sQ2}, s{F.sIt}, 2")
        l1, l2 = a.uid("L_wt"), a.uid("L_wt")
        a(f"s_cmp_ge_u32 s{sKT_}, s{sQ2}")
        a(f"s_cbranch_scc1 {l2}")
        a(f"s_mov_b32 s{sP}, 0")
        a.label(l1)
        a(f"buffer_load_dword v{vF0}, v{vFT}, {WS}, 0 offen sc1")
        a("s_waitcnt vmcnt(0)")
        a(f"v_readlane_b32 s{sKT_}, v{vF0}, 0")
        a(f"v_readlane_b32 s{sQ}, v{vF0}, 1")
        a(f"s_min_u32 s{sKT_}, s{sKT_}, s{sQ}")
        a(f"v_readlane_b32 s{sQ}, v{vF0}, 2")
        a(f"s_min_u32 s{sKT_}, s{sKT_}, s{sQ}")
        a(f"s_cmp_ge_u32 s{sKT_}, s{sQ2}")
        a(f"s_cbranch_scc1 {l2}")
        bounded(a, l1)
        a.label(l2)
    def wait_mem(a):
        l1, l2 = a.uid("L_wm"), a.uid("L_wm")
        a(f"s_cmp_gt_u32 s{sKM_}, s{F.sSeg}")
        a(f"s_cbranch_scc1 {l2}")
        a(f"s_mov_b32 s{sP}, 0")
        a.label(l1)
        a(f"buffer_load_dword v{vF0}, v{vFM}, {WS}, 0 offen sc1")
        a("s_waitcnt vmcnt(0)")
        a(f"v_readfirstlane_b32 s{sKM_}, v{vF0}")
        a(f"s_cmp_gt_u32 s{sKM_}, s{F.sSeg}")
        a(f"s_cbranch_scc1 {l2}")
        bounded(a, l1)
        a.label(l2)
    def sig(a):
        flag_store(a, vF0, f"s{F.sIt}", sQF)
    def fin(a):
        a("s_barrier")
        flag_store(a, vF0, "32", sQF)
    return dict(wait_tok=wait_tok, wait_mem=wait_mem, sig=sig, fin=fin)

def emit_final_role(a):
    a.label("L_final")
    final.emit_final_init(a)
    sTask, sNeed = 30, 31
    vFl, vNd, vT = 124, 125, 126
    a(f"""s_lshl_b32 s{sTask}, s96, 2
s_add_u32 s{sTask}, s{sTask}, s{sW}""")
    a.label("L_fin_loop")
    a(f"""s_mul_i32 s{sQ}, s{sTask}, 1821
s_lshr_b32 s{sQ}, s{sQ}, 16                ; segment
s_lshr_b32 s{sNeed}, s{sQ}, 1
s_add_u32 s{sNeed}, s{sNeed}, 1
s_and_b32 s{sQ2}, s{sQ}, 1
s_lshl_b32 s{sQ2}, s{sQ2}, 4
s_add_u32 s{sQ2}, s{sQ2}, {FL_FO}
s_and_b32 s{sQ}, s{sQ}, 0xfffffffc
s_add_u32 s{sQ}, s{sQ}, {FL_FF - 16}
v_and_b32 v{vT}, 63, v0
v_mov_b32 v{vFl}, s{sQ2}
v_mov_b32 v{vNd}, s{sQ}
v_cmp_gt_u32 vcc, 16, v{vT}
v_cndmask_b32 v{vFl}, v{vNd}, v{vFl}, vcc
v_mov_b32 v{vNd}, s{sNeed}
v_cndmask_b32 v{vNd}, 1, v{vNd}, vcc
v_cmp_gt_u32 vcc, 20, v{vT}
v_cndmask_b32 v{vT}, 0, v{vT}, vcc
v_add_u32 v{vFl}, v{vFl}, v{vT}
v_mov_b32 v{vT}, s{sQ2}
v_cndmask_b32 v{vFl}, v{vT}, v{vFl}, vcc
v_mov_b32 v{vT}, s{sNeed}
v_cndmask_b32 v{vNd}, v{vT}, v{vNd}, vcc
v_lshlrev_b32 v{vFl}, 8, v{vFl}
v_add_u32 v{vFl}, {FLAGS}, v{vFl}
s_add_u32 s{sQ}, s{sQ}, 16
s_lshl_b32 s{sQ}, s{sQ}, 8
s_add_u32 s{sQ}, s{sQ}, {FLAGS}
s_mov_b32 s{sP}, 0""")
    a.label("L_fin_p1")
    a("s_mov_b64 exec, 1")
    a(f"buffer_load_dword v{vT}, off, {WS}, s{sQ} sc1")
    a("s_mov_b64 exec, -1")
    a("s_waitcnt vmcnt(0)")
    a(f"v_readfirstlane_b32 s{sQ2}, v{vT}")
    a(f"s_cmp_ge_u32 s{sQ2}, 1")
    a("s_cbranch_scc1 L_fin_p2")
    bounded(a, "L_fin_p1")
    a.label("L_fin_p2")
    a(f"buffer_load_dword v{vT}, v{vFl}, {WS}, 0 offen sc1")
    a("s_waitcnt vmcnt(0)")
    a(f"v_cmp_lt_u32 vcc, v{vT}, v{vNd}")
    a("s_cbranch_vccz L_fin_go")
    bounded(a, "L_fin_p2")
    a.label("L_fin_go")
    final.emit_final_task(a, sTask)
    a(f"s_add_u32 s{sTask}, s{sTask}, 768")
    a(f"s_cmp_lt_u32 s{sTask}, 2304")
    a("s_cbranch_scc1 L_fin_loop")
    a("s_waitcnt vmcnt(0)")
    a("s_branch L_exit")

def build(tm=False):
    a = Asm()
    prologue(a)
    if tm: a("s_memtime s[88:89]")
    a(f"s_cmp_lt_u32 s{sRole}, 32")
    a("s_cbranch_scc1 L_chain")
    a(f"s_sub_u32 s96, s{sRole}, 32")
    a("s_cmp_lt_u32 s96, 64")
    a("s_cbranch_scc1 L_r_ln")
    a("s_cmp_lt_u32 s96, 160")
    a("s_cbranch_scc1 L_r_qkv")
    a("s_sub_u32 s96, s96, 160")
    ffn.emit_ffn(a, "L_r_ffn_end", ffn_hooks())
    a.label("L_r_ffn_end")
    a("s_add_u32 s96, s96, 128")
    a("s_branch L_final")
    a.label("L_r_qkv")
    a("s_sub_u32 s96, s96, 64")
    qkv.emit_qkv(a, "L_r_qkv_end", qkv_hooks())
    a.label("L_r_qkv_end")
    a("s_add_u32 s96, s96, 32")
    a("s_branch L_final")
    a.label("L_r_ln")
    a("s_mov_b32 s30, s96")
    emit_ln_role(a, 30)
    a("s_cmp_lt_u32 s96, 32")
    a("s_cbranch_scc1 L_r_fol")
    a("s_sub_u32 s96, s96, 32")
    wait_ln(a, 8)
    a("s_branch L_final")
    a.label("L_r_fol")
    follow.emit_follow(a, "L_exit", follow_hooks())
    emit_final_role(a)
    chain.emit_chain(a, tm, fused=True)
    a.label("L_fail")
    a(f"""s_mov_b64 exec, 1
v_mov_b32 v78, 1
buffer_atomic_add v78, off, s[{sDBG}:{sDBG+3}], 0 offset:{4*D_ERR} sc1
s_waitcnt vmcnt(0)""")
    a.label("L_exit")
    a("s_endpgm")
    name = NAME + "_kernel"
    txt = HEADER.format(launch="; @launch grid=(256,1,1) block=(256,1,1) lds=163840") + kernel_open(name) + a.finalize() \
        + '.section .rodata,"a"\n.p2align 6\n' + kernel_desc(name)
    return txt

if __name__ == "__main__":
    out = sys.argv[1] if len(sys.argv) > 1 else f'cdna_kernels/{NAME}.s'
    tm = len(sys.argv) > 2 and sys.argv[2] == "tm"
    open(out, 'w').write(build(tm))
```

```python
import sys
sys.path.insert(0, 'gen')
from asm import *
from layout import *
from common import *
import ln, qkv, ffn, follow, final
import os, importlib
chain = importlib.import_module(os.environ.get("CH", "chain3"))
if os.environ.get("XF"): chain.X.update(x for x in os.environ["XF"].split(",") if x)

D_LN = 32
FL_CH, FL_QK, FL_FO, FL_FF = 0, 32, 128, 160
POLL_MAX = 400000
WS = f"s[{sWS}:{sWS+3}]"
DBGS = f"s[{sDBG}:{sDBG+3}]"
sP = 94
sQ, sQ2 = 92, 93

def bounded(a, retry):
    a(f"s_add_u32 s{sP}, s{sP}, 1")
    a(f"s_cmp_lt_u32 s{sP}, {POLL_MAX}")
    a(f"s_cbranch_scc1 {retry}")
    a("s_branch L_fail")

def wait_ln(a, vt):
    l1, l2 = a.uid("L_wl"), a.uid("L_wl")
    a(f"s_cmp_lg_u32 s{sW}, 0")
    a(f"s_cbranch_scc1 {l2}")
    a(f"s_mov_b32 s{sP}, 0")
    a.label(l1)
    a(f"buffer_load_dword v{vt}, off, {DBGS}, 0 offset:{4*D_LN} sc1")
    a("s_waitcnt vmcnt(0)")
    a(f"v_readfirstlane_b32 s{sQ}, v{vt}")
    a(f"s_cmp_ge_u32 s{sQ}, 64")
    a(f"s_cbranch_scc1 {l2}")
    bounded(a, l1)
    a.label(l2)
    a("s_barrier")

def flag_store(a, vt, sval, soff, wave=0):
    l = a.uid("L_fs")
    a(f"s_cmp_lg_u32 s{sW}, {wave}")
    a(f"s_cbranch_scc1 {l}")
    a(f"v_mov_b32 v{vt}, {sval}")
    a("s_mov_b64 exec, 1")
    a(f"buffer_store_dword v{vt}, off, {WS}, s{soff} sc1")
    a("s_mov_b64 exec, -1")
    a.label(l)

def emit_ln_role(a, sSeg):
    ln.emit_ln(a, sSeg)
    l = a.uid("L_zf")
    a(f"s_cmp_lg_u32 s{sW}, 0")
    a(f"s_cbranch_scc1 {l}")
    a(f"s_lshl_b32 s{sQ}, s{sSeg}, 10")
    a(f"s_add_u32 s{sQ}, s{sQ}, {FLAGS}")
    a("v_mov_b32 v8, 0\nv_mov_b32 v9, 0\nv_mov_b32 v10, 0\nv_mov_b32 v11, 0")
    a(f"buffer_store_dwordx4 v[8:11], v6, {WS}, s{sQ} offen sc1")
    a("s_waitcnt vmcnt(0)")
    a.label(l)
    a("s_barrier")
    l = a.uid("L_lna")
    a(f"s_cmp_lg_u32 s{sW}, 0")
    a(f"s_cbranch_scc1 {l}")
    a("s_mov_b64 exec, 1")
    a("v_mov_b32 v8, 1")
    a(f"buffer_atomic_add v8, off, {DBGS}, 0 offset:{4*D_LN} sc1")
    a("s_mov_b64 exec, -1")
    a.label(l)

sQF = 95
def qkv_hooks():
    def wait_xn(a):
        a(f"s_add_u32 s{sQF}, s96, {FL_QK}")
        a(f"s_lshl_b32 s{sQF}, s{sQF}, 8")
        a(f"s_add_u32 s{sQF}, s{sQF}, {FLAGS}")
        wait_ln(a, qkv.vTmp)
    def sig(a):
        a(f"s_sub_u32 s{sQ}, s{qkv.sSeg}, 1")
        a(f"s_max_i32 s{sQ}, s{sQ}, 0")
        flag_store(a, qkv.vTmp, f"s{sQ}", sQF)
    def fin(a):
        a("s_barrier")
        flag_store(a, qkv.vTmp, "32", sQF)
    return dict(wait_xn=wait_xn, sig=sig, fin=fin)

def ffn_hooks():
    def wait_xn(a):
        a(f"s_add_u32 s{sQF}, s96, {FL_FF}")
        a(f"s_lshl_b32 s{sQF}, s{sQF}, 8")
        a(f"s_add_u32 s{sQF}, s{sQF}, {FLAGS}")
        wait_ln(a, 16)
    def fin(a):
        a("s_barrier")
        flag_store(a, 16, "1", sQF)
    return dict(wait_xn=wait_xn, fin=fin)

vFT, vFM, vF0 = 5, 6, 38
sKT_, sKM_ = 90, 91
def follow_hooks():
    F = follow
    def wait_tok(a, which):
        if which == 0:
            a(f"s_add_u32 s{sQF}, s96, {FL_FO}")
            a(f"s_lshl_b32 s{sQF}, s{sQF}, 8")
            a(f"s_add_u32 s{sQF}, s{sQF}, {FLAGS}")
            a(f"""s_mul_i32 s{sQ}, s{F.sPar}, 48
s_add_u32 s{sQ}, s{sQ}, s{F.sHP}
s_add_u32 s{sQ}, s{sQ}, {FL_QK}
s_lshl_b32 s{sQ}, s{sQ}, 8
s_add_u32 s{sQ}, s{sQ}, {FLAGS}
v_and_b32 v{vF0}, 63, v0
v_cmp_gt_u32 vcc, 3, v{vF0}
v_cndmask_b32 v{vF0}, 0, v{vF0}, vcc
v_lshlrev_b32 v{vF0}, 12, v{vF0}
v_add_u32 v{vFT}, s{sQ}, v{vF0}
s_lshl_b32 s{sQ}, s{F.sHP}, 1
s_lshr_b32 s{sQ2}, s{sW}, 1
s_add_u32 s{sQ}, s{sQ}, s{sQ2}
s_add_u32 s{sQ}, s{sQ}, {FL_CH}
s_lshl_b32 s{sQ}, s{sQ}, 8
s_add_u32 s{sQ}, s{sQ}, {FLAGS}
v_mov_b32 v{vFM}, s{sQ}
s_mov_b32 s{sKT_}, 0
s_mov_b32 s{sKM_}, 0""")
            wait_ln(a, vF0)
            a(f"s_mov_b32 s{sQ2}, 1")
        else:
            a(f"s_add_u32 s{sQ2}, s{F.sIt}, 2")
        l1, l2 = a.uid("L_wt"), a.uid("L_wt")
        a(f"s_cmp_ge_u32 s{sKT_}, s{sQ2}")
        a(f"s_cbranch_scc1 {l2}")
        a(f"s_mov_b32 s{sP}, 0")
        a.label(l1)
        a(f"buffer_load_dword v{vF0}, v{vFT}, {WS}, 0 offen sc1")
        a("s_waitcnt vmcnt(0)")
        a(f"v_readlane_b32 s{sKT_}, v{vF0}, 0")
        a(f"v_readlane_b32 s{sQ}, v{vF0}, 1")
        a(f"s_min_u32 s{sKT_}, s{sKT_}, s{sQ}")
        a(f"v_readlane_b32 s{sQ}, v{vF0}, 2")
        a(f"s_min_u32 s{sKT_}, s{sKT_}, s{sQ}")
        a(f"s_cmp_ge_u32 s{sKT_}, s{sQ2}")
        a(f"s_cbranch_scc1 {l2}")
        bounded(a, l1)
        a.label(l2)
    def wait_mem(a):
        l1, l2 = a.uid("L_wm"), a.uid("L_wm")
        a(f"s_cmp_gt_u32 s{sKM_}, s{F.sSeg}")
        a(f"s_cbranch_scc1 {l2}")
        a(f"s_mov_b32 s{sP}, 0")
        a.label(l1)
        a(f"buffer_load_dword v{vF0}, v{vFM}, {WS}, 0 offen sc1")
        a("s_waitcnt vmcnt(0)")
        a(f"v_readfirstlane_b32 s{sKM_}, v{vF0}")
        a(f"s_cmp_gt_u32 s{sKM_}, s{F.sSeg}")
        a(f"s_cbranch_scc1 {l2}")
        bounded(a, l1)
        a.label(l2)
    def sig(a):
        flag_store(a, vF0, f"s{F.sIt}", sQF)
    def fin(a):
        a("s_barrier")
        flag_store(a, vF0, "32", sQF)
    return dict(wait_tok=wait_tok, wait_mem=wait_mem, sig=sig, fin=fin)

def emit_final_role(a):
    a.label("L_final")
    final.emit_final_init(a)
    sTask, sNeed = 30, 31
    vFl, vNd, vT = 124, 125, 126
    a(f"""s_lshl_b32 s{sTask}, s96, 2
s_add_u32 s{sTask}, s{sTask}, s{sW}""")
    a.label("L_fin_loop")
    a(f"""s_mul_i32 s{sQ}, s{sTask}, 1821
s_lshr_b32 s{sQ}, s{sQ}, 16                ; segment
s_lshr_b32 s{sNeed}, s{sQ}, 1
s_add_u32 s{sNeed}, s{sNeed}, 1
s_and_b32 s{sQ2}, s{sQ}, 1
s_lshl_b32 s{sQ2}, s{sQ2}, 4
s_add_u32 s{sQ2}, s{sQ2}, {FL_FO}
s_and_b32 s{sQ}, s{sQ}, 0xfffffffc
s_add_u32 s{sQ}, s{sQ}, {FL_FF - 16}
v_and_b32 v{vT}, 63, v0
v_mov_b32 v{vFl}, s{sQ2}
v_mov_b32 v{vNd}, s{sQ}
v_cmp_gt_u32 vcc, 16, v{vT}
v_cndmask_b32 v{vFl}, v{vNd}, v{vFl}, vcc
v_mov_b32 v{vNd}, s{sNeed}
v_cndmask_b32 v{vNd}, 1, v{vNd}, vcc
v_cmp_gt_u32 vcc, 20, v{vT}
v_cndmask_b32 v{vT}, 0, v{vT}, vcc
v_add_u32 v{vFl}, v{vFl}, v{vT}
v_mov_b32 v{vT}, s{sQ2}
v_cndmask_b32 v{vFl}, v{vT}, v{vFl}, vcc
v_mov_b32 v{vT}, s{sNeed}
v_cndmask_b32 v{vNd}, v{vT}, v{vNd}, vcc
v_lshlrev_b32 v{vFl}, 8, v{vFl}
v_add_u32 v{vFl}, {FLAGS}, v{vFl}
s_add_u32 s{sQ}, s{sQ}, 16
s_lshl_b32 s{sQ}, s{sQ}, 8
s_add_u32 s{sQ}, s{sQ}, {FLAGS}
s_mov_b32 s{sP}, 0""")
    a.label("L_fin_p1")
    a("s_mov_b64 exec, 1")
    a(f"buffer_load_dword v{vT}, off, {WS}, s{sQ} sc1")
    a("s_mov_b64 exec, -1")
    a("s_waitcnt vmcnt(0)")
    a(f"v_readfirstlane_b32 s{sQ2}, v{vT}")
    a(f"s_cmp_ge_u32 s{sQ2}, 1")
    a("s_cbranch_scc1 L_fin_p2")
    bounded(a, "L_fin_p1")
    a.label("L_fin_p2")
    a(f"buffer_load_dword v{vT}, v{vFl}, {WS}, 0 offen sc1")
    a("s_waitcnt vmcnt(0)")
    a(f"v_cmp_lt_u32 vcc, v{vT}, v{vNd}")
    a("s_cbranch_vccz L_fin_go")
    bounded(a, "L_fin_p2")
    a.label("L_fin_go")
    final.emit_final_task(a, sTask)
    a(f"s_add_u32 s{sTask}, s{sTask}, 768")
    a(f"s_cmp_lt_u32 s{sTask}, 2304")
    a("s_cbranch_scc1 L_fin_loop")
    a("s_waitcnt vmcnt(0)")
    a("s_branch L_exit")

def build(tm=False):
    a = Asm()
    prologue(a)
    if tm: a("s_memtime s[88:89]")
    a(f"s_cmp_lt_u32 s{sRole}, 32")
    a("s_cbranch_scc1 L_chain")
    a(f"s_sub_u32 s96, s{sRole}, 32")
    a("s_cmp_lt_u32 s96, 64")
    a("s_cbranch_scc1 L_r_ln")
    a("s_cmp_lt_u32 s96, 160")
    a("s_cbranch_scc1 L_r_qkv")
    a("s_sub_u32 s96, s96, 160")
    ffn.emit_ffn(a, "L_r_ffn_end", ffn_hooks())
    a.label("L_r_ffn_end")
    a("s_add_u32 s96, s96, 128")
    a("s_branch L_final")
    a.label("L_r_qkv")
    a("s_sub_u32 s96, s96, 64")
    qkv.emit_qkv(a, "L_r_qkv_end", qkv_hooks())
    a.label("L_r_qkv_end")
    a("s_add_u32 s96, s96, 32")
    a("s_branch L_final")
    a.label("L_r_ln")
    a("s_mov_b32 s30, s96")
    emit_ln_role(a, 30)
    a("s_cmp_lt_u32 s96, 32")
    a("s_cbranch_scc1 L_r_fol")
    a("s_sub_u32 s96, s96, 32")
    wait_ln(a, 8)
    a("s_branch L_final")
    a.label("L_r_fol")
    follow.emit_follow(a, "L_exit", follow_hooks())
    emit_final_role(a)
    chain.emit_chain(a, tm, fused=True)
    a.label("L_fail")
    a(f"""s_mov_b64 exec, 1
v_mov_b32 v78, 1
buffer_atomic_add v78, off, s[{sDBG}:{sDBG+3}], 0 offset:{4*D_ERR} sc1
s_waitcnt vmcnt(0)""")
    a.label("L_exit")
    a("s_endpgm")
    name = NAME + "_kernel"
    txt = HEADER.format(launch="; @launch grid=(256,1,1) block=(256,1,1) lds=163840") + kernel_open(name) + a.finalize() \
        + '.section .rodata,"a"\n.p2align 6\n' + kernel_desc(name)
    return txt

if __name__ == "__main__":
    out = sys.argv[1] if len(sys.argv) > 1 else f'cdna_kernels/{NAME}.s'
    tm = len(sys.argv) > 2 and sys.argv[2] == "tm"
    open(out, 'w').write(build(tm))
```

```python
from asm import *
from layout import *

sWS, sT, sDBG = 4, 8, 12
sW, sRole, sXcc = 17, 97, 98
D_CNT0, D_CNTG, D_OFFX, D_CHB = 0, 1, 2, 3
D_ERR = 8

def prologue(a, nwg=256, nchain=32, lab_exit="L_exit"):
    import os
    xf = os.environ.get("XF", "").split(",")
    if "ts" in xf or "tl" in xf: a("s_memrealtime s[86:87]" if ("tsr" in xf or "tl" in xf) else "s_memtime s[86:87]")
    a(f"s_cmp_ge_u32 s2, {nwg}")
    a(f"s_cbranch_scc1 {lab_exit}")
    a(f"""s_load_dwordx2 s[{sDBG}:{sDBG+1}], s[0:1], {KA["dbg"]}
s_load_dwordx2 s[{sWS}:{sWS+1}], s[0:1], {KA["ws"]}
s_load_dwordx2 s[{sT}:{sT+1}], s[0:1], {KA["Wo"]}
s_mov_b32 s{sWS+2}, {WS_BYTES}
s_mov_b32 s{sWS+3}, 0x00020000
s_mov_b32 s{sDBG+2}, 256
s_mov_b32 s{sDBG+3}, 0x00020000
s_waitcnt lgkmcnt(0)
s_and_b32 s{sWS+1}, s{sWS+1}, 0xffff
s_and_b32 s{sDBG+1}, s{sDBG+1}, 0xffff""")
    a(f"""
v_lshrrev_b32 v1, 6, v0
v_readfirstlane_b32 s{sW}, v1
s_getreg_b32 s{sXcc}, hwreg(HW_REG_XCC_ID)
s_and_b32 s{sXcc}, s{sXcc}, 15
s_cmp_lg_u32 s{sW}, 0
s_cbranch_scc1 L_role_wait
s_mov_b64 exec, 1
v_mov_b32 v1, 1
s_cmp_lg_u32 s{sXcc}, 0
s_cbranch_scc1 L_role_glob
buffer_atomic_add v1, off, s[{sDBG}:{sDBG+3}], 0 offset:{4*D_CNT0} sc0 sc1
s_waitcnt vmcnt(0)
v_readfirstlane_b32 s{sRole}, v1
s_cmp_lt_u32 s{sRole}, {nchain}
s_cbranch_scc1 L_role_done
L_role_glob:
v_mov_b32 v1, 1
buffer_atomic_add v1, off, s[{sDBG}:{sDBG+3}], 0 offset:{4*D_CNTG} sc0 sc1
s_waitcnt vmcnt(0)
v_readfirstlane_b32 s{sRole}, v1
s_add_u32 s{sRole}, s{sRole}, {nchain}
s_cmp_lt_u32 s{sRole}, {nwg}
s_cbranch_scc1 L_role_done
v_mov_b32 v1, 1
buffer_atomic_add v1, off, s[{sDBG}:{sDBG+3}], 0 offset:{4*D_CNT0} sc0 sc1
s_waitcnt vmcnt(0)
v_readfirstlane_b32 s{sRole}, v1
v_mov_b32 v1, 1
buffer_atomic_or v1, off, s[{sDBG}:{sDBG+3}], 0 offset:{4*D_OFFX} sc1
s_waitcnt vmcnt(0)
L_role_done:
v_mov_b32 v1, s{sRole}
v_mov_b32 v2, 0
ds_write_b32 v2, v1
s_waitcnt lgkmcnt(0)
s_mov_b64 exec, -1
L_role_wait:
s_barrier
v_mov_b32 v2, 0
ds_read_b32 v1, v2
s_waitcnt lgkmcnt(0)
v_readfirstlane_b32 s{sRole}, v1
s_barrier
""")

def prologue_simple(a, nwg, lab_exit):
    a(f"s_cmp_ge_u32 s2, {nwg}")
    a(f"s_cbranch_scc1 {lab_exit}")
    srd(a, sWS, KA["ws"], WS_BYTES)
    srd(a, sDBG, KA["dbg"], 256)
    a(f"""
v_lshrrev_b32 v1, 6, v0
v_readfirstlane_b32 s{sW}, v1
s_mov_b32 s{sRole}, s2
""")
```

```python
from asm import *
from layout import *

sWS, sT, sDBG = 4, 8, 12
sW, sRole, sXcc = 17, 97, 98
D_CNT0, D_CNTG, D_OFFX, D_CHB = 0, 1, 2, 3
D_ERR = 8

def prologue(a, nwg=256, nchain=32, lab_exit="L_exit"):
    import os
    xf = os.environ.get("XF", "").split(",")
    if "ts" in xf or "tl" in xf or "tq" in xf: a("s_memrealtime s[86:87]" if ("tsr" in xf or "tl" in xf or "tq" in xf) else "s_memtime s[86:87]")
    a(f"s_cmp_ge_u32 s2, {nwg}")
    a(f"s_cbranch_scc1 {lab_exit}")
    a(f"""s_load_dwordx2 s[{sDBG}:{sDBG+1}], s[0:1], {KA["dbg"]}
s_load_dwordx2 s[{sWS}:{sWS+1}], s[0:1], {KA["ws"]}
s_load_dwordx2 s[{sT}:{sT+1}], s[0:1], {KA["Wo"]}
s_mov_b32 s{sWS+2}, {WS_BYTES}
s_mov_b32 s{sWS+3}, 0x00020000
s_mov_b32 s{sDBG+2}, 256
s_mov_b32 s{sDBG+3}, 0x00020000
s_waitcnt lgkmcnt(0)
s_and_b32 s{sWS+1}, s{sWS+1}, 0xffff
s_and_b32 s{sDBG+1}, s{sDBG+1}, 0xffff""")
    a(f"""
v_lshrrev_b32 v1, 6, v0
v_readfirstlane_b32 s{sW}, v1
s_getreg_b32 s{sXcc}, hwreg(HW_REG_XCC_ID)
s_and_b32 s{sXcc}, s{sXcc}, 15
s_cmp_lg_u32 s{sW}, 0
s_cbranch_scc1 L_role_wait
s_mov_b64 exec, 1
v_mov_b32 v1, 1
s_cmp_lg_u32 s{sXcc}, 0
s_cbranch_scc1 L_role_glob
buffer_atomic_add v1, off, s[{sDBG}:{sDBG+3}], 0 offset:{4*D_CNT0} sc0 sc1
s_waitcnt vmcnt(0)
v_readfirstlane_b32 s{sRole}, v1
s_cmp_lt_u32 s{sRole}, {nchain}
s_cbranch_scc1 L_role_done
L_role_glob:
v_mov_b32 v1, 1
buffer_atomic_add v1, off, s[{sDBG}:{sDBG+3}], 0 offset:{4*D_CNTG} sc0 sc1
s_waitcnt vmcnt(0)
v_readfirstlane_b32 s{sRole}, v1
s_add_u32 s{sRole}, s{sRole}, {nchain}
s_cmp_lt_u32 s{sRole}, {nwg}
s_cbranch_scc1 L_role_done
v_mov_b32 v1, 1
buffer_atomic_add v1, off, s[{sDBG}:{sDBG+3}], 0 offset:{4*D_CNT0} sc0 sc1
s_waitcnt vmcnt(0)
v_readfirstlane_b32 s{sRole}, v1
v_mov_b32 v1, 1
buffer_atomic_or v1, off, s[{sDBG}:{sDBG+3}], 0 offset:{4*D_OFFX} sc1
s_waitcnt vmcnt(0)
L_role_done:
v_mov_b32 v1, s{sRole}
v_mov_b32 v2, 0
ds_write_b32 v2, v1
s_waitcnt lgkmcnt(0)
s_mov_b64 exec, -1
L_role_wait:
s_barrier
v_mov_b32 v2, 0
ds_read_b32 v1, v2
s_waitcnt lgkmcnt(0)
v_readfirstlane_b32 s{sRole}, v1
s_barrier
""")

def prologue_simple(a, nwg, lab_exit):
    a(f"s_cmp_ge_u32 s2, {nwg}")
    a(f"s_cbranch_scc1 {lab_exit}")
    srd(a, sWS, KA["ws"], WS_BYTES)
    srd(a, sDBG, KA["dbg"], 256)
    a(f"""
v_lshrrev_b32 v1, 6, v0
v_readfirstlane_b32 s{sW}, v1
s_mov_b32 s{sRole}, s2
""")

def dstamp(a, k, vt, conds=(), base=86):
    import os
    if "tq" not in os.environ.get("XF", "").split(","): return
    lab = a.uid("L_ds")
    a(f"s_cmp_lg_u32 s{sW}, 0\ns_cbranch_scc1 {lab}")
    for (r, v) in conds:
        a(f"s_cmp_lg_u32 s{r}, {v}\ns_cbranch_scc1 {lab}")
    a(f"s_memrealtime s[88:89]\ns_waitcnt lgkmcnt(0)\ns_sub_u32 s88, s88, s{base}\nv_mov_b32 v{vt}, s88")
    a(f"buffer_store_dword v{vt}, off, s[{sDBG}:{sDBG+3}], 0 offset:{4*(9+k)} sc1\ns_waitcnt vmcnt(0)")
    a.label(lab)
```

```python
import sys
sys.path.insert(0, 'gen')
from asm import *
from layout import *
from common import *
import ln, qkv, ffn, follow, final
import os, importlib
chain = importlib.import_module(os.environ.get("CH", "chain3"))
if os.environ.get("XF"): chain.X.update(x for x in os.environ["XF"].split(",") if x)

D_LN = 32
FL_CH, FL_QK, FL_FO, FL_FF = 0, 32, 128, 160
POLL_MAX = 400000
WS = f"s[{sWS}:{sWS+3}]"
DBGS = f"s[{sDBG}:{sDBG+3}]"
sP = 94
sQ, sQ2 = 92, 93

def bounded(a, retry):
    a(f"s_add_u32 s{sP}, s{sP}, 1")
    a(f"s_cmp_lt_u32 s{sP}, {POLL_MAX}")
    a(f"s_cbranch_scc1 {retry}")
    a("s_branch L_fail")

def wait_ln(a, vt):
    l1, l2 = a.uid("L_wl"), a.uid("L_wl")
    a(f"s_cmp_lg_u32 s{sW}, 0")
    a(f"s_cbranch_scc1 {l2}")
    a(f"s_mov_b32 s{sP}, 0")
    a.label(l1)
    a(f"buffer_load_dword v{vt}, off, {DBGS}, 0 offset:{4*D_LN} sc1")
    a("s_waitcnt vmcnt(0)")
    a(f"v_readfirstlane_b32 s{sQ}, v{vt}")
    a(f"s_cmp_ge_u32 s{sQ}, 64")
    a(f"s_cbranch_scc1 {l2}")
    bounded(a, l1)
    a.label(l2)
    a("s_barrier")

def flag_store(a, vt, sval, soff, wave=0):
    l = a.uid("L_fs")
    a(f"s_cmp_lg_u32 s{sW}, {wave}")
    a(f"s_cbranch_scc1 {l}")
    a(f"v_mov_b32 v{vt}, {sval}")
    a("s_mov_b64 exec, 1")
    a(f"buffer_store_dword v{vt}, off, {WS}, s{soff} sc1")
    a("s_mov_b64 exec, -1")
    a.label(l)

def emit_ln_role(a, sSeg):
    ln.emit_ln(a, sSeg)
    l = a.uid("L_zf")
    a(f"s_cmp_lg_u32 s{sW}, 0")
    a(f"s_cbranch_scc1 {l}")
    a(f"s_lshl_b32 s{sQ}, s{sSeg}, 10")
    a(f"s_add_u32 s{sQ}, s{sQ}, {FLAGS}")
    a("v_mov_b32 v8, 0\nv_mov_b32 v9, 0\nv_mov_b32 v10, 0\nv_mov_b32 v11, 0")
    a(f"buffer_store_dwordx4 v[8:11], v6, {WS}, s{sQ} offen sc1")
    a("s_waitcnt vmcnt(0)")
    a.label(l)
    a("s_barrier")
    l = a.uid("L_lna")
    a(f"s_cmp_lg_u32 s{sW}, 0")
    a(f"s_cbranch_scc1 {l}")
    a("s_mov_b64 exec, 1")
    a("v_mov_b32 v8, 1")
    a(f"buffer_atomic_add v8, off, {DBGS}, 0 offset:{4*D_LN} sc1")
    a("s_mov_b64 exec, -1")
    a.label(l)

sQF = 95
def qkv_hooks():
    def wait_xn(a):
        a(f"s_add_u32 s{sQF}, s96, {FL_QK}")
        a(f"s_lshl_b32 s{sQF}, s{sQF}, 8")
        a(f"s_add_u32 s{sQF}, s{sQF}, {FLAGS}")
        dstamp(a, 0, qkv.vTmp, [(96, 0)])
        wait_ln(a, qkv.vTmp)
        dstamp(a, 1, qkv.vTmp, [(96, 0)])
    def sig(a):
        a(f"s_sub_u32 s{sQ}, s{qkv.sSeg}, 1")
        a(f"s_max_i32 s{sQ}, s{sQ}, 0")
        flag_store(a, qkv.vTmp, f"s{sQ}", sQF)
        dstamp(a, 2, qkv.vTmp, [(96, 0), (qkv.sSeg, 2)])
    def fin(a):
        a("s_barrier")
        flag_store(a, qkv.vTmp, "32", sQF)
    return dict(wait_xn=wait_xn, sig=sig, fin=fin)

def ffn_hooks():
    def wait_xn(a):
        a(f"s_add_u32 s{sQF}, s96, {FL_FF}")
        a(f"s_lshl_b32 s{sQF}, s{sQF}, 8")
        a(f"s_add_u32 s{sQF}, s{sQF}, {FLAGS}")
        wait_ln(a, 16)
    def fin(a):
        a("s_barrier")
        flag_store(a, 16, "1", sQF)
    return dict(wait_xn=wait_xn, fin=fin)

vFT, vFM, vF0 = 5, 6, 38
sKT_, sKM_ = 90, 91
def follow_hooks():
    F = follow
    def wait_tok(a, which):
        if which == 0:
            a(f"s_add_u32 s{sQF}, s96, {FL_FO}")
            a(f"s_lshl_b32 s{sQF}, s{sQF}, 8")
            a(f"s_add_u32 s{sQF}, s{sQF}, {FLAGS}")
            a(f"""s_mul_i32 s{sQ}, s{F.sPar}, 48
s_add_u32 s{sQ}, s{sQ}, s{F.sHP}
s_add_u32 s{sQ}, s{sQ}, {FL_QK}
s_lshl_b32 s{sQ}, s{sQ}, 8
s_add_u32 s{sQ}, s{sQ}, {FLAGS}
v_and_b32 v{vF0}, 63, v0
v_cmp_gt_u32 vcc, 3, v{vF0}
v_cndmask_b32 v{vF0}, 0, v{vF0}, vcc
v_lshlrev_b32 v{vF0}, 12, v{vF0}
v_add_u32 v{vFT}, s{sQ}, v{vF0}
s_lshl_b32 s{sQ}, s{F.sHP}, 1
s_lshr_b32 s{sQ2}, s{sW}, 1
s_add_u32 s{sQ}, s{sQ}, s{sQ2}
s_add_u32 s{sQ}, s{sQ}, {FL_CH}
s_lshl_b32 s{sQ}, s{sQ}, 8
s_add_u32 s{sQ}, s{sQ}, {FLAGS}
v_mov_b32 v{vFM}, s{sQ}
s_mov_b32 s{sKT_}, 0
s_mov_b32 s{sKM_}, 0""")
            wait_ln(a, vF0)
            a(f"s_mov_b32 s{sQ2}, 1")
        else:
            a(f"s_add_u32 s{sQ2}, s{F.sIt}, 2")
        l1, l2 = a.uid("L_wt"), a.uid("L_wt")
        a(f"s_cmp_ge_u32 s{sKT_}, s{sQ2}")
        a(f"s_cbranch_scc1 {l2}")
        a(f"s_mov_b32 s{sP}, 0")
        a.label(l1)
        a(f"buffer_load_dword v{vF0}, v{vFT}, {WS}, 0 offen sc1")
        a("s_waitcnt vmcnt(0)")
        a(f"v_readlane_b32 s{sKT_}, v{vF0}, 0")
        a(f"v_readlane_b32 s{sQ}, v{vF0}, 1")
        a(f"s_min_u32 s{sKT_}, s{sKT_}, s{sQ}")
        a(f"v_readlane_b32 s{sQ}, v{vF0}, 2")
        a(f"s_min_u32 s{sKT_}, s{sKT_}, s{sQ}")
        a(f"s_cmp_ge_u32 s{sKT_}, s{sQ2}")
        a(f"s_cbranch_scc1 {l2}")
        bounded(a, l1)
        a.label(l2)
    def wait_mem(a):
        l1, l2 = a.uid("L_wm"), a.uid("L_wm")
        a(f"s_cmp_gt_u32 s{sKM_}, s{F.sSeg}")
        a(f"s_cbranch_scc1 {l2}")
        a(f"s_mov_b32 s{sP}, 0")
        a.label(l1)
        a(f"buffer_load_dword v{vF0}, v{vFM}, {WS}, 0 offen sc1")
        a("s_waitcnt vmcnt(0)")
        a(f"v_readfirstlane_b32 s{sKM_}, v{vF0}")
        a(f"s_cmp_gt_u32 s{sKM_}, s{F.sSeg}")
        a(f"s_cbranch_scc1 {l2}")
        bounded(a, l1)
        a.label(l2)
    def sig(a):
        flag_store(a, vF0, f"s{F.sIt}", sQF)
    def fin(a):
        a("s_barrier")
        flag_store(a, vF0, "32", sQF)
    return dict(wait_tok=wait_tok, wait_mem=wait_mem, sig=sig, fin=fin)

def emit_final_role(a):
    a.label("L_final")
    final.emit_final_init(a)
    sTask, sNeed = 30, 31
    vFl, vNd, vT = 124, 125, 126
    a(f"""s_lshl_b32 s{sTask}, s96, 2
s_add_u32 s{sTask}, s{sTask}, s{sW}""")
    a.label("L_fin_loop")
    a(f"""s_mul_i32 s{sQ}, s{sTask}, 1821
s_lshr_b32 s{sQ}, s{sQ}, 16                ; segment
s_lshr_b32 s{sNeed}, s{sQ}, 1
s_add_u32 s{sNeed}, s{sNeed}, 1
s_and_b32 s{sQ2}, s{sQ}, 1
s_lshl_b32 s{sQ2}, s{sQ2}, 4
s_add_u32 s{sQ2}, s{sQ2}, {FL_FO}
s_and_b32 s{sQ}, s{sQ}, 0xfffffffc
s_add_u32 s{sQ}, s{sQ}, {FL_FF - 16}
v_and_b32 v{vT}, 63, v0
v_mov_b32 v{vFl}, s{sQ2}
v_mov_b32 v{vNd}, s{sQ}
v_cmp_gt_u32 vcc, 16, v{vT}
v_cndmask_b32 v{vFl}, v{vNd}, v{vFl}, vcc
v_mov_b32 v{vNd}, s{sNeed}
v_cndmask_b32 v{vNd}, 1, v{vNd}, vcc
v_cmp_gt_u32 vcc, 20, v{vT}
v_cndmask_b32 v{vT}, 0, v{vT}, vcc
v_add_u32 v{vFl}, v{vFl}, v{vT}
v_mov_b32 v{vT}, s{sQ2}
v_cndmask_b32 v{vFl}, v{vT}, v{vFl}, vcc
v_mov_b32 v{vT}, s{sNeed}
v_cndmask_b32 v{vNd}, v{vT}, v{vNd}, vcc
v_lshlrev_b32 v{vFl}, 8, v{vFl}
v_add_u32 v{vFl}, {FLAGS}, v{vFl}
s_add_u32 s{sQ}, s{sQ}, 16
s_lshl_b32 s{sQ}, s{sQ}, 8
s_add_u32 s{sQ}, s{sQ}, {FLAGS}
s_mov_b32 s{sP}, 0""")
    a.label("L_fin_p1")
    a("s_mov_b64 exec, 1")
    a(f"buffer_load_dword v{vT}, off, {WS}, s{sQ} sc1")
    a("s_mov_b64 exec, -1")
    a("s_waitcnt vmcnt(0)")
    a(f"v_readfirstlane_b32 s{sQ2}, v{vT}")
    a(f"s_cmp_ge_u32 s{sQ2}, 1")
    a("s_cbranch_scc1 L_fin_p2")
    bounded(a, "L_fin_p1")
    a.label("L_fin_p2")
    a(f"buffer_load_dword v{vT}, v{vFl}, {WS}, 0 offen sc1")
    a("s_waitcnt vmcnt(0)")
    a(f"v_cmp_lt_u32 vcc, v{vT}, v{vNd}")
    a("s_cbranch_vccz L_fin_go")
    bounded(a, "L_fin_p2")
    a.label("L_fin_go")
    final.emit_final_task(a, sTask)
    a(f"s_add_u32 s{sTask}, s{sTask}, 768")
    a(f"s_cmp_lt_u32 s{sTask}, 2304")
    a("s_cbranch_scc1 L_fin_loop")
    a("s_waitcnt vmcnt(0)")
    a("s_branch L_exit")

def build(tm=False):
    a = Asm()
    prologue(a)
    if tm: a("s_memtime s[88:89]")
    a(f"s_cmp_lt_u32 s{sRole}, 32")
    a("s_cbranch_scc1 L_chain")
    a(f"s_sub_u32 s96, s{sRole}, 32")
    a("s_cmp_lt_u32 s96, 64")
    a("s_cbranch_scc1 L_r_ln")
    a("s_cmp_lt_u32 s96, 160")
    a("s_cbranch_scc1 L_r_qkv")
    a("s_sub_u32 s96, s96, 160")
    ffn.emit_ffn(a, "L_r_ffn_end", ffn_hooks())
    a.label("L_r_ffn_end")
    a("s_add_u32 s96, s96, 128")
    a("s_branch L_final")
    a.label("L_r_qkv")
    a("s_sub_u32 s96, s96, 64")
    qkv.emit_qkv(a, "L_r_qkv_end", qkv_hooks())
    a.label("L_r_qkv_end")
    a("s_add_u32 s96, s96, 32")
    a("s_branch L_final")
    a.label("L_r_ln")
    a("s_mov_b32 s30, s96")
    emit_ln_role(a, 30)
    dstamp(a, 3, 8, [(96, 0)])
    a("s_cmp_lt_u32 s96, 32")
    a("s_cbranch_scc1 L_r_fol")
    a("s_sub_u32 s96, s96, 32")
    wait_ln(a, 8)
    a("s_branch L_final")
    a.label("L_r_fol")
    follow.emit_follow(a, "L_exit", follow_hooks())
    emit_final_role(a)
    chain.emit_chain(a, tm, fused=True)
    a.label("L_fail")
    a(f"""s_mov_b64 exec, 1
v_mov_b32 v78, 1
buffer_atomic_add v78, off, s[{sDBG}:{sDBG+3}], 0 offset:{4*D_ERR} sc1
s_waitcnt vmcnt(0)""")
    a.label("L_exit")
    a("s_endpgm")
    name = NAME + "_kernel"
    txt = HEADER.format(launch="; @launch grid=(256,1,1) block=(256,1,1) lds=163840") + kernel_open(name) + a.finalize() \
        + '.section .rodata,"a"\n.p2align 6\n' + kernel_desc(name)
    return txt

if __name__ == "__main__":
    out = sys.argv[1] if len(sys.argv) > 1 else f'cdna_kernels/{NAME}.s'
    tm = len(sys.argv) > 2 and sys.argv[2] == "tm"
    open(out, 'w').write(build(tm))
```

```python
from asm import *
from layout import *

sWS, sT, sDBG = 4, 8, 12
sW, sRole, sXcc = 17, 97, 98
D_CNT0, D_CNTG, D_OFFX, D_CHB = 0, 1, 2, 3
D_ERR = 8

def prologue(a, nwg=256, nchain=32, lab_exit="L_exit"):
    import os
    if "ts" in os.environ.get("XF", "").split(","): a("s_memrealtime s[86:87]" if "tsr" in os.environ.get("XF", "").split(",") else "s_memtime s[86:87]")
    a(f"s_cmp_ge_u32 s2, {nwg}")
    a(f"s_cbranch_scc1 {lab_exit}")
    a(f"""s_load_dwordx2 s[{sDBG}:{sDBG+1}], s[0:1], {KA["dbg"]}
s_load_dwordx2 s[{sWS}:{sWS+1}], s[0:1], {KA["ws"]}
s_load_dwordx2 s[{sT}:{sT+1}], s[0:1], {KA["Wo"]}
s_mov_b32 s{sWS+2}, {WS_BYTES}
s_mov_b32 s{sWS+3}, 0x00020000
s_mov_b32 s{sDBG+2}, 256
s_mov_b32 s{sDBG+3}, 0x00020000
s_waitcnt lgkmcnt(0)
s_and_b32 s{sWS+1}, s{sWS+1}, 0xffff
s_and_b32 s{sDBG+1}, s{sDBG+1}, 0xffff""")
    a(f"""
v_lshrrev_b32 v1, 6, v0
v_readfirstlane_b32 s{sW}, v1
s_getreg_b32 s{sXcc}, hwreg(HW_REG_XCC_ID)
s_and_b32 s{sXcc}, s{sXcc}, 15
s_cmp_lg_u32 s{sW}, 0
s_cbranch_scc1 L_role_wait
s_mov_b64 exec, 1
v_mov_b32 v1, 1
s_cmp_lg_u32 s{sXcc}, 0
s_cbranch_scc1 L_role_glob
buffer_atomic_add v1, off, s[{sDBG}:{sDBG+3}], 0 offset:{4*D_CNT0} sc0 sc1
s_waitcnt vmcnt(0)
v_readfirstlane_b32 s{sRole}, v1
s_cmp_lt_u32 s{sRole}, {nchain}
s_cbranch_scc1 L_role_done
L_role_glob:
v_mov_b32 v1, 1
buffer_atomic_add v1, off, s[{sDBG}:{sDBG+3}], 0 offset:{4*D_CNTG} sc0 sc1
s_waitcnt vmcnt(0)
v_readfirstlane_b32 s{sRole}, v1
s_add_u32 s{sRole}, s{sRole}, {nchain}
s_cmp_lt_u32 s{sRole}, {nwg}
s_cbranch_scc1 L_role_done
v_mov_b32 v1, 1
buffer_atomic_add v1, off, s[{sDBG}:{sDBG+3}], 0 offset:{4*D_CNT0} sc0 sc1
s_waitcnt vmcnt(0)
v_readfirstlane_b32 s{sRole}, v1
v_mov_b32 v1, 1
buffer_atomic_or v1, off, s[{sDBG}:{sDBG+3}], 0 offset:{4*D_OFFX} sc1
s_waitcnt vmcnt(0)
L_role_done:
v_mov_b32 v1, s{sRole}
v_mov_b32 v2, 0
ds_write_b32 v2, v1
s_waitcnt lgkmcnt(0)
s_mov_b64 exec, -1
L_role_wait:
s_barrier
v_mov_b32 v2, 0
ds_read_b32 v1, v2
s_waitcnt lgkmcnt(0)
v_readfirstlane_b32 s{sRole}, v1
s_barrier
""")

def prologue_simple(a, nwg, lab_exit):
    a(f"s_cmp_ge_u32 s2, {nwg}")
    a(f"s_cbranch_scc1 {lab_exit}")
    srd(a, sWS, KA["ws"], WS_BYTES)
    srd(a, sDBG, KA["dbg"], 256)
    a(f"""
v_lshrrev_b32 v1, 6, v0
v_readfirstlane_b32 s{sW}, v1
s_mov_b32 s{sRole}, s2
""")
```

```python
from asm import *
from layout import *

sWS, sT, sDBG = 4, 8, 12
sW, sRole, sXcc = 17, 97, 98
D_CNT0, D_CNTG, D_OFFX, D_CHB = 0, 1, 2, 3
D_ERR = 8

def prologue(a, nwg=256, nchain=32, lab_exit="L_exit"):
    import os
    xf = os.environ.get("XF", "").split(",")
    if "ts" in xf or "tl" in xf or "tq" in xf or "tz" in xf: a("s_memtime s[86:87]" if "tlc" in xf else "s_memrealtime s[86:87]" if ("tsr" in xf or "tl" in xf or "tq" in xf or "tz" in xf) else "s_memtime s[86:87]")
    a(f"s_cmp_ge_u32 s2, {nwg}")
    a(f"s_cbranch_scc1 {lab_exit}")
    a(f"""s_load_dwordx2 s[{sDBG}:{sDBG+1}], s[0:1], {KA["dbg"]}
s_load_dwordx2 s[{sWS}:{sWS+1}], s[0:1], {KA["ws"]}
s_load_dwordx2 s[{sT}:{sT+1}], s[0:1], {KA["Wo"]}
s_mov_b32 s{sWS+2}, {WS_BYTES}
s_mov_b32 s{sWS+3}, 0x00020000
s_mov_b32 s{sDBG+2}, 256
s_mov_b32 s{sDBG+3}, 0x00020000
s_waitcnt lgkmcnt(0)
s_and_b32 s{sWS+1}, s{sWS+1}, 0xffff
s_and_b32 s{sDBG+1}, s{sDBG+1}, 0xffff""")
    a(f"""
v_lshrrev_b32 v1, 6, v0
v_readfirstlane_b32 s{sW}, v1
s_getreg_b32 s{sXcc}, hwreg(HW_REG_XCC_ID)
s_and_b32 s{sXcc}, s{sXcc}, 15
s_cmp_lg_u32 s{sW}, 0
s_cbranch_scc1 L_role_wait
s_mov_b64 exec, 1
v_mov_b32 v1, 1
s_cmp_lg_u32 s{sXcc}, 0
s_cbranch_scc1 L_role_glob
buffer_atomic_add v1, off, s[{sDBG}:{sDBG+3}], 0 offset:{4*D_CNT0} sc0 sc1
s_waitcnt vmcnt(0)
v_readfirstlane_b32 s{sRole}, v1
s_cmp_lt_u32 s{sRole}, {nchain}
s_cbranch_scc1 L_role_done
L_role_glob:
v_mov_b32 v1, 1
buffer_atomic_add v1, off, s[{sDBG}:{sDBG+3}], 0 offset:{4*D_CNTG} sc0 sc1
s_waitcnt vmcnt(0)
v_readfirstlane_b32 s{sRole}, v1
s_add_u32 s{sRole}, s{sRole}, {nchain}
s_cmp_lt_u32 s{sRole}, {nwg}
s_cbranch_scc1 L_role_done
v_mov_b32 v1, 1
buffer_atomic_add v1, off, s[{sDBG}:{sDBG+3}], 0 offset:{4*D_CNT0} sc0 sc1
s_waitcnt vmcnt(0)
v_readfirstlane_b32 s{sRole}, v1
v_mov_b32 v1, 1
buffer_atomic_or v1, off, s[{sDBG}:{sDBG+3}], 0 offset:{4*D_OFFX} sc1
s_waitcnt vmcnt(0)
L_role_done:
v_mov_b32 v1, s{sRole}
v_mov_b32 v2, 0
ds_write_b32 v2, v1
s_waitcnt lgkmcnt(0)
s_mov_b64 exec, -1
L_role_wait:
s_barrier
v_mov_b32 v2, 0
ds_read_b32 v1, v2
s_waitcnt lgkmcnt(0)
v_readfirstlane_b32 s{sRole}, v1
s_barrier
""")

def prologue_simple(a, nwg, lab_exit):
    a(f"s_cmp_ge_u32 s2, {nwg}")
    a(f"s_cbranch_scc1 {lab_exit}")
    srd(a, sWS, KA["ws"], WS_BYTES)
    srd(a, sDBG, KA["dbg"], 256)
    a(f"""
v_lshrrev_b32 v1, 6, v0
v_readfirstlane_b32 s{sW}, v1
s_mov_b32 s{sRole}, s2
""")

def dstamp(a, k, vt, conds=(), base=86):
    import os
    if "tq" not in os.environ.get("XF", "").split(","): return
    lab = a.uid("L_ds")
    a(f"s_cmp_lg_u32 s{sW}, 0\ns_cbranch_scc1 {lab}")
    for (r, v) in conds:
        a(f"s_cmp_lg_u32 s{r}, {v}\ns_cbranch_scc1 {lab}")
    a(f"s_memrealtime s[88:89]\ns_waitcnt lgkmcnt(0)\ns_sub_u32 s88, s88, s{base}\nv_mov_b32 v{vt}, s88")
    a(f"buffer_store_dword v{vt}, off, s[{sDBG}:{sDBG+3}], 0 offset:{4*(9+k)} sc1\ns_waitcnt vmcnt(0)")
    a.label(lab)


def tz_on():
    import os
    return "tz" in os.environ.get("XF", "").split(",")

def zcap(a, r):
    if tz_on(): a(f"s_memrealtime s[{r}:{r+1}]\ns_waitcnt lgkmcnt(0)")

def zput(a, pairs, vt, conds=(), mx=False, wave0=True):
    if not tz_on(): return
    lab = a.uid("L_z")
    if wave0: a(f"s_cmp_lg_u32 s{sW}, 0\ns_cbranch_scc1 {lab}")
    for (r, v) in conds:
        a(f"s_cmp_lg_u32 s{r}, {v}\ns_cbranch_scc1 {lab}")
    a("s_mov_b64 exec, 1")
    for (r, w) in pairs:
        a(f"v_mov_b32 v{vt}, s{r}")
        if mx: a(f"buffer_atomic_umax v{vt}, off, s[{sDBG}:{sDBG+3}], 0 offset:{4*w} sc1")
        else: a(f"buffer_store_dword v{vt}, off, s[{sDBG}:{sDBG+3}], 0 offset:{4*w} sc1")
        a("s_waitcnt vmcnt(0)")
    a("s_mov_b64 exec, -1")
    a.label(lab)
```

```python
from asm import *
from layout import *
from common import *

sHP, sPar, sSeg, sA, sB, sCn, sTok, sMem, sPO, sQt, sC, sIt = 18, 19, 20, 21, 22, 23, 24, 25, 26, 27, 28, 29
sM0, sM1 = 40, 48
sT = 8
vL16, vOBw, vOBr, vOBr1 = 1, 2, 3, 4
S0, S1, S2, PT, PM, SUM, ONES, ONZ, T0, T1 = 8, 12, 16, 20, 24, 26, 30, 34, 36, 37
KMR, VMR, QR, KR, VR, ACC = 40, 56, 72, 88, 120, 152
OPK = 184
WREG = 36864
def wreg(t, hl, kb):
    i = (t * 2 + hl) * 4 + kb
    return 256 + 4 * i if i < 64 else 224 + 4 * (i - 64)
OB = [0, 16384]

def emit_follow_init(a):
    a(f"""
s_and_b32 s{sHP}, s96, 15
s_lshr_b32 s{sPar}, s96, 4
v_and_b32 v5, 63, v0
v_lshlrev_b32 v{vL16}, 4, v5
""")
    srd(a, sT, KA["Wo"], 32 * 128 * 576 * 2)
    for i in range(9):
        a(f"""v_add_u32 v6, {64*i}, v5
v_mul_u32_u24 v7, 3641, v6
v_lshrrev_b32 v7, 16, v7
v_mul_u32_u24 v8, 18, v7
v_sub_u32 v8, v6, v8
v_mul_u32_u24 v7, 1152, v7
v_lshl_add_u32 v{10+i}, v8, 4, v7""")
    a(f"""s_mul_i32 s{sA}, s{sHP}, {2*147456}
s_mul_i32 s{sB}, s{sW}, 288
s_add_u32 s{sA}, s{sA}, s{sB}
s_mul_i32 s{sB}, s{sW}, {WREG}
v_lshrrev_b32 v6, 4, v5
v_lshlrev_b32 v6, 2, v6
v_bfe_u32 v7, v5, 2, 2
v_add_u32 v6, v6, v7
v_mul_u32_u24 v6, 288, v6
v_and_b32 v7, 3, v5
v_lshl_add_u32 v6, v7, 3, v6
v_add_u32 v6, s{sB}, v6
""")
    for hl in range(2):
        for r in range(4):
            for i in range(9):
                a(f"s_add_u32 m0, s{sB}, {(r*9+i)*1024}")
                a(f"buffer_load_dwordx4 v{10+i}, s[{sT}:{sT+3}], s{sA} offen lds")
            a(f"s_add_u32 s{sA}, s{sA}, {32*1152}")
        for kb in range(4):
            a(f"s_waitcnt vmcnt({27 - 9*kb})")
            for t in range(9):
                for half in range(2):
                    a(f"ds_read_b64_tr_b16 {vr(wreg(t,hl,kb) + 2*half, 2)}, v6 offset:{(32*kb + 16*half)*288 + t*32}")
            a("s_waitcnt lgkmcnt(0)")
    a(f"""
s_and_b32 s{sQt}, s{sW}, 1
s_lshr_b32 s{sA}, s{sW}, 1
s_lshl_b32 s{sB}, s{sHP}, 1
s_add_u32 s{sB}, s{sB}, s{sA}           ; head
s_lshl_b32 s{sCn}, s{sPar}, 5
s_add_u32 s{sCn}, s{sCn}, s{sB}
s_lshl_b32 s{sTok}, s{sCn}, 13
s_lshl_b32 s{sMem}, s{sCn}, 12
s_lshl_b32 s{sCn}, s{sPar}, 4
s_add_u32 s{sCn}, s{sCn}, s{sHP}
s_mul_i32 s{sCn}, s{sCn}, 36864
s_mul_i32 s{sB}, s{sW}, 9216
s_add_u32 s{sCn}, s{sCn}, s{sB}
s_add_u32 s{sPO}, s{sCn}, {PO}
s_lshl_b32 s{sCn}, s{sW}, 12
v_add_u32 v{vOBw}, s{sCn}, v{vL16}
s_mov_b32 s{sC}, 0x3e0293ee
s_mov_b32 s{sSeg}, s{sPar}
; masks : M_i = (4g+i <= n)
v_and_b32 v6, 15, v5
v_lshrrev_b32 v7, 4, v5
v_lshlrev_b32 v7, 2, v7
""")
    for i in range(4):
        a(f"v_add_u32 v8, {i}, v7")
        a(f"v_cmp_le_u32 s[{sM0+2*i}:{sM0+2*i+1}], v8, v6")
    a(f"s_cmp_eq_u32 s{sQt}, 0")
    for i in range(4):
        a(f"s_cselect_b64 s[{sM1+2*i}:{sM1+2*i+1}], 0, s[{sM0+2*i}:{sM0+2*i+1}]")
        a(f"s_cselect_b64 s[{sM0+2*i}:{sM0+2*i+1}], s[{sM0+2*i}:{sM0+2*i+1}], -1")
    for r in range(ONES, ONES + 5): a(f"v_mov_b32 v{r}, 0x3f803f80")
    a(f"v_mov_b32 v{ONZ+1}, 0")
    a("s_barrier")

def tok_loads(a):
    WS = f"s[{sWS}:{sWS+3}]"
    a(f"s_add_u32 s{sA}, s{sTok}, {KT}")
    a(f"s_add_u32 s{sB}, s{sTok}, {QT}")
    a(f"s_lshl_b32 s{sCn}, s{sQt}, 10")
    a(f"s_add_u32 s{sB}, s{sB}, s{sCn}")
    for kb in range(4):
        a(f"buffer_load_dwordx4 {vr(QR+4*kb,4)}, v{vL16}, {WS}, s{sB} offen")
        a(f"buffer_load_dwordx4 {vr(KR+8*kb,4)}, v{vL16}, {WS}, s{sA} offen")
        a(f"buffer_load_dwordx4 {vr(KR+8*kb+4,4)}, v{vL16}, {WS}, s{sA} offen offset:1024")
        if kb < 3:
            a(f"s_add_u32 s{sA}, s{sA}, 2048")
            a(f"s_add_u32 s{sB}, s{sB}, 2048")
    a(f"s_add_u32 s{sA}, s{sTok}, {VT}")
    for kb in range(4):
        a(f"buffer_load_dwordx4 {vr(VR+8*kb,4)}, v{vL16}, {WS}, s{sA} offen")
        a(f"buffer_load_dwordx4 {vr(VR+8*kb+4,4)}, v{vL16}, {WS}, s{sA} offen offset:1024")
        if kb < 3: a(f"s_add_u32 s{sA}, s{sA}, 2048")
    a(f"s_add_u32 s{sTok}, s{sTok}, {2*32*8192}")

def emit_follow(a, lab_end, fused=None):
    WS = f"s[{sWS}:{sWS+3}]"
    emit_follow_init(a)
    if fused: fused["wait_tok"](a, 0)
    tok_loads(a)
    a("s_waitcnt vmcnt(0)")
    a(f"s_mov_b32 s{sIt}, 0")
    def item(buf):
        if fused: fused["wait_mem"](a)
        zcap(a, 60)
        a(f"s_add_u32 s{sA}, s{sMem}, {KM}")
        a(f"s_add_u32 s{sB}, s{sMem}, {VM}")
        for kb in range(4):
            a(f"buffer_load_dwordx4 {vr(KMR+4*kb,4)}, v{vL16}, {WS}, s{sA} offen offset:{1024*kb}")
        for kb in range(4):
            a(f"buffer_load_dwordx4 {vr(VMR+4*kb,4)}, v{vL16}, {WS}, s{sB} offen offset:{1024*kb}")
        a(f"s_add_u32 s{sMem}, s{sMem}, {2*32*4096}")
        a("s_waitcnt vmcnt(17)")
        for kb in range(4):
            c1 = "0" if kb == 0 else vr(S1, 4); c2 = "0" if kb == 0 else vr(S2, 4)
            a(f"v_mfma_f32_16x16x32_bf16 {vr(S1,4)}, {vr(KR+8*kb,4)}, {vr(QR+4*kb,4)}, {c1}")
            a(f"v_mfma_f32_16x16x32_bf16 {vr(S2,4)}, {vr(KR+8*kb+4,4)}, {vr(QR+4*kb,4)}, {c2}")
        a("s_waitcnt vmcnt(4)")
        for kb in range(4):
            c0 = "0" if kb == 0 else vr(S0, 4)
            a(f"v_mfma_f32_16x16x32_bf16 {vr(S0,4)}, {vr(KMR+4*kb,4)}, {vr(QR+4*kb,4)}, {c0}")
        a(f"v_mov_b32 v{T1}, 0xce6e6b28")
        for i in range(4): a(f"v_cndmask_b32 v{S1+i}, v{T1}, v{S1+i}, s[{sM0+2*i}:{sM0+2*i+1}]")
        for i in range(4): a(f"v_cndmask_b32 v{S2+i}, v{T1}, v{S2+i}, s[{sM1+2*i}:{sM1+2*i+1}]")
        a(f"""v_max3_f32 v{T0}, v{S1}, v{S1+1}, v{S1+2}
v_max3_f32 v{T1}, v{S1+3}, v{S2}, v{S2+1}
v_max3_f32 v{T0}, v{T0}, v{S2+2}, v{S2+3}
v_max3_f32 v{T1}, v{T1}, v{S0}, v{S0+1}
v_max_f32 v{T0}, v{T0}, v{T1}
v_mov_b32 v{T1}, v{T0}
v_permlane16_swap_b32 v{T0}, v{T1}
v_max_f32 v{T0}, v{T0}, v{T1}
v_mov_b32 v{T1}, v{T0}
v_permlane32_swap_b32 v{T0}, v{T1}
v_max_f32 v{T0}, v{T0}, v{T1}
v_mul_f32 v{T0}, s{sC}, v{T0}""")
        vals = [S0, S0 + 1] + [S1 + i for i in range(4)] + [S2 + i for i in range(4)]
        for r in vals: a(f"v_fma_f32 v{r}, v{r}, s{sC}, -v{T0}")
        for r in vals: a(f"v_exp_f32 v{r}, v{r}")
        a(f"""v_cvt_pk_bf16_f32 v{PT}, v{S1}, v{S1+1}
v_cvt_pk_bf16_f32 v{PT+1}, v{S1+2}, v{S1+3}
v_cvt_pk_bf16_f32 v{PT+2}, v{S2}, v{S2+1}
v_cvt_pk_bf16_f32 v{PT+3}, v{S2+2}, v{S2+3}
v_cvt_pk_bf16_f32 v{PM}, v{S0}, v{S0+1}
v_mov_b32 v{PM+1}, v{PM}""")
        a(f"v_mfma_f32_16x16x32_bf16 {vr(SUM,4)}, {vr(ONES,4)}, {vr(PT,4)}, 0")
        for et in range(8):
            a(f"v_mfma_f32_16x16x32_bf16 {vr(ACC+4*et,4)}, {vr(VR+4*et,4)}, {vr(PT,4)}, 0")
        a("s_waitcnt vmcnt(0)")
        a(f"v_mfma_f32_16x16x16_bf16 {vr(SUM,4)}, {vr(ONZ,2)}, {vr(PM,2)}, {vr(SUM,4)}")
        for et in range(8):
            a(f"v_mfma_f32_16x16x16_bf16 {vr(ACC+4*et,4)}, {vr(VMR+2*et,2)}, {vr(PM,2)}, {vr(ACC+4*et,4)}")
        lab = a.uid("L_fnp")
        a(f"s_cmp_ge_u32 s{sIt}, 31")
        a(f"s_cbranch_scc1 {lab}")
        if fused: fused["wait_tok"](a, 1)
        tok_loads(a)
        a.label(lab)
        a(f"v_rcp_f32 v{T0}, v{SUM}")
        for et in range(8):
            for i in range(4): a(f"v_mul_f32 v{ACC+4*et+i}, v{ACC+4*et+i}, v{T0}")
            a(f"v_cvt_pk_bf16_f32 v{OPK+2*et}, v{ACC+4*et}, v{ACC+4*et+1}")
            a(f"v_cvt_pk_bf16_f32 v{OPK+2*et+1}, v{ACC+4*et+2}, v{ACC+4*et+3}")
            if et & 1:
                a(f"ds_write_b128 v{vOBw}, {vr(OPK+4*(et>>1),4)} offset:{OB[buf] + 1024*(et>>1)}")
        a("s_waitcnt lgkmcnt(0)")
        a("s_barrier")
        zcap(a, 62)
        if fused: fused["sig"](a)
        lg = Cnt(a, "lgkmcnt")
        seq = [(hl, kb, qt) for hl in range(2) for kb in range(4) for qt in range(2)]
        def rd(n):
            hl, kb, qt = seq[n]
            lg.op(f"ds_read_b128 {vr(KMR+4*(n%4),4)}, v{vL16} offset:{OB[buf] + (hl*2+qt)*4096 + kb*1024}", f"o{n}")
        for n in range(3): rd(n)
        for n in range(16):
            hl, kb, qt = seq[n]
            lg.wait(f"o{n}")
            for t in range(9):
                d = ACC + 8 * t + 4 * qt
                c = "0" if n < 2 else vr(d, 4)
                a(f"v_mfma_f32_16x16x32_bf16 {vr(d,4)}, {vr(wreg(t,hl,kb),4)}, {vr(KMR+4*(n%4),4)}, {c}")
                if t == 0 and n + 3 < 16: rd(n + 3)
        for t in range(9):
            d = ACC + 8 * t; e = 8 + 4 * (t % 4)
            for i in range(4): a(f"v_cvt_pk_bf16_f32 v{e+i}, v{d+2*i}, v{d+2*i+1}")
            a(f"s_add_u32 s{sA}, s{sPO}, {1024*t}")
            a(f"buffer_store_dwordx4 {vr(e,4)}, v{vL16}, {WS}, s{sA} offen sc1")
        zcap(a, 64)
        a(f"s_add_u32 s{sPO}, s{sPO}, {2*16*36864}")
        a(f"s_add_u32 s{sIt}, s{sIt}, 1")
        a(f"s_add_u32 s{sSeg}, s{sSeg}, 2")
    a.label("L_fol_loop")
    item(0)
    item(1)
    a(f"s_cmp_lt_u32 s{sIt}, 32")
    a("s_cbranch_scc1 L_fol_loop")
    a("s_waitcnt vmcnt(0)")
    if fused: fused["fin"](a)
    zcap(a, 66)
    zput(a, [(60, 7), (62, 9), (64, 10), (66, 11)], 5, [(96, 16)])
    zput(a, [(66, 14)], 5, [(96, 0)])
    a(f"s_branch {lab_end}")
```

```python
import sys
sys.path.insert(0, 'gen')
from asm import *
from layout import *
from common import *
import ln, qkv, ffn, follow, final
import os, importlib
chain = importlib.import_module(os.environ.get("CH", "chain3"))
if os.environ.get("XF"): chain.X.update(x for x in os.environ["XF"].split(",") if x)

D_LN = 32
FL_CH, FL_QK, FL_FO, FL_FF = 0, 32, 128, 160
POLL_MAX = 400000
WS = f"s[{sWS}:{sWS+3}]"
DBGS = f"s[{sDBG}:{sDBG+3}]"
sP = 94
sQ, sQ2 = 92, 93

def bounded(a, retry):
    a(f"s_add_u32 s{sP}, s{sP}, 1")
    a(f"s_cmp_lt_u32 s{sP}, {POLL_MAX}")
    a(f"s_cbranch_scc1 {retry}")
    a("s_branch L_fail")

def wait_ln(a, vt):
    l1, l2 = a.uid("L_wl"), a.uid("L_wl")
    a(f"s_cmp_lg_u32 s{sW}, 0")
    a(f"s_cbranch_scc1 {l2}")
    a(f"s_mov_b32 s{sP}, 0")
    a.label(l1)
    a(f"buffer_load_dword v{vt}, off, {DBGS}, 0 offset:{4*D_LN} sc1")
    a("s_waitcnt vmcnt(0)")
    a(f"v_readfirstlane_b32 s{sQ}, v{vt}")
    a(f"s_cmp_ge_u32 s{sQ}, 64")
    a(f"s_cbranch_scc1 {l2}")
    bounded(a, l1)
    a.label(l2)
    a("s_barrier")

def flag_store(a, vt, sval, soff, wave=0):
    l = a.uid("L_fs")
    a(f"s_cmp_lg_u32 s{sW}, {wave}")
    a(f"s_cbranch_scc1 {l}")
    a(f"v_mov_b32 v{vt}, {sval}")
    a("s_mov_b64 exec, 1")
    a(f"buffer_store_dword v{vt}, off, {WS}, s{soff} sc1")
    a("s_mov_b64 exec, -1")
    a.label(l)

def emit_ln_role(a, sSeg):
    ln.emit_ln(a, sSeg)
    l = a.uid("L_zf")
    a(f"s_cmp_lg_u32 s{sW}, 0")
    a(f"s_cbranch_scc1 {l}")
    a(f"s_lshl_b32 s{sQ}, s{sSeg}, 10")
    a(f"s_add_u32 s{sQ}, s{sQ}, {FLAGS}")
    a("v_mov_b32 v8, 0\nv_mov_b32 v9, 0\nv_mov_b32 v10, 0\nv_mov_b32 v11, 0")
    a(f"buffer_store_dwordx4 v[8:11], v6, {WS}, s{sQ} offen sc1")
    a("s_waitcnt vmcnt(0)")
    a.label(l)
    a("s_barrier")
    l = a.uid("L_lna")
    a(f"s_cmp_lg_u32 s{sW}, 0")
    a(f"s_cbranch_scc1 {l}")
    a("s_mov_b64 exec, 1")
    a("v_mov_b32 v8, 1")
    a(f"buffer_atomic_add v8, off, {DBGS}, 0 offset:{4*D_LN} sc1")
    a("s_mov_b64 exec, -1")
    a.label(l)

sQF = 95
def qkv_hooks():
    def wait_xn(a):
        a(f"s_add_u32 s{sQF}, s96, {FL_QK}")
        a(f"s_lshl_b32 s{sQF}, s{sQF}, 8")
        a(f"s_add_u32 s{sQF}, s{sQF}, {FLAGS}")
        dstamp(a, 0, qkv.vTmp, [(96, 0)])
        wait_ln(a, qkv.vTmp)
        dstamp(a, 1, qkv.vTmp, [(96, 0)])
    def sig(a):
        a(f"s_sub_u32 s{sQ}, s{qkv.sSeg}, 1")
        a(f"s_max_i32 s{sQ}, s{sQ}, 0")
        flag_store(a, qkv.vTmp, f"s{sQ}", sQF)
        dstamp(a, 2, qkv.vTmp, [(96, 0), (qkv.sSeg, 2)])
    def fin(a):
        a("s_barrier")
        flag_store(a, qkv.vTmp, "32", sQF)
    return dict(wait_xn=wait_xn, sig=sig, fin=fin)

def ffn_hooks():
    def wait_xn(a):
        a(f"s_add_u32 s{sQF}, s96, {FL_FF}")
        a(f"s_lshl_b32 s{sQF}, s{sQF}, 8")
        a(f"s_add_u32 s{sQF}, s{sQF}, {FLAGS}")
        wait_ln(a, 16)
    def fin(a):
        a("s_barrier")
        flag_store(a, 16, "1", sQF)
    return dict(wait_xn=wait_xn, fin=fin)

vFT, vFM, vF0 = 5, 6, 38
sKT_, sKM_ = 90, 91
def follow_hooks():
    F = follow
    def wait_tok(a, which):
        if which == 0:
            a(f"s_add_u32 s{sQF}, s96, {FL_FO}")
            a(f"s_lshl_b32 s{sQF}, s{sQF}, 8")
            a(f"s_add_u32 s{sQF}, s{sQF}, {FLAGS}")
            a(f"""s_mul_i32 s{sQ}, s{F.sPar}, 48
s_add_u32 s{sQ}, s{sQ}, s{F.sHP}
s_add_u32 s{sQ}, s{sQ}, {FL_QK}
s_lshl_b32 s{sQ}, s{sQ}, 8
s_add_u32 s{sQ}, s{sQ}, {FLAGS}
v_and_b32 v{vF0}, 63, v0
v_cmp_gt_u32 vcc, 3, v{vF0}
v_cndmask_b32 v{vF0}, 0, v{vF0}, vcc
v_lshlrev_b32 v{vF0}, 12, v{vF0}
v_add_u32 v{vFT}, s{sQ}, v{vF0}
s_lshl_b32 s{sQ}, s{F.sHP}, 1
s_lshr_b32 s{sQ2}, s{sW}, 1
s_add_u32 s{sQ}, s{sQ}, s{sQ2}
s_add_u32 s{sQ}, s{sQ}, {FL_CH}
s_lshl_b32 s{sQ}, s{sQ}, 8
s_add_u32 s{sQ}, s{sQ}, {FLAGS}
v_mov_b32 v{vFM}, s{sQ}
s_mov_b32 s{sKT_}, 0
s_mov_b32 s{sKM_}, 0""")
            wait_ln(a, vF0)
            a(f"s_mov_b32 s{sQ2}, 1")
        else:
            a(f"s_add_u32 s{sQ2}, s{F.sIt}, 2")
        l1, l2 = a.uid("L_wt"), a.uid("L_wt")
        a(f"s_cmp_ge_u32 s{sKT_}, s{sQ2}")
        a(f"s_cbranch_scc1 {l2}")
        a(f"s_mov_b32 s{sP}, 0")
        a.label(l1)
        a(f"buffer_load_dword v{vF0}, v{vFT}, {WS}, 0 offen sc1")
        a("s_waitcnt vmcnt(0)")
        a(f"v_readlane_b32 s{sKT_}, v{vF0}, 0")
        a(f"v_readlane_b32 s{sQ}, v{vF0}, 1")
        a(f"s_min_u32 s{sKT_}, s{sKT_}, s{sQ}")
        a(f"v_readlane_b32 s{sQ}, v{vF0}, 2")
        a(f"s_min_u32 s{sKT_}, s{sKT_}, s{sQ}")
        a(f"s_cmp_ge_u32 s{sKT_}, s{sQ2}")
        a(f"s_cbranch_scc1 {l2}")
        bounded(a, l1)
        a.label(l2)
    def wait_mem(a):
        l1, l2 = a.uid("L_wm"), a.uid("L_wm")
        a(f"s_cmp_gt_u32 s{sKM_}, s{F.sSeg}")
        a(f"s_cbranch_scc1 {l2}")
        a(f"s_mov_b32 s{sP}, 0")
        a.label(l1)
        a(f"buffer_load_dword v{vF0}, v{vFM}, {WS}, 0 offen sc1")
        a("s_waitcnt vmcnt(0)")
        a(f"v_readfirstlane_b32 s{sKM_}, v{vF0}")
        a(f"s_cmp_gt_u32 s{sKM_}, s{F.sSeg}")
        a(f"s_cbranch_scc1 {l2}")
        bounded(a, l1)
        a.label(l2)
    def sig(a):
        flag_store(a, vF0, f"s{F.sIt}", sQF)
    def fin(a):
        a("s_barrier")
        flag_store(a, vF0, "32", sQF)
    return dict(wait_tok=wait_tok, wait_mem=wait_mem, sig=sig, fin=fin)

def emit_final_role(a):
    a.label("L_final")
    if tz_on(): a("s_mov_b32 s62, 0")
    final.emit_final_init(a)
    sTask, sNeed = 30, 31
    vFl, vNd, vT = 124, 125, 126
    a(f"""s_lshl_b32 s{sTask}, s96, 2
s_add_u32 s{sTask}, s{sTask}, s{sW}""")
    a.label("L_fin_loop")
    a(f"""s_mul_i32 s{sQ}, s{sTask}, 1821
s_lshr_b32 s{sQ}, s{sQ}, 16                ; segment
s_lshr_b32 s{sNeed}, s{sQ}, 1
s_add_u32 s{sNeed}, s{sNeed}, 1
s_and_b32 s{sQ2}, s{sQ}, 1
s_lshl_b32 s{sQ2}, s{sQ2}, 4
s_add_u32 s{sQ2}, s{sQ2}, {FL_FO}
s_and_b32 s{sQ}, s{sQ}, 0xfffffffc
s_add_u32 s{sQ}, s{sQ}, {FL_FF - 16}
v_and_b32 v{vT}, 63, v0
v_mov_b32 v{vFl}, s{sQ2}
v_mov_b32 v{vNd}, s{sQ}
v_cmp_gt_u32 vcc, 16, v{vT}
v_cndmask_b32 v{vFl}, v{vNd}, v{vFl}, vcc
v_mov_b32 v{vNd}, s{sNeed}
v_cndmask_b32 v{vNd}, 1, v{vNd}, vcc
v_cmp_gt_u32 vcc, 20, v{vT}
v_cndmask_b32 v{vT}, 0, v{vT}, vcc
v_add_u32 v{vFl}, v{vFl}, v{vT}
v_mov_b32 v{vT}, s{sQ2}
v_cndmask_b32 v{vFl}, v{vT}, v{vFl}, vcc
v_mov_b32 v{vT}, s{sNeed}
v_cndmask_b32 v{vNd}, v{vT}, v{vNd}, vcc
v_lshlrev_b32 v{vFl}, 8, v{vFl}
v_add_u32 v{vFl}, {FLAGS}, v{vFl}
s_add_u32 s{sQ}, s{sQ}, 16
s_lshl_b32 s{sQ}, s{sQ}, 8
s_add_u32 s{sQ}, s{sQ}, {FLAGS}
s_mov_b32 s{sP}, 0""")
    a.label("L_fin_p1")
    a("s_mov_b64 exec, 1")
    a(f"buffer_load_dword v{vT}, off, {WS}, s{sQ} sc1")
    a("s_mov_b64 exec, -1")
    a("s_waitcnt vmcnt(0)")
    a(f"v_readfirstlane_b32 s{sQ2}, v{vT}")
    a(f"s_cmp_ge_u32 s{sQ2}, 1")
    a("s_cbranch_scc1 L_fin_p2")
    bounded(a, "L_fin_p1")
    a.label("L_fin_p2")
    a(f"buffer_load_dword v{vT}, v{vFl}, {WS}, 0 offen sc1")
    a("s_waitcnt vmcnt(0)")
    a(f"v_cmp_lt_u32 vcc, v{vT}, v{vNd}")
    a("s_cbranch_vccz L_fin_go")
    bounded(a, "L_fin_p2")
    a.label("L_fin_go")
    if tz_on():
        zcap(a, 60)
        a(f"s_cmp_ge_u32 s{sTask}, {63*36}\ns_cselect_b32 s62, s60, s62")
    final.emit_final_task(a, sTask)
    a(f"s_add_u32 s{sTask}, s{sTask}, 768")
    a(f"s_cmp_lt_u32 s{sTask}, 2304")
    a("s_cbranch_scc1 L_fin_loop")
    a("s_waitcnt vmcnt(0)")
    zcap(a, 64)
    zput(a, [(62, 12), (64, 13)], 5, mx=True, wave0=False)
    a("s_branch L_exit")

def build(tm=False):
    a = Asm()
    prologue(a)
    if tm: a("s_memtime s[88:89]")
    zput(a, [(86, 15)], 5, mx=True)
    a(f"s_cmp_lt_u32 s{sRole}, 32")
    a("s_cbranch_scc1 L_chain")
    a(f"s_sub_u32 s96, s{sRole}, 32")
    a("s_cmp_lt_u32 s96, 64")
    a("s_cbranch_scc1 L_r_ln")
    a("s_cmp_lt_u32 s96, 160")
    a("s_cbranch_scc1 L_r_qkv")
    a("s_sub_u32 s96, s96, 160")
    ffn.emit_ffn(a, "L_r_ffn_end", ffn_hooks())
    a.label("L_r_ffn_end")
    a("s_add_u32 s96, s96, 128")
    a("s_branch L_final")
    a.label("L_r_qkv")
    a("s_sub_u32 s96, s96, 64")
    qkv.emit_qkv(a, "L_r_qkv_end", qkv_hooks())
    a.label("L_r_qkv_end")
    a("s_add_u32 s96, s96, 32")
    a("s_branch L_final")
    a.label("L_r_ln")
    a("s_mov_b32 s30, s96")
    emit_ln_role(a, 30)
    dstamp(a, 3, 8, [(96, 0)])
    a("s_cmp_lt_u32 s96, 32")
    a("s_cbranch_scc1 L_r_fol")
    a("s_sub_u32 s96, s96, 32")
    wait_ln(a, 8)
    a("s_branch L_final")
    a.label("L_r_fol")
    follow.emit_follow(a, "L_exit", follow_hooks())
    emit_final_role(a)
    chain.emit_chain(a, tm, fused=True)
    a.label("L_fail")
    a(f"""s_mov_b64 exec, 1
v_mov_b32 v78, 1
buffer_atomic_add v78, off, s[{sDBG}:{sDBG+3}], 0 offset:{4*D_ERR} sc1
s_waitcnt vmcnt(0)""")
    a.label("L_exit")
    a("s_endpgm")
    name = NAME + "_kernel"
    txt = HEADER.format(launch="; @launch grid=(256,1,1) block=(256,1,1) lds=163840") + kernel_open(name) + a.finalize() \
        + '.section .rodata,"a"\n.p2align 6\n' + kernel_desc(name)
    return txt

if __name__ == "__main__":
    out = sys.argv[1] if len(sys.argv) > 1 else f'cdna_kernels/{NAME}.s'
    tm = len(sys.argv) > 2 and sys.argv[2] == "tm"
    open(out, 'w').write(build(tm))
```

```python
import sys
sys.path.insert(0, 'gen')
from asm import *
from layout import *
from common import *
import ln, qkv, ffn, follow, final
import os, importlib
chain = importlib.import_module(os.environ.get("CH", "chain3"))
if os.environ.get("XF"): chain.X.update(x for x in os.environ["XF"].split(",") if x)

D_LN = 32
FL_CH, FL_QK, FL_FO, FL_FF = 0, 32, 128, 160
POLL_MAX = int(os.environ.get("POLLF", "400000"))
WS = f"s[{sWS}:{sWS+3}]"
DBGS = f"s[{sDBG}:{sDBG+3}]"
sP = 94
sQ, sQ2 = 92, 93

def bounded(a, retry):
    a(f"s_add_u32 s{sP}, s{sP}, 1")
    a(f"s_cmp_lt_u32 s{sP}, {POLL_MAX}")
    a(f"s_cbranch_scc1 {retry}")
    a("s_branch L_fail")

def wait_ln(a, vt):
    l1, l2 = a.uid("L_wl"), a.uid("L_wl")
    a(f"s_cmp_lg_u32 s{sW}, 0")
    a(f"s_cbranch_scc1 {l2}")
    a(f"s_mov_b32 s{sP}, 0")
    a.label(l1)
    a(f"buffer_load_dword v{vt}, off, {DBGS}, 0 offset:{4*D_LN} sc1")
    a("s_waitcnt vmcnt(0)")
    a(f"v_readfirstlane_b32 s{sQ}, v{vt}")
    a(f"s_cmp_ge_u32 s{sQ}, 64")
    a(f"s_cbranch_scc1 {l2}")
    bounded(a, l1)
    a.label(l2)
    a("s_barrier")

def flag_store(a, vt, sval, soff, wave=0):
    l = a.uid("L_fs")
    a(f"s_cmp_lg_u32 s{sW}, {wave}")
    a(f"s_cbranch_scc1 {l}")
    a(f"v_mov_b32 v{vt}, {sval}")
    a("s_mov_b64 exec, 1")
    a(f"buffer_store_dword v{vt}, off, {WS}, s{soff} sc1")
    a("s_mov_b64 exec, -1")
    a.label(l)

def emit_ln_role(a, sSeg):
    ln.emit_ln(a, sSeg)
    l = a.uid("L_zf")
    a(f"s_cmp_lg_u32 s{sW}, 0")
    a(f"s_cbranch_scc1 {l}")
    a(f"s_lshl_b32 s{sQ}, s{sSeg}, 10")
    a(f"s_add_u32 s{sQ}, s{sQ}, {FLAGS}")
    a("v_mov_b32 v8, 0\nv_mov_b32 v9, 0\nv_mov_b32 v10, 0\nv_mov_b32 v11, 0")
    a(f"buffer_store_dwordx4 v[8:11], v6, {WS}, s{sQ} offen sc1")
    a("s_waitcnt vmcnt(0)")
    a.label(l)
    a("s_barrier")
    l = a.uid("L_lna")
    a(f"s_cmp_lg_u32 s{sW}, 0")
    a(f"s_cbranch_scc1 {l}")
    a("s_mov_b64 exec, 1")
    a("v_mov_b32 v8, 1")
    a(f"buffer_atomic_add v8, off, {DBGS}, 0 offset:{4*D_LN} sc1")
    a("s_mov_b64 exec, -1")
    a.label(l)

sQF = 95
def qkv_hooks():
    def wait_xn(a):
        a(f"s_add_u32 s{sQF}, s96, {FL_QK}")
        a(f"s_lshl_b32 s{sQF}, s{sQF}, 8")
        a(f"s_add_u32 s{sQF}, s{sQF}, {FLAGS}")
        dstamp(a, 0, qkv.vTmp, [(96, 0)])
        wait_ln(a, qkv.vTmp)
        dstamp(a, 1, qkv.vTmp, [(96, 0)])
    def sig(a):
        a(f"s_sub_u32 s{sQ}, s{qkv.sSeg}, 1")
        a(f"s_max_i32 s{sQ}, s{sQ}, 0")
        flag_store(a, qkv.vTmp, f"s{sQ}", sQF)
        dstamp(a, 2, qkv.vTmp, [(96, 0), (qkv.sSeg, 2)])
    def fin(a):
        a("s_barrier")
        flag_store(a, qkv.vTmp, "32", sQF)
    return dict(wait_xn=wait_xn, sig=sig, fin=fin)

def ffn_hooks():
    def wait_xn(a):
        a(f"s_add_u32 s{sQF}, s96, {FL_FF}")
        a(f"s_lshl_b32 s{sQF}, s{sQF}, 8")
        a(f"s_add_u32 s{sQF}, s{sQF}, {FLAGS}")
        wait_ln(a, 16)
    def fin(a):
        a("s_barrier")
        flag_store(a, 16, "1", sQF)
    return dict(wait_xn=wait_xn, fin=fin)

vFT, vFM, vF0 = 5, 6, 38
sKT_, sKM_ = 90, 91
def follow_hooks():
    F = follow
    def wait_tok(a, which):
        if which == 0:
            a(f"s_add_u32 s{sQF}, s96, {FL_FO}")
            a(f"s_lshl_b32 s{sQF}, s{sQF}, 8")
            a(f"s_add_u32 s{sQF}, s{sQF}, {FLAGS}")
            a(f"""s_mul_i32 s{sQ}, s{F.sPar}, 48
s_add_u32 s{sQ}, s{sQ}, s{F.sHP}
s_add_u32 s{sQ}, s{sQ}, {FL_QK}
s_lshl_b32 s{sQ}, s{sQ}, 8
s_add_u32 s{sQ}, s{sQ}, {FLAGS}
v_and_b32 v{vF0}, 63, v0
v_cmp_gt_u32 vcc, 3, v{vF0}
v_cndmask_b32 v{vF0}, 0, v{vF0}, vcc
v_lshlrev_b32 v{vF0}, 12, v{vF0}
v_add_u32 v{vFT}, s{sQ}, v{vF0}
s_lshl_b32 s{sQ}, s{F.sHP}, 1
s_lshr_b32 s{sQ2}, s{sW}, 1
s_add_u32 s{sQ}, s{sQ}, s{sQ2}
s_add_u32 s{sQ}, s{sQ}, {FL_CH}
s_lshl_b32 s{sQ}, s{sQ}, 8
s_add_u32 s{sQ}, s{sQ}, {FLAGS}
v_mov_b32 v{vFM}, s{sQ}
s_mov_b32 s{sKT_}, 0
s_mov_b32 s{sKM_}, 0""")
            wait_ln(a, vF0)
            a(f"s_mov_b32 s{sQ2}, 1")
        else:
            a(f"s_add_u32 s{sQ2}, s{F.sIt}, 2")
        l1, l2 = a.uid("L_wt"), a.uid("L_wt")
        a(f"s_cmp_ge_u32 s{sKT_}, s{sQ2}")
        a(f"s_cbranch_scc1 {l2}")
        a(f"s_mov_b32 s{sP}, 0")
        a.label(l1)
        a(f"buffer_load_dword v{vF0}, v{vFT}, {WS}, 0 offen sc1")
        a("s_waitcnt vmcnt(0)")
        a(f"v_readlane_b32 s{sKT_}, v{vF0}, 0")
        a(f"v_readlane_b32 s{sQ}, v{vF0}, 1")
        a(f"s_min_u32 s{sKT_}, s{sKT_}, s{sQ}")
        a(f"v_readlane_b32 s{sQ}, v{vF0}, 2")
        a(f"s_min_u32 s{sKT_}, s{sKT_}, s{sQ}")
        a(f"s_cmp_ge_u32 s{sKT_}, s{sQ2}")
        a(f"s_cbranch_scc1 {l2}")
        bounded(a, l1)
        a.label(l2)
    def wait_mem(a):
        l1, l2 = a.uid("L_wm"), a.uid("L_wm")
        a(f"s_cmp_gt_u32 s{sKM_}, s{F.sSeg}")
        a(f"s_cbranch_scc1 {l2}")
        a(f"s_mov_b32 s{sP}, 0")
        a.label(l1)
        a(f"buffer_load_dword v{vF0}, v{vFM}, {WS}, 0 offen sc1")
        a("s_waitcnt vmcnt(0)")
        a(f"v_readfirstlane_b32 s{sKM_}, v{vF0}")
        a(f"s_cmp_gt_u32 s{sKM_}, s{F.sSeg}")
        a(f"s_cbranch_scc1 {l2}")
        bounded(a, l1)
        a.label(l2)
    def sig(a):
        flag_store(a, vF0, f"s{F.sIt}", sQF)
    def fin(a):
        a("s_barrier")
        flag_store(a, vF0, "32", sQF)
    return dict(wait_tok=wait_tok, wait_mem=wait_mem, sig=sig, fin=fin)

def emit_final_role(a):
    a.label("L_final")
    if "nofin" in os.environ.get("XF", "").split(","): a("s_branch L_exit")
    if tz_on(): a("s_mov_b32 s62, 0")
    final.emit_final_init(a)
    sTask, sNeed = 30, 31
    vFl, vNd, vT = 124, 125, 126
    a(f"""s_lshl_b32 s{sTask}, s96, 2
s_add_u32 s{sTask}, s{sTask}, s{sW}""")
    a.label("L_fin_loop")
    a(f"""s_mul_i32 s{sQ}, s{sTask}, 1821
s_lshr_b32 s{sQ}, s{sQ}, 16                ; segment
s_lshr_b32 s{sNeed}, s{sQ}, 1
s_add_u32 s{sNeed}, s{sNeed}, 1
s_and_b32 s{sQ2}, s{sQ}, 1
s_lshl_b32 s{sQ2}, s{sQ2}, 4
s_add_u32 s{sQ2}, s{sQ2}, {FL_FO}
s_and_b32 s{sQ}, s{sQ}, 0xfffffffc
s_add_u32 s{sQ}, s{sQ}, {FL_FF - 16}
v_and_b32 v{vT}, 63, v0
v_mov_b32 v{vFl}, s{sQ2}
v_mov_b32 v{vNd}, s{sQ}
v_cmp_gt_u32 vcc, 16, v{vT}
v_cndmask_b32 v{vFl}, v{vNd}, v{vFl}, vcc
v_mov_b32 v{vNd}, s{sNeed}
v_cndmask_b32 v{vNd}, 1, v{vNd}, vcc
v_cmp_gt_u32 vcc, 20, v{vT}
v_cndmask_b32 v{vT}, 0, v{vT}, vcc
v_add_u32 v{vFl}, v{vFl}, v{vT}
v_mov_b32 v{vT}, s{sQ2}
v_cndmask_b32 v{vFl}, v{vT}, v{vFl}, vcc
v_mov_b32 v{vT}, s{sNeed}
v_cndmask_b32 v{vNd}, v{vT}, v{vNd}, vcc
v_lshlrev_b32 v{vFl}, 8, v{vFl}
v_add_u32 v{vFl}, {FLAGS}, v{vFl}
s_add_u32 s{sQ}, s{sQ}, 16
s_lshl_b32 s{sQ}, s{sQ}, 8
s_add_u32 s{sQ}, s{sQ}, {FLAGS}
s_mov_b32 s{sP}, 0""")
    fw0 = "fw0" in os.environ.get("XF", "").split(",")
    if fw0: a(f"s_cmp_lg_u32 s{sW}, 0\ns_cbranch_scc1 L_fin_bar")
    a.label("L_fin_p1")
    a("s_mov_b64 exec, 1")
    a(f"buffer_load_dword v{vT}, off, {WS}, s{sQ} sc1")
    a("s_mov_b64 exec, -1")
    a("s_waitcnt vmcnt(0)")
    a(f"v_readfirstlane_b32 s{sQ2}, v{vT}")
    a(f"s_cmp_ge_u32 s{sQ2}, 1")
    a("s_cbranch_scc1 L_fin_p1b" if fw0 else "s_cbranch_scc1 L_fin_p2")
    bounded(a, "L_fin_p1")
    if fw0:
        a.label("L_fin_p1b")
        a(f"""s_lshr_b32 s{sQ}, s{sTask}, 2
s_and_b32 s{sQ}, s{sQ}, 15
v_readfirstlane_b32 s{sQ2}, v{vFl}
s_lshl_b32 s{sQ}, s{sQ}, 8
s_add_u32 s{sQ}, s{sQ}, s{sQ2}""")
        a.label("L_fin_p1c")
        a("s_mov_b64 exec, 1")
        a(f"buffer_load_dword v{vT}, off, {WS}, s{sQ} sc1")
        a("s_mov_b64 exec, -1")
        a("s_waitcnt vmcnt(0)")
        a(f"v_readfirstlane_b32 s{sQ2}, v{vT}")
        a(f"s_cmp_ge_u32 s{sQ2}, s{sNeed}")
        a("s_cbranch_scc1 L_fin_p2")
        bounded(a, "L_fin_p1c")
    a.label("L_fin_p2")
    a(f"buffer_load_dword v{vT}, v{vFl}, {WS}, 0 offen sc1")
    a("s_waitcnt vmcnt(0)")
    a(f"v_cmp_lt_u32 vcc, v{vT}, v{vNd}")
    a("s_cbranch_vccz L_fin_bar" if fw0 else "s_cbranch_vccz L_fin_go")
    bounded(a, "L_fin_p2")
    if fw0:
        a.label("L_fin_bar")
        a("s_barrier")
    a.label("L_fin_go")
    if tz_on():
        zcap(a, 60)
        a(f"s_cmp_ge_u32 s{sTask}, {63*36}\ns_cselect_b32 s62, s60, s62")
    final.emit_final_task(a, sTask)
    a(f"s_add_u32 s{sTask}, s{sTask}, 768")
    a(f"s_cmp_lt_u32 s{sTask}, 2304")
    a("s_cbranch_scc1 L_fin_loop")
    a("s_waitcnt vmcnt(0)")
    zcap(a, 64)
    zput(a, [(62, 12), (64, 13)], 5, mx=True, wave0=False)
    a("s_branch L_exit")

def build(tm=False):
    a = Asm()
    prologue(a)
    if tm: a("s_memtime s[88:89]")
    zput(a, [(86, 15)], 5, mx=True)
    a(f"s_cmp_lt_u32 s{sRole}, 32")
    a("s_cbranch_scc1 L_chain")
    a(f"s_sub_u32 s96, s{sRole}, 32")
    a("s_cmp_lt_u32 s96, 64")
    a("s_cbranch_scc1 L_r_ln")
    a("s_cmp_lt_u32 s96, 160")
    a("s_cbranch_scc1 L_r_qkv")
    a("s_sub_u32 s96, s96, 160")
    ffn.emit_ffn(a, "L_r_ffn_end", ffn_hooks())
    a.label("L_r_ffn_end")
    a("s_add_u32 s96, s96, 128")
    a("s_branch L_final")
    a.label("L_r_qkv")
    a("s_sub_u32 s96, s96, 64")
    qkv.emit_qkv(a, "L_r_qkv_end", qkv_hooks())
    a.label("L_r_qkv_end")
    a("s_add_u32 s96, s96, 32")
    a("s_branch L_final")
    a.label("L_r_ln")
    a("s_mov_b32 s30, s96")
    emit_ln_role(a, 30)
    dstamp(a, 3, 8, [(96, 0)])
    a("s_cmp_lt_u32 s96, 32")
    a("s_cbranch_scc1 L_r_fol")
    a("s_sub_u32 s96, s96, 32")
    wait_ln(a, 8)
    a("s_branch L_final")
    a.label("L_r_fol")
    if "nofol" in os.environ.get("XF", "").split(","): a("s_branch L_exit")
    follow.emit_follow(a, "L_exit", follow_hooks())
    emit_final_role(a)
    chain.emit_chain(a, tm, fused=True)
    a.label("L_fail")
    a(f"""s_mov_b64 exec, 1
v_mov_b32 v78, 1
buffer_atomic_add v78, off, s[{sDBG}:{sDBG+3}], 0 offset:{4*D_ERR} sc1
s_waitcnt vmcnt(0)""")
    a.label("L_exit")
    a("s_endpgm")
    name = NAME + "_kernel"
    txt = HEADER.format(launch="; @launch grid=(256,1,1) block=(256,1,1) lds=163840") + kernel_open(name) + a.finalize() \
        + '.section .rodata,"a"\n.p2align 6\n' + kernel_desc(name)
    return txt

if __name__ == "__main__":
    out = sys.argv[1] if len(sys.argv) > 1 else f'cdna_kernels/{NAME}.s'
    tm = len(sys.argv) > 2 and sys.argv[2] == "tm"
    open(out, 'w').write(build(tm))
```

```python
from asm import *
from layout import *
from common import *

sA, sB, sCn, sS, sCh = 21, 22, 23, 24, 25
sTx, sTo, sTb = 8, 32, 36
vL16, vRow = 1, 2

def emit_final_init(a):
    srd(a, sTx, KA["x"], 2048 * 576 * 2)
    srd(a, sTo, KA["out"], 2048 * 576 * 2)
    srd(a, sTb, KA["b2"], 576 * 2)
    a(f"""
v_and_b32 v5, 63, v0
v_lshlrev_b32 v{vL16}, 4, v5
v_and_b32 v6, 15, v5
v_lshrrev_b32 v7, 4, v5
v_mul_u32_u24 v6, 1152, v6
v_lshl_add_u32 v{vRow}, v7, 3, v6        ; n*1152 + g*8
v_lshlrev_b32 v3, 3, v7                  ; g*8
""")

def emit_final_task(a, sTask, poll=None):
    WS = f"s[{sWS}:{sWS+3}]"
    a(f"""
s_mul_i32 s{sS}, s{sTask}, 1821
s_lshr_b32 s{sS}, s{sS}, 16
s_mul_i32 s{sA}, s{sS}, 36
s_sub_u32 s{sCh}, s{sTask}, s{sA}
s_mul_i32 s{sA}, s{sS}, {16*36864}
s_lshl_b32 s{sB}, s{sCh}, 10
s_add_u32 s{sA}, s{sA}, s{sB}
s_add_u32 s{sA}, s{sA}, {PO}
""")
    P0 = 8
    def po_loads(sc):
        for p in range(16):
            a(f"buffer_load_dwordx4 {vr(P0+4*p,4)}, v{vL16}, {WS}, s{sA} offen{sc}")
            if p < 15: a(f"s_add_u32 s{sA}, s{sA}, 36864")
    if poll: a(f"s_mov_b32 s26, s{sA}")
    else: po_loads("")
    a(f"""s_mul_i32 s{sA}, s{sS}, {4*36864}
s_add_u32 s{sA}, s{sA}, s{sB}
s_add_u32 s{sA}, s{sA}, {FB}""")
    F0 = 72
    for p in range(4):
        a(f"buffer_load_dwordx4 {vr(F0+4*p,4)}, v{vL16}, {WS}, s{sA} offen")
        if p < 3: a(f"s_add_u32 s{sA}, s{sA}, 36864")
    a(f"""s_mul_i32 s{sA}, s{sS}, 36864
s_lshl_b32 s{sB}, s{sCh}, 5
s_add_u32 s{sA}, s{sA}, s{sB}
s_add_u32 s{sCn}, s{sA}, {16*1152}
buffer_load_dwordx2 v[88:89], v{vRow}, s[{sTx}:{sTx+3}], s{sA} offen
buffer_load_dwordx2 v[90:91], v{vRow}, s[{sTx}:{sTx+3}], s{sCn} offen
buffer_load_dwordx2 v[92:93], v3, s[{sTb}:{sTb+3}], s{sB} offen""")
    if poll:
        l1, l2 = a.uid("L_pd"), a.uid("L_pd")
        a(f"s_mov_b32 s27, s{sA}")
        a.label(l1)
        a(f"s_mov_b32 s{sA}, s26")
        po_loads(" sc1")
        for p in range(16):
            a(f"s_waitcnt vmcnt({15 - p})")
            b = P0 + 4 * p
            if p == 0:
                a(f"v_max3_u32 v112, v{b}, v{b+1}, v{b+2}")
                a(f"v_mov_b32 v113, v{b+3}")
            else:
                a(f"v_max3_u32 v112, v112, v{b}, v{b+1}")
                a(f"v_max3_u32 v113, v113, v{b+2}, v{b+3}")
        a("v_max_u32 v112, v112, v113")
        a("v_cmp_eq_u32 vcc, -1, v112")
        a(f"s_cbranch_vccz {l2}")
        poll(a, l1)
        a.label(l2)
        a(f"s_mov_b32 s{sA}, s27")
    A = 96
    def accum(dst, src, first):
        for i in range(4):
            if first:
                a(f"v_lshlrev_b32 v{dst+2*i}, 16, v{src+i}")
                a(f"v_and_b32 v{dst+2*i+1}, 0xffff0000, v{src+i}")
            else:
                a(f"v_lshlrev_b32 v112, 16, v{src+i}")
                a(f"v_and_b32 v113, 0xffff0000, v{src+i}")
                a(f"v_add_f32 v{dst+2*i}, v{dst+2*i}, v112")
                a(f"v_add_f32 v{dst+2*i+1}, v{dst+2*i+1}, v113")
    for p in range(16):
        if not poll: a(f"s_waitcnt vmcnt({22 - p})")
        accum(A, P0 + 4*p, p == 0)
    for p in range(4):
        if not poll: a(f"s_waitcnt vmcnt({6 - p})")
        accum(A + 8, F0 + 4*p, p == 0)
    a("s_waitcnt vmcnt(0)")
    for i in range(4):
        xa = 88 + i; b2 = 92 + (i & 1)
        a(f"""v_cvt_pk_bf16_f32 v112, v{A+2*i}, v{A+2*i+1}
v_cvt_pk_bf16_f32 v113, v{A+8+2*i}, v{A+8+2*i+1}
v_lshlrev_b32 v114, 16, v112
v_and_b32 v115, 0xffff0000, v112
v_lshlrev_b32 v116, 16, v{xa}
v_and_b32 v117, 0xffff0000, v{xa}
v_add_f32 v114, v114, v116
v_add_f32 v115, v115, v117
v_cvt_pk_bf16_f32 v112, v114, v115
v_lshlrev_b32 v114, 16, v113
v_and_b32 v115, 0xffff0000, v113
v_lshlrev_b32 v116, 16, v{b2}
v_and_b32 v117, 0xffff0000, v{b2}
v_add_f32 v114, v114, v116
v_add_f32 v115, v115, v117
v_cvt_pk_bf16_f32 v113, v114, v115
v_lshlrev_b32 v114, 16, v112
v_and_b32 v115, 0xffff0000, v112
v_lshlrev_b32 v116, 16, v113
v_and_b32 v117, 0xffff0000, v113
v_add_f32 v114, v114, v116
v_add_f32 v115, v115, v117
v_cvt_pk_bf16_f32 v{120+i}, v114, v115""")
    a(f"buffer_store_dwordx2 v[120:121], v{vRow}, s[{sTo}:{sTo+3}], s{sA} offen")
    a(f"buffer_store_dwordx2 v[122:123], v{vRow}, s[{sTo}:{sTo+3}], s{sCn} offen")


def emit_final_last(a, sTask, bounded, sP, FLAGS_, FL_FF_, FL_FO_, zc=None):
    WS = f"s[{sWS}:{sWS+3}]"
    P0, F0, A, B = 8, 72, 96, 104
    ID, XF_, BF = 118, 128, 136
    vT = 112
    def mf(dst, src, first):
        for h in range(2):
            c = "0" if first else vr(dst + 4*h, 4)
            a(f"v_mfma_f32_4x4x4_16b_bf16 {vr(dst+4*h,4)}, {vr(ID,2)}, {vr(src+2*h,2)}, {c}")
    a(f"""s_sub_u32 s{sCh}, s{sTask}, {63*36}
v_and_b32 v5, 63, v0
v_and_b32 v6, 1, v5
v_cmp_eq_u32 vcc, 0, v6
v_mov_b32 v7, 0x3f80
v_mov_b32 v6, 0x3f800000
v_cndmask_b32 v6, v6, v7, vcc
v_and_b32 v7, 2, v5
v_cmp_eq_u32 vcc, 0, v7
v_cndmask_b32 v{ID}, 0, v6, vcc
v_cndmask_b32 v{ID+1}, v6, 0, vcc
v_and_b32 v7, 3, v5
v_add_u32 v7, {FL_FF_ + 60}, v7
v_lshlrev_b32 v7, 8, v7
v_add_u32 v7, {FLAGS_}, v7
s_mov_b32 s{sP}, 0""")
    l1, l2 = a.uid("L_lf"), a.uid("L_lf")
    a.label(l1)
    a(f"buffer_load_dword v{vT}, v7, {WS}, 0 offen sc1")
    a("s_waitcnt vmcnt(0)")
    a(f"v_cmp_eq_u32 vcc, 0, v{vT}")
    a(f"s_cbranch_vccz {l2}")
    bounded(a, l1)
    a.label(l2)
    a(f"""s_lshl_b32 s{sB}, s{sCh}, 10
s_add_u32 s26, s{sB}, {PO + 63*16*36864}
s_add_u32 s{sA}, s{sB}, {FB + 63*4*36864}""")
    for p in range(4):
        a(f"buffer_load_dwordx4 {vr(F0+4*p,4)}, v{vL16}, {WS}, s{sA} offen")
        if p < 3: a(f"s_add_u32 s{sA}, s{sA}, 36864")
    a(f"""s_lshl_b32 s{sB}, s{sCh}, 5
s_add_u32 s27, s{sB}, {63*36864}
s_add_u32 s{sCn}, s27, {16*1152}
buffer_load_dwordx2 v[88:89], v{vRow}, s[{sTx}:{sTx+3}], s27 offen
buffer_load_dwordx2 v[90:91], v{vRow}, s[{sTx}:{sTx+3}], s{sCn} offen
buffer_load_dwordx2 v[92:93], v3, s[{sTb}:{sTb+3}], s{sB} offen
s_and_b32 s{sA}, s{sCh}, 15
s_add_u32 s{sA}, s{sA}, {FL_FO_ + 16}
s_lshl_b32 s{sA}, s{sA}, 8
s_add_u32 s25, s{sA}, {FLAGS_}""")
    for p in range(4):
        a(f"s_waitcnt vmcnt({6 - p})")
        mf(B, F0 + 4*p, p == 0)
    a("s_waitcnt vmcnt(0)")
    for i in range(4):
        b2 = 92 + (i & 1)
        a(f"""v_cvt_pk_bf16_f32 v113, v{B+2*i}, v{B+2*i+1}
v_lshlrev_b32 v114, 16, v113
v_and_b32 v115, 0xffff0000, v113
v_lshlrev_b32 v116, 16, v{b2}
v_and_b32 v117, 0xffff0000, v{b2}
v_add_f32 v114, v114, v116
v_add_f32 v115, v115, v117
v_cvt_pk_bf16_f32 v113, v114, v115
v_lshlrev_b32 v{BF+2*i}, 16, v113
v_and_b32 v{BF+2*i+1}, 0xffff0000, v113
v_lshlrev_b32 v{XF_+2*i}, 16, v{88+i}
v_and_b32 v{XF_+2*i+1}, 0xffff0000, v{88+i}""")
    l1, l2 = a.uid("L_lg"), a.uid("L_lg")
    a(f"s_mov_b32 s{sP}, 0")
    a.label(l1)
    a("s_mov_b64 exec, 1")
    a(f"buffer_load_dword v{vT}, off, {WS}, s25 sc1")
    a("s_mov_b64 exec, -1")
    a("s_waitcnt vmcnt(0)")
    a(f"v_readfirstlane_b32 s{sA}, v{vT}")
    a(f"s_cmp_ge_u32 s{sA}, 32")
    a(f"s_cbranch_scc1 {l2}")
    bounded(a, l1)
    a.label(l2)
    if zc: zc(a)
    l1, l2 = a.uid("L_pd"), a.uid("L_pd")
    a(f"s_mov_b32 s{sP}, 0")
    a.label(l1)
    a(f"s_mov_b32 s{sA}, s26")
    for p in range(16):
        a(f"buffer_load_dwordx4 {vr(P0+4*p,4)}, v{vL16}, {WS}, s{sA} offen sc1")
        if p < 15: a(f"s_add_u32 s{sA}, s{sA}, 36864")
    for p in range(16):
        a(f"s_waitcnt vmcnt({15 - p})")
        b = P0 + 4 * p
        mf(A, b, p == 0)
        if p == 0:
            a(f"v_max3_u32 v112, v{b}, v{b+1}, v{b+2}")
            a(f"v_mov_b32 v113, v{b+3}")
        else:
            a(f"v_max3_u32 v112, v112, v{b}, v{b+1}")
            a(f"v_max3_u32 v113, v113, v{b+2}, v{b+3}")
    a("v_max_u32 v112, v112, v113")
    a("v_cmp_eq_u32 vcc, -1, v112")
    a(f"s_cbranch_vccz {l2}")
    bounded(a, l1)
    a.label(l2)
    for i in range(4):
        a(f"""v_cvt_pk_bf16_f32 v112, v{A+2*i}, v{A+2*i+1}
v_lshlrev_b32 v114, 16, v112
v_and_b32 v115, 0xffff0000, v112
v_pk_add_f32 v[114:115], v[114:115], v[{XF_+2*i}:{XF_+2*i+1}]
v_cvt_pk_bf16_f32 v112, v114, v115
v_lshlrev_b32 v114, 16, v112
v_and_b32 v115, 0xffff0000, v112
v_pk_add_f32 v[114:115], v[114:115], v[{BF+2*i}:{BF+2*i+1}]
v_cvt_pk_bf16_f32 v{120+i}, v114, v115""")
        if i == 1: a(f"buffer_store_dwordx2 v[120:121], v{vRow}, s[{sTo}:{sTo+3}], s27 offen")
    a(f"buffer_store_dwordx2 v[122:123], v{vRow}, s[{sTo}:{sTo+3}], s{sCn} offen")
```

```python
from asm import *
from layout import *
from common import *

sHP, sPar, sSeg, sA, sB, sCn, sTok, sMem, sPO, sQt, sC, sIt = 18, 19, 20, 21, 22, 23, 24, 25, 26, 27, 28, 29
sJ = 30
sM0, sM1 = 40, 48
sT = 8
vL16, vOBw, vOBr, vOBr1 = 1, 2, 3, 4
S0, S1, S2, PT, PM, SUM, ONES, ONZ, T0, T1 = 8, 12, 16, 20, 24, 26, 30, 34, 36, 37
KMR, VMR, QR, KR, VR, ACC = 40, 56, 72, 88, 120, 152
OPK = 184
WREG = 36864
def wreg(t, hl, kb):
    i = (t * 2 + hl) * 4 + kb
    return 256 + 4 * i if i < 64 else 224 + 4 * (i - 64)
OB = [0, 16384]

def emit_follow_init(a):
    a(f"""
s_and_b32 s{sHP}, s96, 15
s_lshr_b32 s{sPar}, s96, 4
s_cmp_eq_u32 s{sJ}, 0
s_cselect_b32 s{sSeg}, s{sPar}, 63
s_cselect_b32 s{sPar}, s{sPar}, 1
s_cselect_b32 s{sIt}, 0, 31
v_and_b32 v5, 63, v0
v_lshlrev_b32 v{vL16}, 4, v5
""")
    srd(a, sT, KA["Wo"], 32 * 128 * 576 * 2)
    for i in range(9):
        a(f"""v_add_u32 v6, {64*i}, v5
v_mul_u32_u24 v7, 3641, v6
v_lshrrev_b32 v7, 16, v7
v_mul_u32_u24 v8, 18, v7
v_sub_u32 v8, v6, v8
v_mul_u32_u24 v7, 1152, v7
v_lshl_add_u32 v{10+i}, v8, 4, v7""")
    a(f"""s_mul_i32 s{sA}, s{sHP}, {2*147456}
s_mul_i32 s{sB}, s{sW}, 288
s_add_u32 s{sA}, s{sA}, s{sB}
s_mul_i32 s{sB}, s{sW}, {WREG}
v_lshrrev_b32 v6, 4, v5
v_lshlrev_b32 v6, 2, v6
v_bfe_u32 v7, v5, 2, 2
v_add_u32 v6, v6, v7
v_mul_u32_u24 v6, 288, v6
v_and_b32 v7, 3, v5
v_lshl_add_u32 v6, v7, 3, v6
v_add_u32 v6, s{sB}, v6
s_mul_i32 s{sCn}, s{sJ}, 96
v_add_u32 v6, s{sCn}, v6
""")
    for hl in range(2):
        for r in range(4):
            for i in range(9):
                a(f"s_add_u32 m0, s{sB}, {(r*9+i)*1024}")
                a(f"buffer_load_dwordx4 v{10+i}, s[{sT}:{sT+3}], s{sA} offen lds")
            a(f"s_add_u32 s{sA}, s{sA}, {32*1152}")
        for kb in range(4):
            a(f"s_waitcnt vmcnt({27 - 9*kb})")
            for t in range(9):
                for half in range(2):
                    a(f"ds_read_b64_tr_b16 {vr(wreg(t,hl,kb) + 2*half, 2)}, v6 offset:{(32*kb + 16*half)*288 + t*32}")
            a("s_waitcnt lgkmcnt(0)")
    a(f"""
s_and_b32 s{sQt}, s{sW}, 1
s_lshr_b32 s{sA}, s{sW}, 1
s_lshl_b32 s{sB}, s{sHP}, 1
s_add_u32 s{sB}, s{sB}, s{sA}           ; head
s_lshl_b32 s{sCn}, s{sSeg}, 5
s_add_u32 s{sCn}, s{sCn}, s{sB}
s_lshl_b32 s{sTok}, s{sCn}, 13
s_lshl_b32 s{sMem}, s{sCn}, 12
s_lshl_b32 s{sCn}, s{sSeg}, 4
s_add_u32 s{sCn}, s{sCn}, s{sHP}
s_mul_i32 s{sCn}, s{sCn}, 36864
s_mul_i32 s{sB}, s{sW}, 9216
s_add_u32 s{sCn}, s{sCn}, s{sB}
s_mul_i32 s{sB}, s{sJ}, 3072
s_add_u32 s{sCn}, s{sCn}, s{sB}
s_add_u32 s{sPO}, s{sCn}, {PO}
s_lshl_b32 s{sCn}, s{sW}, 12
v_add_u32 v{vOBw}, s{sCn}, v{vL16}
s_mov_b32 s{sC}, 0x3e0293ee
; masks : M_i = (4g+i <= n)
v_and_b32 v6, 15, v5
v_lshrrev_b32 v7, 4, v5
v_lshlrev_b32 v7, 2, v7
""")
    for i in range(4):
        a(f"v_add_u32 v8, {i}, v7")
        a(f"v_cmp_le_u32 s[{sM0+2*i}:{sM0+2*i+1}], v8, v6")
    a(f"s_cmp_eq_u32 s{sQt}, 0")
    for i in range(4):
        a(f"s_cselect_b64 s[{sM1+2*i}:{sM1+2*i+1}], 0, s[{sM0+2*i}:{sM0+2*i+1}]")
        a(f"s_cselect_b64 s[{sM0+2*i}:{sM0+2*i+1}], s[{sM0+2*i}:{sM0+2*i+1}], -1")
    for r in range(ONES, ONES + 5): a(f"v_mov_b32 v{r}, 0x3f803f80")
    a(f"v_mov_b32 v{ONZ+1}, 0")
    a("s_barrier")

def tok_loads(a):
    WS = f"s[{sWS}:{sWS+3}]"
    a(f"s_add_u32 s{sA}, s{sTok}, {KT}")
    a(f"s_add_u32 s{sB}, s{sTok}, {QT}")
    a(f"s_lshl_b32 s{sCn}, s{sQt}, 10")
    a(f"s_add_u32 s{sB}, s{sB}, s{sCn}")
    for kb in range(4):
        a(f"buffer_load_dwordx4 {vr(QR+4*kb,4)}, v{vL16}, {WS}, s{sB} offen")
        a(f"buffer_load_dwordx4 {vr(KR+8*kb,4)}, v{vL16}, {WS}, s{sA} offen")
        a(f"buffer_load_dwordx4 {vr(KR+8*kb+4,4)}, v{vL16}, {WS}, s{sA} offen offset:1024")
        if kb < 3:
            a(f"s_add_u32 s{sA}, s{sA}, 2048")
            a(f"s_add_u32 s{sB}, s{sB}, 2048")
    a(f"s_add_u32 s{sA}, s{sTok}, {VT}")
    for kb in range(4):
        a(f"buffer_load_dwordx4 {vr(VR+8*kb,4)}, v{vL16}, {WS}, s{sA} offen")
        a(f"buffer_load_dwordx4 {vr(VR+8*kb+4,4)}, v{vL16}, {WS}, s{sA} offen offset:1024")
        if kb < 3: a(f"s_add_u32 s{sA}, s{sA}, 2048")
    a(f"s_add_u32 s{sTok}, s{sTok}, {2*32*8192}")

def emit_follow(a, lab_end, fused=None):
    WS = f"s[{sWS}:{sWS+3}]"
    emit_follow_init(a)
    if fused: fused["wait_tok"](a, 0)
    tok_loads(a)
    a(f"s_cmp_lg_u32 s{sJ}, 0")
    a("s_cbranch_scc1 L_fol_last")
    a("s_waitcnt vmcnt(0)")
    def tok_scores():
        for kb in range(4):
            c1 = "0" if kb == 0 else vr(S1, 4); c2 = "0" if kb == 0 else vr(S2, 4)
            a(f"v_mfma_f32_16x16x32_bf16 {vr(S1,4)}, {vr(KR+8*kb,4)}, {vr(QR+4*kb,4)}, {c1}")
            a(f"v_mfma_f32_16x16x32_bf16 {vr(S2,4)}, {vr(KR+8*kb+4,4)}, {vr(QR+4*kb,4)}, {c2}")
    def mem_loads(sc):
        a(f"s_add_u32 s{sA}, s{sMem}, {KM}")
        a(f"s_add_u32 s{sB}, s{sMem}, {VM}")
        for kb in range(4):
            a(f"buffer_load_dwordx4 {vr(KMR+4*kb,4)}, v{vL16}, {WS}, s{sA} offen offset:{1024*kb}{sc}")
        for kb in range(4):
            a(f"buffer_load_dwordx4 {vr(VMR+4*kb,4)}, v{vL16}, {WS}, s{sB} offen offset:{1024*kb}{sc}")
    def watch(b):
        a(f"v_max3_u32 v{T0}, v{b}, v{b+1}, v{b+2}")
        a(f"v_max3_u32 v{T1}, v{b+3}, v{b+4}, v{b+5}")
        a(f"v_max3_u32 v{T0}, v{T0}, v{b+6}, v{b+7}")
        a(f"v_max3_u32 v{T1}, v{T1}, v{b+8}, v{b+9}")
        a(f"v_max3_u32 v{T0}, v{T0}, v{b+10}, v{b+11}")
        a(f"v_max3_u32 v{T1}, v{T1}, v{b+12}, v{b+13}")
        a(f"v_max3_u32 v{T0}, v{T0}, v{b+14}, v{b+15}")
        a(f"v_max_u32 v{T0}, v{T0}, v{T1}")
        a(f"v_cmp_eq_u32 vcc, -1, v{T0}")
    def wo_phase(buf, nt, deep):
        lg = Cnt(a, "lgkmcnt")
        seq = [(hl, kb, qt) for hl in range(2) for kb in range(4) for qt in range(2)]
        fr = (lambda n: KR + 4 * n) if deep else (lambda n: KMR + 4 * (n % 4))
        def rd(n):
            hl, kb, qt = seq[n]
            lg.op(f"ds_read_b128 {vr(fr(n),4)}, v{vL16} offset:{OB[buf] + (hl*2+qt)*4096 + kb*1024}", f"o{n}")
        pre = 12 if deep else 3
        for n in range(pre): rd(n)
        for n in range(16):
            hl, kb, qt = seq[n]
            lg.wait(f"o{n}")
            for t in range(nt):
                d = ACC + 8 * t + 4 * qt
                c = "0" if n < 2 else vr(d, 4)
                a(f"v_mfma_f32_16x16x32_bf16 {vr(d,4)}, {vr(wreg(t,hl,kb),4)}, {vr(fr(n),4)}, {c}")
                if t == 0 and n + pre < 16: rd(n + pre)
        for t in range(nt):
            d = ACC + 8 * t; e = 8 + 4 * (t % 4)
            for i in range(4): a(f"v_cvt_pk_bf16_f32 v{e+i}, v{d+2*i}, v{d+2*i+1}")
            a(f"s_add_u32 s{sA}, s{sPO}, {1024*t}")
            a(f"buffer_store_dwordx4 {vr(e,4)}, v{vL16}, {WS}, s{sA} offen sc1")
    def item(buf, last=False):
        if not last:
            if fused: fused["wait_mem"](a)
            zcap(a, 60)
            mem_loads("")
            a(f"s_add_u32 s{sMem}, s{sMem}, {2*32*4096}")
            a("s_waitcnt vmcnt(17)")
            tok_scores()
            a("s_waitcnt vmcnt(4)")
        else:
            a("s_waitcnt vmcnt(0)")
            a("s_barrier")
            fused["sig_main"](a, f"s{sIt}")
            tok_scores()
            fused["gate_mem"](a)
            l1, l2 = a.uid("L_md"), a.uid("L_md")
            a.label(l1)
            mem_loads(" sc1")
            a("s_waitcnt vmcnt(4)")
            watch(KMR)
            a(f"s_cbranch_vccz {l2}")
            fused["bounded"](a, l1)
            a.label(l2)
            zcap(a, 60)
        for kb in range(4):
            c0 = "0" if kb == 0 else vr(S0, 4)
            a(f"v_mfma_f32_16x16x32_bf16 {vr(S0,4)}, {vr(KMR+4*kb,4)}, {vr(QR+4*kb,4)}, {c0}")
        a(f"v_mov_b32 v{T1}, 0xce6e6b28")
        for i in range(4): a(f"v_cndmask_b32 v{S1+i}, v{T1}, v{S1+i}, s[{sM0+2*i}:{sM0+2*i+1}]")
        for i in range(4): a(f"v_cndmask_b32 v{S2+i}, v{T1}, v{S2+i}, s[{sM1+2*i}:{sM1+2*i+1}]")
        a(f"""v_max3_f32 v{T0}, v{S1}, v{S1+1}, v{S1+2}
v_max3_f32 v{T1}, v{S1+3}, v{S2}, v{S2+1}
v_max3_f32 v{T0}, v{T0}, v{S2+2}, v{S2+3}
v_max3_f32 v{T1}, v{T1}, v{S0}, v{S0+1}
v_max_f32 v{T0}, v{T0}, v{T1}
v_mov_b32 v{T1}, v{T0}
v_permlane16_swap_b32 v{T0}, v{T1}
v_max_f32 v{T0}, v{T0}, v{T1}
v_mov_b32 v{T1}, v{T0}
v_permlane32_swap_b32 v{T0}, v{T1}
v_max_f32 v{T0}, v{T0}, v{T1}
v_mul_f32 v{T0}, s{sC}, v{T0}""")
        vals = [S0, S0 + 1] + [S1 + i for i in range(4)] + [S2 + i for i in range(4)]
        for r in vals: a(f"v_fma_f32 v{r}, v{r}, s{sC}, -v{T0}")
        for r in vals: a(f"v_exp_f32 v{r}, v{r}")
        a(f"""v_cvt_pk_bf16_f32 v{PT}, v{S1}, v{S1+1}
v_cvt_pk_bf16_f32 v{PT+1}, v{S1+2}, v{S1+3}
v_cvt_pk_bf16_f32 v{PT+2}, v{S2}, v{S2+1}
v_cvt_pk_bf16_f32 v{PT+3}, v{S2+2}, v{S2+3}
v_cvt_pk_bf16_f32 v{PM}, v{S0}, v{S0+1}
v_mov_b32 v{PM+1}, v{PM}""")
        a(f"v_mfma_f32_16x16x32_bf16 {vr(SUM,4)}, {vr(ONES,4)}, {vr(PT,4)}, 0")
        for et in range(8):
            a(f"v_mfma_f32_16x16x32_bf16 {vr(ACC+4*et,4)}, {vr(VR+4*et,4)}, {vr(PT,4)}, 0")
        if not last: a("s_waitcnt vmcnt(0)")
        else:
            l1, l2 = a.uid("L_mv"), a.uid("L_mv")
            a.label(l1)
            a("s_waitcnt vmcnt(0)")
            watch(VMR)
            a(f"s_cbranch_vccz {l2}")
            a(f"s_add_u32 s{sB}, s{sMem}, {VM}")
            for kb in range(4):
                a(f"buffer_load_dwordx4 {vr(VMR+4*kb,4)}, v{vL16}, {WS}, s{sB} offen offset:{1024*kb} sc1")
            fused["bounded"](a, l1)
            a.label(l2)
            l3 = a.uid("L_md")
            a(f"s_cmp_eq_u32 s{sPar}, 0")
            a(f"s_cbranch_scc1 {l3}")
            fused["sig_main"](a, "32")
            a.label(l3)
        a(f"v_mfma_f32_16x16x16_bf16 {vr(SUM,4)}, {vr(ONZ,2)}, {vr(PM,2)}, {vr(SUM,4)}")
        for et in range(8):
            a(f"v_mfma_f32_16x16x16_bf16 {vr(ACC+4*et,4)}, {vr(VMR+2*et,2)}, {vr(PM,2)}, {vr(ACC+4*et,4)}")
        if not last:
            lab = a.uid("L_fnp")
            a(f"s_cmp_ge_u32 s{sIt}, 31")
            a(f"s_cbranch_scc1 {lab}")
            if fused: fused["wait_tok"](a, 1)
            tok_loads(a)
            a.label(lab)
        a(f"v_rcp_f32 v{T0}, v{SUM}")
        for et in range(8):
            for i in range(4): a(f"v_mul_f32 v{ACC+4*et+i}, v{ACC+4*et+i}, v{T0}")
            a(f"v_cvt_pk_bf16_f32 v{OPK+2*et}, v{ACC+4*et}, v{ACC+4*et+1}")
            a(f"v_cvt_pk_bf16_f32 v{OPK+2*et+1}, v{ACC+4*et+2}, v{ACC+4*et+3}")
            if et & 1:
                a(f"ds_write_b128 v{vOBw}, {vr(OPK+4*(et>>1),4)} offset:{OB[buf] + 1024*(et>>1)}")
        a("s_waitcnt lgkmcnt(0)")
        a("s_barrier")
        zcap(a, 62)
        if not last:
            if fused: fused["sig"](a)
            wo_phase(buf, 9, False)
            zcap(a, 64)
            a(f"s_add_u32 s{sPO}, s{sPO}, {2*16*36864}")
            a(f"s_add_u32 s{sIt}, s{sIt}, 1")
            a(f"s_add_u32 s{sSeg}, s{sSeg}, 2")
        else:
            a(f"s_cmp_eq_u32 s{sPar}, 0")
            a("s_cbranch_scc1 L_fol_l62")
            wo_phase(buf, 3, True)
            zcap(a, 64)
            a("s_waitcnt vmcnt(0)")
            zcap(a, 66)
            zput(a, [(60, 7), (62, 9), (64, 10), (66, 11)], 5, [(96, 16), (sJ, 0)])
            a(f"s_branch {lab_end}")
            a.label("L_fol_l62")
            wo_phase(buf, 9, False)
            a("s_waitcnt vmcnt(0)")
            fused["fin"](a)
            zcap(a, 66)
            zput(a, [(66, 14)], 5, [(96, 0)])
            a(f"s_branch {lab_end}")
    a.label("L_fol_loop")
    item(0)
    a(f"s_cmp_eq_u32 s{sIt}, 31")
    a("s_cbranch_scc1 L_fol_last")
    item(1)
    a("s_branch L_fol_loop")
    a.label("L_fol_last")
    item(1, last=True)
```

```python
import sys
sys.path.insert(0, 'gen')
from asm import *
from layout import *
from common import *
import ln, qkv, ffn, follow, final
import os, importlib
chain = importlib.import_module(os.environ.get("CH", "chain3"))
if os.environ.get("XF"): chain.X.update(x for x in os.environ["XF"].split(",") if x)

D_LN = 32
FL_CH, FL_QK, FL_FO, FL_FF = 0, 32, 128, 160
POLL_MAX = int(os.environ.get("POLLF", "400000"))
WS = f"s[{sWS}:{sWS+3}]"
DBGS = f"s[{sDBG}:{sDBG+3}]"
sP = 94
sQ, sQ2 = 92, 93

def bounded(a, retry):
    a(f"s_add_u32 s{sP}, s{sP}, 1")
    a(f"s_cmp_lt_u32 s{sP}, {POLL_MAX}")
    a(f"s_cbranch_scc1 {retry}")
    a("s_branch L_fail")

def wait_ln(a, vt):
    l1, l2 = a.uid("L_wl"), a.uid("L_wl")
    a(f"s_cmp_lg_u32 s{sW}, 0")
    a(f"s_cbranch_scc1 {l2}")
    a(f"s_mov_b32 s{sP}, 0")
    a.label(l1)
    a(f"buffer_load_dword v{vt}, off, {DBGS}, 0 offset:{4*D_LN} sc1")
    a("s_waitcnt vmcnt(0)")
    a(f"v_readfirstlane_b32 s{sQ}, v{vt}")
    a(f"s_cmp_ge_u32 s{sQ}, 64")
    a(f"s_cbranch_scc1 {l2}")
    bounded(a, l1)
    a.label(l2)
    a("s_barrier")

def flag_store(a, vt, sval, soff, wave=0):
    l = a.uid("L_fs")
    a(f"s_cmp_lg_u32 s{sW}, {wave}")
    a(f"s_cbranch_scc1 {l}")
    a(f"v_mov_b32 v{vt}, {sval}")
    a("s_mov_b64 exec, 1")
    a(f"buffer_store_dword v{vt}, off, {WS}, s{soff} sc1")
    a("s_mov_b64 exec, -1")
    a.label(l)

def emit_ln_role(a, sSeg):
    def sentinels(a):
        for r in range(132, 136): a(f"v_mov_b32 v{r}, -1")
        a(f"""s_lshl_b32 s{sQ}, s{sSeg}, 12
s_lshl_b32 s{sQ2}, s{sW}, 10
s_add_u32 s{sQ}, s{sQ}, s{sQ2}
s_add_u32 s{sQ}, s{sQ}, {KM + 62*131072}
buffer_store_dwordx4 v[132:135], v6, {WS}, s{sQ} offen sc1
s_add_u32 s{sQ}, s{sQ}, {VM - KM}
buffer_store_dwordx4 v[132:135], v6, {WS}, s{sQ} offen sc1
s_mul_i32 s{sQ}, s{sSeg}, 9216
s_add_u32 s{sQ}, s{sQ}, s{sQ2}
s_add_u32 s{sQ}, s{sQ}, {PO + 63*16*36864}
buffer_store_dwordx4 v[132:135], v6, {WS}, s{sQ} offen sc1
s_add_u32 s{sQ}, s{sQ}, 4096
buffer_store_dwordx4 v[132:135], v6, {WS}, s{sQ} offen sc1""")
        l = a.uid("L_sn")
        a(f"s_cmp_lg_u32 s{sW}, 0")
        a(f"s_cbranch_scc1 {l}")
        a(f"s_add_u32 s{sQ}, s{sQ}, 4096")
        a(f"buffer_store_dwordx4 v[132:135], v6, {WS}, s{sQ} offen sc1")
        a.label(l)
    ln.emit_ln(a, sSeg, mid=sentinels)
    l = a.uid("L_zf")
    a(f"s_cmp_lg_u32 s{sW}, 0")
    a(f"s_cbranch_scc1 {l}")
    a(f"s_lshl_b32 s{sQ}, s{sSeg}, 10")
    a(f"s_add_u32 s{sQ}, s{sQ}, {FLAGS}")
    a("v_mov_b32 v8, 0\nv_mov_b32 v9, 0\nv_mov_b32 v10, 0\nv_mov_b32 v11, 0")
    a(f"buffer_store_dwordx4 v[8:11], v6, {WS}, s{sQ} offen sc1")
    a("s_waitcnt vmcnt(0)")
    a.label(l)
    a("s_barrier")
    l = a.uid("L_lna")
    a(f"s_cmp_lg_u32 s{sW}, 0")
    a(f"s_cbranch_scc1 {l}")
    a("s_mov_b64 exec, 1")
    a("v_mov_b32 v8, 1")
    a(f"buffer_atomic_add v8, off, {DBGS}, 0 offset:{4*D_LN} sc1")
    a("s_mov_b64 exec, -1")
    a.label(l)

sQF = 95
def qkv_hooks():
    def wait_xn(a):
        a(f"s_add_u32 s{sQF}, s96, {FL_QK}")
        a(f"s_lshl_b32 s{sQF}, s{sQF}, 8")
        a(f"s_add_u32 s{sQF}, s{sQF}, {FLAGS}")
        dstamp(a, 0, qkv.vTmp, [(96, 0)])
        wait_ln(a, qkv.vTmp)
        dstamp(a, 1, qkv.vTmp, [(96, 0)])
    def sig(a):
        a(f"s_sub_u32 s{sQ}, s{qkv.sSeg}, 1")
        a(f"s_max_i32 s{sQ}, s{sQ}, 0")
        flag_store(a, qkv.vTmp, f"s{sQ}", sQF)
        dstamp(a, 2, qkv.vTmp, [(96, 0), (qkv.sSeg, 2)])
    def fin(a):
        a("s_barrier")
        flag_store(a, qkv.vTmp, "32", sQF)
    return dict(wait_xn=wait_xn, sig=sig, fin=fin)

def ffn_hooks():
    def wait_xn(a):
        a(f"s_add_u32 s{sQF}, s96, {FL_FF}")
        a(f"s_lshl_b32 s{sQF}, s{sQF}, 8")
        a(f"s_add_u32 s{sQF}, s{sQF}, {FLAGS}")
        wait_ln(a, 16)
    def fin(a):
        a("s_barrier")
        flag_store(a, 16, "1", sQF)
    return dict(wait_xn=wait_xn, fin=fin)

vFT, vFM, vF0 = 5, 6, 38
sKT_, sKM_ = 90, 91
def follow_hooks():
    F = follow
    def wait_tok(a, which):
        if which == 0:
            a(f"s_add_u32 s{sQF}, s96, {FL_FO}")
            a(f"s_lshl_b32 s{sQF}, s{sQF}, 8")
            a(f"s_add_u32 s{sQF}, s{sQF}, {FLAGS}")
            a(f"""s_mul_i32 s{sQ}, s{F.sPar}, 48
s_add_u32 s{sQ}, s{sQ}, s{F.sHP}
s_add_u32 s{sQ}, s{sQ}, {FL_QK}
s_lshl_b32 s{sQ}, s{sQ}, 8
s_add_u32 s{sQ}, s{sQ}, {FLAGS}
v_and_b32 v{vF0}, 63, v0
v_cmp_gt_u32 vcc, 3, v{vF0}
v_cndmask_b32 v{vF0}, 0, v{vF0}, vcc
v_lshlrev_b32 v{vF0}, 12, v{vF0}
v_add_u32 v{vFT}, s{sQ}, v{vF0}
s_lshl_b32 s{sQ}, s{F.sHP}, 1
s_lshr_b32 s{sQ2}, s{sW}, 1
s_add_u32 s{sQ}, s{sQ}, s{sQ2}
s_add_u32 s{sQ}, s{sQ}, {FL_CH}
s_lshl_b32 s{sQ}, s{sQ}, 8
s_add_u32 s{sQ}, s{sQ}, {FLAGS}
v_mov_b32 v{vFM}, s{sQ}
s_mov_b32 s{sKT_}, 0
s_mov_b32 s{sKM_}, 0""")
            wait_ln(a, vF0)
            a(f"s_cmp_eq_u32 s{F.sJ}, 0")
            a(f"s_cselect_b32 s{sQ2}, 1, 32")
        else:
            a(f"s_add_u32 s{sQ2}, s{F.sIt}, 2")
        l1, l2 = a.uid("L_wt"), a.uid("L_wt")
        a(f"s_cmp_ge_u32 s{sKT_}, s{sQ2}")
        a(f"s_cbranch_scc1 {l2}")
        a(f"s_mov_b32 s{sP}, 0")
        a.label(l1)
        a(f"buffer_load_dword v{vF0}, v{vFT}, {WS}, 0 offen sc1")
        a("s_waitcnt vmcnt(0)")
        a(f"v_readlane_b32 s{sKT_}, v{vF0}, 0")
        a(f"v_readlane_b32 s{sQ}, v{vF0}, 1")
        a(f"s_min_u32 s{sKT_}, s{sKT_}, s{sQ}")
        a(f"v_readlane_b32 s{sQ}, v{vF0}, 2")
        a(f"s_min_u32 s{sKT_}, s{sKT_}, s{sQ}")
        a(f"s_cmp_ge_u32 s{sKT_}, s{sQ2}")
        a(f"s_cbranch_scc1 {l2}")
        bounded(a, l1)
        a.label(l2)
    def wait_mem(a):
        l1, l2 = a.uid("L_wm"), a.uid("L_wm")
        a(f"s_cmp_gt_u32 s{sKM_}, s{F.sSeg}")
        a(f"s_cbranch_scc1 {l2}")
        a(f"s_mov_b32 s{sP}, 0")
        a.label(l1)
        a(f"buffer_load_dword v{vF0}, v{vFM}, {WS}, 0 offen sc1")
        a("s_waitcnt vmcnt(0)")
        a(f"v_readfirstlane_b32 s{sKM_}, v{vF0}")
        a(f"s_cmp_gt_u32 s{sKM_}, s{F.sSeg}")
        a(f"s_cbranch_scc1 {l2}")
        bounded(a, l1)
        a.label(l2)
    def sig(a):
        flag_store(a, vF0, f"s{F.sIt}", sQF)
    def fin(a):
        a("s_barrier")
        flag_store(a, vF0, "32", sQF)
    def sig_main(a, val):
        l = a.uid("L_sm")
        a(f"s_cmp_lg_u32 s{F.sJ}, 0")
        a(f"s_cbranch_scc1 {l}")
        flag_store(a, vF0, val, sQF)
        a.label(l)
    def gate_mem(a):
        l1, l2 = a.uid("L_gm"), a.uid("L_gm")
        a(f"s_mov_b32 s{sP}, 0")
        a(f"s_cmp_ge_u32 s{sKM_}, s{F.sSeg}")
        a(f"s_cbranch_scc1 {l2}")
        a.label(l1)
        a(f"buffer_load_dword v{vF0}, v{vFM}, {WS}, 0 offen sc1")
        a("s_waitcnt vmcnt(0)")
        a(f"v_readfirstlane_b32 s{sKM_}, v{vF0}")
        a(f"s_cmp_ge_u32 s{sKM_}, s{F.sSeg}")
        a(f"s_cbranch_scc1 {l2}")
        bounded(a, l1)
        a.label(l2)
    return dict(wait_tok=wait_tok, wait_mem=wait_mem, sig=sig, fin=fin, sig_main=sig_main, gate_mem=gate_mem, bounded=bounded)

def emit_final_role(a):
    a.label("L_final")
    if "nofin" in os.environ.get("XF", "").split(","): a("s_branch L_exit")
    if tz_on(): a("s_mov_b32 s62, 0")
    final.emit_final_init(a)
    sTask, sNeed = 30, 31
    vFl, vNd, vT = 124, 125, 126
    a(f"""s_lshl_b32 s{sTask}, s96, 2
s_add_u32 s{sTask}, s{sTask}, s{sW}""")
    a.label("L_fin_loop")
    a(f"""s_mul_i32 s{sQ}, s{sTask}, 1821
s_lshr_b32 s{sQ}, s{sQ}, 16                ; segment
s_lshr_b32 s{sNeed}, s{sQ}, 1
s_add_u32 s{sNeed}, s{sNeed}, 1
s_and_b32 s{sQ2}, s{sQ}, 1
s_lshl_b32 s{sQ2}, s{sQ2}, 4
s_add_u32 s{sQ2}, s{sQ2}, {FL_FO}
s_and_b32 s{sQ}, s{sQ}, 0xfffffffc
s_add_u32 s{sQ}, s{sQ}, {FL_FF - 16}
v_and_b32 v{vT}, 63, v0
v_mov_b32 v{vFl}, s{sQ2}
v_mov_b32 v{vNd}, s{sQ}
v_cmp_gt_u32 vcc, 16, v{vT}
v_cndmask_b32 v{vFl}, v{vNd}, v{vFl}, vcc
v_mov_b32 v{vNd}, s{sNeed}
v_cndmask_b32 v{vNd}, 1, v{vNd}, vcc
v_cmp_gt_u32 vcc, 20, v{vT}
v_cndmask_b32 v{vT}, 0, v{vT}, vcc
v_add_u32 v{vFl}, v{vFl}, v{vT}
v_mov_b32 v{vT}, s{sQ2}
v_cndmask_b32 v{vFl}, v{vT}, v{vFl}, vcc
v_mov_b32 v{vT}, s{sNeed}
v_cndmask_b32 v{vNd}, v{vT}, v{vNd}, vcc
v_lshlrev_b32 v{vFl}, 8, v{vFl}
v_add_u32 v{vFl}, {FLAGS}, v{vFl}
s_add_u32 s{sQ}, s{sQ}, 16
s_lshl_b32 s{sQ}, s{sQ}, 8
s_add_u32 s{sQ}, s{sQ}, {FLAGS}
s_mov_b32 s{sP}, 0""")
    fw0 = "fw0" in os.environ.get("XF", "").split(",")
    if fw0: a(f"s_cmp_lg_u32 s{sW}, 0\ns_cbranch_scc1 L_fin_bar")
    a.label("L_fin_p1")
    a("s_mov_b64 exec, 1")
    a(f"buffer_load_dword v{vT}, off, {WS}, s{sQ} sc1")
    a("s_mov_b64 exec, -1")
    a("s_waitcnt vmcnt(0)")
    a(f"v_readfirstlane_b32 s{sQ2}, v{vT}")
    a(f"s_cmp_ge_u32 s{sQ2}, 1")
    a("s_cbranch_scc1 L_fin_p1b" if fw0 else "s_cbranch_scc1 L_fin_p2")
    bounded(a, "L_fin_p1")
    if fw0:
        a.label("L_fin_p1b")
        a(f"""s_lshr_b32 s{sQ}, s{sTask}, 2
s_and_b32 s{sQ}, s{sQ}, 15
v_readfirstlane_b32 s{sQ2}, v{vFl}
s_lshl_b32 s{sQ}, s{sQ}, 8
s_add_u32 s{sQ}, s{sQ}, s{sQ2}""")
        a.label("L_fin_p1c")
        a("s_mov_b64 exec, 1")
        a(f"buffer_load_dword v{vT}, off, {WS}, s{sQ} sc1")
        a("s_mov_b64 exec, -1")
        a("s_waitcnt vmcnt(0)")
        a(f"v_readfirstlane_b32 s{sQ2}, v{vT}")
        a(f"s_add_u32 s{sQ2}, s{sQ2}, 1")
        a(f"s_cmp_ge_u32 s{sQ2}, s{sNeed}")
        a("s_cbranch_scc1 L_fin_p2")
        bounded(a, "L_fin_p1c")
    a.label("L_fin_p2")
    a(f"buffer_load_dword v{vT}, v{vFl}, {WS}, 0 offen sc1")
    a("s_waitcnt vmcnt(0)")
    a(f"v_cmp_lt_u32 vcc, v{vT}, v{vNd}")
    a("s_cbranch_vccz L_fin_bar" if fw0 else "s_cbranch_vccz L_fin_go")
    bounded(a, "L_fin_p2")
    if fw0:
        a.label("L_fin_bar")
        a("s_barrier")
    a.label("L_fin_go")
    final.emit_final_task(a, sTask)
    a(f"s_add_u32 s{sTask}, s{sTask}, 640")
    a(f"s_cmp_lt_u32 s{sTask}, {63*36}")
    a("s_cbranch_scc1 L_fin_loop")
    a(f"""s_cmp_lg_u32 s{sW}, 0
s_cbranch_scc1 L_exit
s_sub_u32 s{sTask}, s96, 96
s_cmp_ge_u32 s{sTask}, 36
s_cbranch_scc1 L_exit
s_add_u32 s{sTask}, s{sTask}, {63*36}""")
    def zc(a):
        zcap(a, 60)
    final.emit_final_last(a, sTask, bounded, sP, FLAGS, FL_FF, FL_FO, zc)
    if tz_on():
        a("s_waitcnt vmcnt(0)")
        zcap(a, 64)
        zput(a, [(60, 12), (64, 13)], 5, mx=True, wave0=False)
    a("s_branch L_exit")

def build(tm=False):
    a = Asm()
    prologue(a)
    if tm: a("s_memtime s[88:89]")
    zput(a, [(86, 15)], 5, mx=True)
    a(f"s_cmp_lt_u32 s{sRole}, 32")
    a("s_cbranch_scc1 L_chain")
    a(f"s_sub_u32 s96, s{sRole}, 32")
    a("s_cmp_lt_u32 s96, 64")
    a("s_cbranch_scc1 L_r_ln")
    a("s_cmp_lt_u32 s96, 160")
    a("s_cbranch_scc1 L_r_qkv")
    a("s_sub_u32 s96, s96, 160")
    ffn.emit_ffn(a, "L_r_ffn_end", ffn_hooks())
    a.label("L_r_ffn_end")
    a("s_branch L_final")
    a.label("L_r_qkv")
    a("s_sub_u32 s96, s96, 64")
    qkv.emit_qkv(a, "L_r_qkv_end", qkv_hooks())
    a.label("L_r_qkv_end")
    a("s_add_u32 s96, s96, 64")
    a("s_branch L_final")
    a.label("L_r_ln")
    a("s_mov_b32 s30, s96")
    emit_ln_role(a, 30)
    dstamp(a, 3, 8, [(96, 0)])
    a("""s_mov_b32 s30, 0
s_cmp_lt_u32 s96, 32
s_cbranch_scc1 L_r_fol
s_sub_u32 s96, s96, 32
s_lshr_b32 s30, s96, 4
s_add_u32 s30, s30, 1""")
    a.label("L_r_fol")
    if "nofol" in os.environ.get("XF", "").split(","): a("s_branch L_exit")
    follow.emit_follow(a, "L_exit", follow_hooks())
    emit_final_role(a)
    chain.emit_chain(a, tm, fused=True)
    a.label("L_fail")
    a(f"""s_mov_b64 exec, 1
v_mov_b32 v78, 1
buffer_atomic_add v78, off, s[{sDBG}:{sDBG+3}], 0 offset:{4*D_ERR} sc1
s_waitcnt vmcnt(0)""")
    a.label("L_exit")
    a("s_endpgm")
    name = NAME + "_kernel"
    txt = HEADER.format(launch="; @launch grid=(256,1,1) block=(256,1,1) lds=163840") + kernel_open(name) + a.finalize() \
        + '.section .rodata,"a"\n.p2align 6\n' + kernel_desc(name)
    return txt

if __name__ == "__main__":
    out = sys.argv[1] if len(sys.argv) > 1 else f'cdna_kernels/{NAME}.s'
    tm = len(sys.argv) > 2 and sys.argv[2] == "tm"
    open(out, 'w').write(build(tm))
```

```python
from asm import *
from layout import *
from common import *

sA, sB, sCn, sS, sCh = 21, 22, 23, 24, 25
sTx, sTo, sTb = 8, 32, 36
vL16, vRow = 1, 2

def emit_final_init(a):
    srd(a, sTx, KA["x"], 2048 * 576 * 2)
    srd(a, sTo, KA["out"], 2048 * 576 * 2)
    srd(a, sTb, KA["b2"], 576 * 2)
    a(f"""
v_and_b32 v5, 63, v0
v_lshlrev_b32 v{vL16}, 4, v5
v_and_b32 v6, 15, v5
v_lshrrev_b32 v7, 4, v5
v_mul_u32_u24 v6, 1152, v6
v_lshl_add_u32 v{vRow}, v7, 3, v6        ; n*1152 + g*8
v_lshlrev_b32 v3, 3, v7                  ; g*8
""")

def emit_final_task(a, sTask, poll=None):
    WS = f"s[{sWS}:{sWS+3}]"
    a(f"""
s_mul_i32 s{sS}, s{sTask}, 1821
s_lshr_b32 s{sS}, s{sS}, 16
s_mul_i32 s{sA}, s{sS}, 36
s_sub_u32 s{sCh}, s{sTask}, s{sA}
s_mul_i32 s{sA}, s{sS}, {16*36864}
s_lshl_b32 s{sB}, s{sCh}, 10
s_add_u32 s{sA}, s{sA}, s{sB}
s_add_u32 s{sA}, s{sA}, {PO}
""")
    P0 = 8
    def po_loads(sc):
        for p in range(16):
            a(f"buffer_load_dwordx4 {vr(P0+4*p,4)}, v{vL16}, {WS}, s{sA} offen{sc}")
            if p < 15: a(f"s_add_u32 s{sA}, s{sA}, 36864")
    if poll: a(f"s_mov_b32 s26, s{sA}")
    else: po_loads("")
    a(f"""s_mul_i32 s{sA}, s{sS}, {4*36864}
s_add_u32 s{sA}, s{sA}, s{sB}
s_add_u32 s{sA}, s{sA}, {FB}""")
    F0 = 72
    for p in range(4):
        a(f"buffer_load_dwordx4 {vr(F0+4*p,4)}, v{vL16}, {WS}, s{sA} offen")
        if p < 3: a(f"s_add_u32 s{sA}, s{sA}, 36864")
    a(f"""s_mul_i32 s{sA}, s{sS}, 36864
s_lshl_b32 s{sB}, s{sCh}, 5
s_add_u32 s{sA}, s{sA}, s{sB}
s_add_u32 s{sCn}, s{sA}, {16*1152}
buffer_load_dwordx2 v[88:89], v{vRow}, s[{sTx}:{sTx+3}], s{sA} offen
buffer_load_dwordx2 v[90:91], v{vRow}, s[{sTx}:{sTx+3}], s{sCn} offen
buffer_load_dwordx2 v[92:93], v3, s[{sTb}:{sTb+3}], s{sB} offen""")
    if poll:
        l1, l2 = a.uid("L_pd"), a.uid("L_pd")
        a(f"s_mov_b32 s27, s{sA}")
        a.label(l1)
        a(f"s_mov_b32 s{sA}, s26")
        po_loads(" sc1")
        for p in range(16):
            a(f"s_waitcnt vmcnt({15 - p})")
            b = P0 + 4 * p
            if p == 0:
                a(f"v_max3_u32 v112, v{b}, v{b+1}, v{b+2}")
                a(f"v_mov_b32 v113, v{b+3}")
            else:
                a(f"v_max3_u32 v112, v112, v{b}, v{b+1}")
                a(f"v_max3_u32 v113, v113, v{b+2}, v{b+3}")
        a("v_max_u32 v112, v112, v113")
        a("v_cmp_eq_u32 vcc, -1, v112")
        a(f"s_cbranch_vccz {l2}")
        poll(a, l1)
        a.label(l2)
        a(f"s_mov_b32 s{sA}, s27")
    A = 96
    def accum(dst, src, first):
        for i in range(4):
            if first:
                a(f"v_lshlrev_b32 v{dst+2*i}, 16, v{src+i}")
                a(f"v_and_b32 v{dst+2*i+1}, 0xffff0000, v{src+i}")
            else:
                a(f"v_lshlrev_b32 v112, 16, v{src+i}")
                a(f"v_and_b32 v113, 0xffff0000, v{src+i}")
                a(f"v_add_f32 v{dst+2*i}, v{dst+2*i}, v112")
                a(f"v_add_f32 v{dst+2*i+1}, v{dst+2*i+1}, v113")
    for p in range(16):
        if not poll: a(f"s_waitcnt vmcnt({22 - p})")
        accum(A, P0 + 4*p, p == 0)
    for p in range(4):
        if not poll: a(f"s_waitcnt vmcnt({6 - p})")
        accum(A + 8, F0 + 4*p, p == 0)
    a("s_waitcnt vmcnt(0)")
    for i in range(4):
        xa = 88 + i; b2 = 92 + (i & 1)
        a(f"""v_cvt_pk_bf16_f32 v112, v{A+2*i}, v{A+2*i+1}
v_cvt_pk_bf16_f32 v113, v{A+8+2*i}, v{A+8+2*i+1}
v_lshlrev_b32 v114, 16, v112
v_and_b32 v115, 0xffff0000, v112
v_lshlrev_b32 v116, 16, v{xa}
v_and_b32 v117, 0xffff0000, v{xa}
v_add_f32 v114, v114, v116
v_add_f32 v115, v115, v117
v_cvt_pk_bf16_f32 v112, v114, v115
v_lshlrev_b32 v114, 16, v113
v_and_b32 v115, 0xffff0000, v113
v_lshlrev_b32 v116, 16, v{b2}
v_and_b32 v117, 0xffff0000, v{b2}
v_add_f32 v114, v114, v116
v_add_f32 v115, v115, v117
v_cvt_pk_bf16_f32 v113, v114, v115
v_lshlrev_b32 v114, 16, v112
v_and_b32 v115, 0xffff0000, v112
v_lshlrev_b32 v116, 16, v113
v_and_b32 v117, 0xffff0000, v113
v_add_f32 v114, v114, v116
v_add_f32 v115, v115, v117
v_cvt_pk_bf16_f32 v{120+i}, v114, v115""")
    a(f"buffer_store_dwordx2 v[120:121], v{vRow}, s[{sTo}:{sTo+3}], s{sA} offen")
    a(f"buffer_store_dwordx2 v[122:123], v{vRow}, s[{sTo}:{sTo+3}], s{sCn} offen")


def emit_final_last(a, sTask, bounded, sP, FLAGS_, FL_FF_, FL_FO_, zc=None):
    WS = f"s[{sWS}:{sWS+3}]"
    P0, F0, A, B = 8, 72, 96, 104
    ID, XF_, BF = 118, 128, 136
    vT = 112
    def mf(dst, src, first):
        for h in range(2):
            c = "0" if first else vr(dst + 4*h, 4)
            a(f"v_mfma_f32_4x4x4_16b_bf16 {vr(dst+4*h,4)}, {vr(ID,2)}, {vr(src+2*h,2)}, {c}")
    a(f"""s_cmp_ge_u32 s{sTask}, 36
s_cselect_b32 s{sS}, 1, 0
s_mul_i32 s{sA}, s{sS}, 36
s_sub_u32 s{sCh}, s{sTask}, s{sA}
v_and_b32 v5, 63, v0
v_and_b32 v6, 1, v5
v_cmp_eq_u32 vcc, 0, v6
v_mov_b32 v7, 0x3f80
v_mov_b32 v6, 0x3f800000
v_cndmask_b32 v6, v6, v7, vcc
v_and_b32 v7, 2, v5
v_cmp_eq_u32 vcc, 0, v7
v_cndmask_b32 v{ID}, 0, v6, vcc
v_cndmask_b32 v{ID+1}, v6, 0, vcc
v_and_b32 v7, 3, v5
v_add_u32 v7, {FL_FF_ + 60}, v7
v_lshlrev_b32 v7, 8, v7
v_add_u32 v7, {FLAGS_}, v7
s_mov_b32 s{sP}, 0""")
    l1, l2 = a.uid("L_lf"), a.uid("L_lf")
    a.label(l1)
    a(f"buffer_load_dword v{vT}, v7, {WS}, 0 offen sc1")
    a("s_waitcnt vmcnt(0)")
    a(f"v_cmp_eq_u32 vcc, 0, v{vT}")
    a(f"s_cbranch_vccz {l2}")
    bounded(a, l1)
    a.label(l2)
    a(f"""s_lshl_b32 s{sB}, s{sCh}, 10
s_mul_i32 s{sA}, s{sS}, {16*36864}
s_add_u32 s26, s{sB}, s{sA}
s_add_u32 s26, s26, {PO + 62*16*36864}
s_mul_i32 s{sA}, s{sS}, {4*36864}
s_add_u32 s{sA}, s{sA}, s{sB}
s_add_u32 s{sA}, s{sA}, {FB + 62*4*36864}""")
    for p in range(4):
        a(f"buffer_load_dwordx4 {vr(F0+4*p,4)}, v{vL16}, {WS}, s{sA} offen")
        if p < 3: a(f"s_add_u32 s{sA}, s{sA}, 36864")
    a(f"""s_lshl_b32 s{sB}, s{sCh}, 5
s_mul_i32 s27, s{sS}, 36864
s_add_u32 s27, s27, s{sB}
s_add_u32 s27, s27, {62*36864}
s_add_u32 s{sCn}, s27, {16*1152}
buffer_load_dwordx2 v[88:89], v{vRow}, s[{sTx}:{sTx+3}], s27 offen
buffer_load_dwordx2 v[90:91], v{vRow}, s[{sTx}:{sTx+3}], s{sCn} offen
buffer_load_dwordx2 v[92:93], v3, s[{sTb}:{sTb+3}], s{sB} offen
s_and_b32 s{sA}, s{sCh}, 15
s_lshl_b32 s{sS}, s{sS}, 4
s_add_u32 s{sA}, s{sA}, s{sS}
s_add_u32 s{sA}, s{sA}, {FL_FO_}
s_lshl_b32 s{sA}, s{sA}, 8
s_add_u32 s25, s{sA}, {FLAGS_}""")
    for p in range(4):
        a(f"s_waitcnt vmcnt({6 - p})")
        mf(B, F0 + 4*p, p == 0)
    a("s_waitcnt vmcnt(0)")
    for i in range(4):
        b2 = 92 + (i & 1)
        a(f"""v_cvt_pk_bf16_f32 v113, v{B+2*i}, v{B+2*i+1}
v_lshlrev_b32 v114, 16, v113
v_and_b32 v115, 0xffff0000, v113
v_lshlrev_b32 v116, 16, v{b2}
v_and_b32 v117, 0xffff0000, v{b2}
v_add_f32 v114, v114, v116
v_add_f32 v115, v115, v117
v_cvt_pk_bf16_f32 v113, v114, v115
v_lshlrev_b32 v{BF+2*i}, 16, v113
v_and_b32 v{BF+2*i+1}, 0xffff0000, v113
v_lshlrev_b32 v{XF_+2*i}, 16, v{88+i}
v_and_b32 v{XF_+2*i+1}, 0xffff0000, v{88+i}""")
    l1, l2 = a.uid("L_lg"), a.uid("L_lg")
    a(f"s_mov_b32 s{sP}, 0")
    a.label(l1)
    a("s_mov_b64 exec, 1")
    a(f"buffer_load_dword v{vT}, off, {WS}, s25 sc1")
    a("s_mov_b64 exec, -1")
    a("s_waitcnt vmcnt(0)")
    a(f"v_readfirstlane_b32 s{sA}, v{vT}")
    a(f"s_cmp_ge_u32 s{sA}, 32")
    a(f"s_cbranch_scc1 {l2}")
    bounded(a, l1)
    a.label(l2)
    if zc: zc(a)
    l1, l2 = a.uid("L_pd"), a.uid("L_pd")
    a(f"s_mov_b32 s{sP}, 0")
    a.label(l1)
    a(f"s_mov_b32 s{sA}, s26")
    for p in range(16):
        a(f"buffer_load_dwordx4 {vr(P0+4*p,4)}, v{vL16}, {WS}, s{sA} offen sc1")
        if p < 15: a(f"s_add_u32 s{sA}, s{sA}, 36864")
    for p in range(16):
        a(f"s_waitcnt vmcnt({15 - p})")
        b = P0 + 4 * p
        mf(A, b, p == 0)
        if p == 0:
            a(f"v_max3_u32 v112, v{b}, v{b+1}, v{b+2}")
            a(f"v_mov_b32 v113, v{b+3}")
        else:
            a(f"v_max3_u32 v112, v112, v{b}, v{b+1}")
            a(f"v_max3_u32 v113, v113, v{b+2}, v{b+3}")
    a("v_max_u32 v112, v112, v113")
    a("v_cmp_eq_u32 vcc, -1, v112")
    a(f"s_cbranch_vccz {l2}")
    bounded(a, l1)
    a.label(l2)
    for i in range(4):
        a(f"""v_cvt_pk_bf16_f32 v112, v{A+2*i}, v{A+2*i+1}
v_lshlrev_b32 v114, 16, v112
v_and_b32 v115, 0xffff0000, v112
v_pk_add_f32 v[114:115], v[114:115], v[{XF_+2*i}:{XF_+2*i+1}]
v_cvt_pk_bf16_f32 v112, v114, v115
v_lshlrev_b32 v114, 16, v112
v_and_b32 v115, 0xffff0000, v112
v_pk_add_f32 v[114:115], v[114:115], v[{BF+2*i}:{BF+2*i+1}]
v_cvt_pk_bf16_f32 v{120+i}, v114, v115""")
        if i == 1: a(f"buffer_store_dwordx2 v[120:121], v{vRow}, s[{sTo}:{sTo+3}], s27 offen")
    a(f"buffer_store_dwordx2 v[122:123], v{vRow}, s[{sTo}:{sTo+3}], s{sCn} offen")
```

```python
from asm import *
from layout import *
from common import *

sHP, sPar, sSeg, sA, sB, sCn, sTok, sMem, sPO, sQt, sC, sIt = 18, 19, 20, 21, 22, 23, 24, 25, 26, 27, 28, 29
sJ = 30
sM0, sM1 = 40, 48
sT = 8
vL16, vOBw, vOBr, vOBr1 = 1, 2, 3, 4
S0, S1, S2, PT, PM, SUM, ONES, ONZ, T0, T1 = 8, 12, 16, 20, 24, 26, 30, 34, 36, 37
KMR, VMR, QR, KR, VR, ACC = 40, 56, 72, 88, 120, 152
OPK = 184
WREG = 36864
def wreg(t, hl, kb):
    i = (t * 2 + hl) * 4 + kb
    return 256 + 4 * i if i < 64 else 224 + 4 * (i - 64)
OB = [0, 16384]

def emit_follow_init(a):
    a(f"""
s_and_b32 s{sHP}, s96, 15
s_lshr_b32 s{sPar}, s96, 4
s_cmp_eq_u32 s{sJ}, 0
s_cselect_b32 s{sSeg}, s{sPar}, 63
s_cselect_b32 s{sPar}, s{sPar}, 1
s_cselect_b32 s{sIt}, 0, 31
v_and_b32 v5, 63, v0
v_lshlrev_b32 v{vL16}, 4, v5
""")
    srd(a, sT, KA["Wo"], 32 * 128 * 576 * 2)
    for i in range(9):
        a(f"""v_add_u32 v6, {64*i}, v5
v_mul_u32_u24 v7, 3641, v6
v_lshrrev_b32 v7, 16, v7
v_mul_u32_u24 v8, 18, v7
v_sub_u32 v8, v6, v8
v_mul_u32_u24 v7, 1152, v7
v_lshl_add_u32 v{10+i}, v8, 4, v7""")
    a(f"""s_mul_i32 s{sA}, s{sHP}, {2*147456}
s_mul_i32 s{sB}, s{sW}, 288
s_add_u32 s{sA}, s{sA}, s{sB}
s_mul_i32 s{sB}, s{sW}, {WREG}
v_lshrrev_b32 v6, 4, v5
v_lshlrev_b32 v6, 2, v6
v_bfe_u32 v7, v5, 2, 2
v_add_u32 v6, v6, v7
v_mul_u32_u24 v6, 288, v6
v_and_b32 v7, 3, v5
v_lshl_add_u32 v6, v7, 3, v6
v_add_u32 v6, s{sB}, v6
s_mul_i32 s{sCn}, s{sJ}, 96
v_add_u32 v6, s{sCn}, v6
""")
    for hl in range(2):
        for r in range(4):
            for i in range(9):
                a(f"s_add_u32 m0, s{sB}, {(r*9+i)*1024}")
                a(f"buffer_load_dwordx4 v{10+i}, s[{sT}:{sT+3}], s{sA} offen lds")
            a(f"s_add_u32 s{sA}, s{sA}, {32*1152}")
        for kb in range(4):
            a(f"s_waitcnt vmcnt({27 - 9*kb})")
            for t in range(9):
                for half in range(2):
                    a(f"ds_read_b64_tr_b16 {vr(wreg(t,hl,kb) + 2*half, 2)}, v6 offset:{(32*kb + 16*half)*288 + t*32}")
            a("s_waitcnt lgkmcnt(0)")
    a(f"""
s_and_b32 s{sQt}, s{sW}, 1
s_lshr_b32 s{sA}, s{sW}, 1
s_lshl_b32 s{sB}, s{sHP}, 1
s_add_u32 s{sB}, s{sB}, s{sA}           ; head
s_lshl_b32 s{sCn}, s{sSeg}, 5
s_add_u32 s{sCn}, s{sCn}, s{sB}
s_lshl_b32 s{sTok}, s{sCn}, 13
s_lshl_b32 s{sMem}, s{sCn}, 12
s_lshl_b32 s{sCn}, s{sSeg}, 4
s_add_u32 s{sCn}, s{sCn}, s{sHP}
s_mul_i32 s{sCn}, s{sCn}, 36864
s_mul_i32 s{sB}, s{sW}, 9216
s_add_u32 s{sCn}, s{sCn}, s{sB}
s_mul_i32 s{sB}, s{sJ}, 3072
s_add_u32 s{sCn}, s{sCn}, s{sB}
s_add_u32 s{sPO}, s{sCn}, {PO}
s_lshl_b32 s{sCn}, s{sW}, 12
v_add_u32 v{vOBw}, s{sCn}, v{vL16}
s_mov_b32 s{sC}, 0x3e0293ee
; masks : M_i = (4g+i <= n)
v_and_b32 v6, 15, v5
v_lshrrev_b32 v7, 4, v5
v_lshlrev_b32 v7, 2, v7
""")
    for i in range(4):
        a(f"v_add_u32 v8, {i}, v7")
        a(f"v_cmp_le_u32 s[{sM0+2*i}:{sM0+2*i+1}], v8, v6")
    a(f"s_cmp_eq_u32 s{sQt}, 0")
    for i in range(4):
        a(f"s_cselect_b64 s[{sM1+2*i}:{sM1+2*i+1}], 0, s[{sM0+2*i}:{sM0+2*i+1}]")
        a(f"s_cselect_b64 s[{sM0+2*i}:{sM0+2*i+1}], s[{sM0+2*i}:{sM0+2*i+1}], -1")
    for r in range(ONES, ONES + 5): a(f"v_mov_b32 v{r}, 0x3f803f80")
    a(f"v_mov_b32 v{ONZ+1}, 0")
    a("s_barrier")

def tok_loads(a):
    WS = f"s[{sWS}:{sWS+3}]"
    a(f"s_add_u32 s{sA}, s{sTok}, {KT}")
    a(f"s_add_u32 s{sB}, s{sTok}, {QT}")
    a(f"s_lshl_b32 s{sCn}, s{sQt}, 10")
    a(f"s_add_u32 s{sB}, s{sB}, s{sCn}")
    for kb in range(4):
        a(f"buffer_load_dwordx4 {vr(QR+4*kb,4)}, v{vL16}, {WS}, s{sB} offen")
        a(f"buffer_load_dwordx4 {vr(KR+8*kb,4)}, v{vL16}, {WS}, s{sA} offen")
        a(f"buffer_load_dwordx4 {vr(KR+8*kb+4,4)}, v{vL16}, {WS}, s{sA} offen offset:1024")
        if kb < 3:
            a(f"s_add_u32 s{sA}, s{sA}, 2048")
            a(f"s_add_u32 s{sB}, s{sB}, 2048")
    a(f"s_add_u32 s{sA}, s{sTok}, {VT}")
    for kb in range(4):
        a(f"buffer_load_dwordx4 {vr(VR+8*kb,4)}, v{vL16}, {WS}, s{sA} offen")
        a(f"buffer_load_dwordx4 {vr(VR+8*kb+4,4)}, v{vL16}, {WS}, s{sA} offen offset:1024")
        if kb < 3: a(f"s_add_u32 s{sA}, s{sA}, 2048")
    a(f"s_add_u32 s{sTok}, s{sTok}, {2*32*8192}")

def emit_follow(a, lab_end, fused=None):
    WS = f"s[{sWS}:{sWS+3}]"
    emit_follow_init(a)
    if fused: fused["wait_tok"](a, 0)
    tok_loads(a)
    a(f"s_cmp_lg_u32 s{sJ}, 0")
    a("s_cbranch_scc1 L_fol_last")
    a("s_waitcnt vmcnt(0)")
    def tok_scores():
        for kb in range(4):
            c1 = "0" if kb == 0 else vr(S1, 4); c2 = "0" if kb == 0 else vr(S2, 4)
            a(f"v_mfma_f32_16x16x32_bf16 {vr(S1,4)}, {vr(KR+8*kb,4)}, {vr(QR+4*kb,4)}, {c1}")
            a(f"v_mfma_f32_16x16x32_bf16 {vr(S2,4)}, {vr(KR+8*kb+4,4)}, {vr(QR+4*kb,4)}, {c2}")
    def mem_loads(sc):
        a(f"s_add_u32 s{sA}, s{sMem}, {KM}")
        a(f"s_add_u32 s{sB}, s{sMem}, {VM}")
        for kb in range(4):
            a(f"buffer_load_dwordx4 {vr(KMR+4*kb,4)}, v{vL16}, {WS}, s{sA} offen offset:{1024*kb}{sc}")
        for kb in range(4):
            a(f"buffer_load_dwordx4 {vr(VMR+4*kb,4)}, v{vL16}, {WS}, s{sB} offen offset:{1024*kb}{sc}")
    def watch(b):
        a(f"v_max3_u32 v{T0}, v{b}, v{b+1}, v{b+2}")
        a(f"v_max3_u32 v{T1}, v{b+3}, v{b+4}, v{b+5}")
        a(f"v_max3_u32 v{T0}, v{T0}, v{b+6}, v{b+7}")
        a(f"v_max3_u32 v{T1}, v{T1}, v{b+8}, v{b+9}")
        a(f"v_max3_u32 v{T0}, v{T0}, v{b+10}, v{b+11}")
        a(f"v_max3_u32 v{T1}, v{T1}, v{b+12}, v{b+13}")
        a(f"v_max3_u32 v{T0}, v{T0}, v{b+14}, v{b+15}")
        a(f"v_max_u32 v{T0}, v{T0}, v{T1}")
        a(f"v_cmp_eq_u32 vcc, -1, v{T0}")
    def wo_phase(buf, nt, deep):
        lg = Cnt(a, "lgkmcnt")
        seq = [(hl, kb, qt) for hl in range(2) for kb in range(4) for qt in range(2)]
        fr = (lambda n: KR + 4 * n) if deep else (lambda n: KMR + 4 * (n % 4))
        def rd(n):
            hl, kb, qt = seq[n]
            lg.op(f"ds_read_b128 {vr(fr(n),4)}, v{vL16} offset:{OB[buf] + (hl*2+qt)*4096 + kb*1024}", f"o{n}")
        pre = 12 if deep else 3
        for n in range(pre): rd(n)
        for n in range(16):
            hl, kb, qt = seq[n]
            lg.wait(f"o{n}")
            for t in range(nt):
                d = ACC + 8 * t + 4 * qt
                c = "0" if n < 2 else vr(d, 4)
                a(f"v_mfma_f32_16x16x32_bf16 {vr(d,4)}, {vr(wreg(t,hl,kb),4)}, {vr(fr(n),4)}, {c}")
                if t == 0 and n + pre < 16: rd(n + pre)
        for t in range(nt):
            d = ACC + 8 * t; e = 8 + 4 * (t % 4)
            for i in range(4): a(f"v_cvt_pk_bf16_f32 v{e+i}, v{d+2*i}, v{d+2*i+1}")
            a(f"s_add_u32 s{sA}, s{sPO}, {1024*t}")
            a(f"buffer_store_dwordx4 {vr(e,4)}, v{vL16}, {WS}, s{sA} offen sc1")
    def item(buf, watch_=False, last=False):
        if not watch_:
            if fused: fused["wait_mem"](a)
            zcap(a, 60)
            mem_loads("")
            a(f"s_add_u32 s{sMem}, s{sMem}, {2*32*4096}")
            a("s_waitcnt vmcnt(17)")
            tok_scores()
            a("s_waitcnt vmcnt(4)")
        else:
            if last:
                a("s_waitcnt vmcnt(0)")
                a("s_barrier")
                fused["sig_main"](a, f"s{sIt}")
            else:
                a("s_waitcnt vmcnt(9)")
            tok_scores()
            fused["gate_mem"](a)
            l1, l2 = a.uid("L_md"), a.uid("L_md")
            a.label(l1)
            mem_loads(" sc1")
            a("s_waitcnt vmcnt(4)")
            watch(KMR)
            a(f"s_cbranch_vccz {l2}")
            fused["bounded"](a, l1)
            a.label(l2)
            zcap(a, 60)
        for kb in range(4):
            c0 = "0" if kb == 0 else vr(S0, 4)
            a(f"v_mfma_f32_16x16x32_bf16 {vr(S0,4)}, {vr(KMR+4*kb,4)}, {vr(QR+4*kb,4)}, {c0}")
        a(f"v_mov_b32 v{T1}, 0xce6e6b28")
        for i in range(4): a(f"v_cndmask_b32 v{S1+i}, v{T1}, v{S1+i}, s[{sM0+2*i}:{sM0+2*i+1}]")
        for i in range(4): a(f"v_cndmask_b32 v{S2+i}, v{T1}, v{S2+i}, s[{sM1+2*i}:{sM1+2*i+1}]")
        a(f"""v_max3_f32 v{T0}, v{S1}, v{S1+1}, v{S1+2}
v_max3_f32 v{T1}, v{S1+3}, v{S2}, v{S2+1}
v_max3_f32 v{T0}, v{T0}, v{S2+2}, v{S2+3}
v_max3_f32 v{T1}, v{T1}, v{S0}, v{S0+1}
v_max_f32 v{T0}, v{T0}, v{T1}
v_mov_b32 v{T1}, v{T0}
v_permlane16_swap_b32 v{T0}, v{T1}
v_max_f32 v{T0}, v{T0}, v{T1}
v_mov_b32 v{T1}, v{T0}
v_permlane32_swap_b32 v{T0}, v{T1}
v_max_f32 v{T0}, v{T0}, v{T1}
v_mul_f32 v{T0}, s{sC}, v{T0}""")
        vals = [S0, S0 + 1] + [S1 + i for i in range(4)] + [S2 + i for i in range(4)]
        for r in vals: a(f"v_fma_f32 v{r}, v{r}, s{sC}, -v{T0}")
        for r in vals: a(f"v_exp_f32 v{r}, v{r}")
        a(f"""v_cvt_pk_bf16_f32 v{PT}, v{S1}, v{S1+1}
v_cvt_pk_bf16_f32 v{PT+1}, v{S1+2}, v{S1+3}
v_cvt_pk_bf16_f32 v{PT+2}, v{S2}, v{S2+1}
v_cvt_pk_bf16_f32 v{PT+3}, v{S2+2}, v{S2+3}
v_cvt_pk_bf16_f32 v{PM}, v{S0}, v{S0+1}
v_mov_b32 v{PM+1}, v{PM}""")
        a(f"v_mfma_f32_16x16x32_bf16 {vr(SUM,4)}, {vr(ONES,4)}, {vr(PT,4)}, 0")
        for et in range(8):
            a(f"v_mfma_f32_16x16x32_bf16 {vr(ACC+4*et,4)}, {vr(VR+4*et,4)}, {vr(PT,4)}, 0")
        if not watch_: a("s_waitcnt vmcnt(0)")
        else:
            l1, l2 = a.uid("L_mv"), a.uid("L_mv")
            a.label(l1)
            a("s_waitcnt vmcnt(0)")
            watch(VMR)
            a(f"s_cbranch_vccz {l2}")
            a(f"s_add_u32 s{sB}, s{sMem}, {VM}")
            for kb in range(4):
                a(f"buffer_load_dwordx4 {vr(VMR+4*kb,4)}, v{vL16}, {WS}, s{sB} offen offset:{1024*kb} sc1")
            fused["bounded"](a, l1)
            a.label(l2)
            if last: fused["sig_main"](a, "32")
            else: a(f"s_add_u32 s{sMem}, s{sMem}, {2*32*4096}")
        a(f"v_mfma_f32_16x16x16_bf16 {vr(SUM,4)}, {vr(ONZ,2)}, {vr(PM,2)}, {vr(SUM,4)}")
        for et in range(8):
            a(f"v_mfma_f32_16x16x16_bf16 {vr(ACC+4*et,4)}, {vr(VMR+2*et,2)}, {vr(PM,2)}, {vr(ACC+4*et,4)}")
        if not last:
            if fused: fused["wait_tok"](a, 1)
            tok_loads(a)
        a(f"v_rcp_f32 v{T0}, v{SUM}")
        for et in range(8):
            for i in range(4): a(f"v_mul_f32 v{ACC+4*et+i}, v{ACC+4*et+i}, v{T0}")
            a(f"v_cvt_pk_bf16_f32 v{OPK+2*et}, v{ACC+4*et}, v{ACC+4*et+1}")
            a(f"v_cvt_pk_bf16_f32 v{OPK+2*et+1}, v{ACC+4*et+2}, v{ACC+4*et+3}")
            if et & 1:
                a(f"ds_write_b128 v{vOBw}, {vr(OPK+4*(et>>1),4)} offset:{OB[buf] + 1024*(et>>1)}")
        a("s_waitcnt lgkmcnt(0)")
        a("s_barrier")
        zcap(a, 62)
        if not last:
            if fused: fused["sig"](a)
            wo_phase(buf, 9, False)
            zcap(a, 64)
            a(f"s_add_u32 s{sPO}, s{sPO}, {2*16*36864}")
            a(f"s_add_u32 s{sIt}, s{sIt}, 1")
            a(f"s_add_u32 s{sSeg}, s{sSeg}, 2")
        else:
            a(f"s_cmp_eq_u32 s{sPar}, 0")
            a("s_cbranch_scc1 L_fol_l62")
            wo_phase(buf, 3, True)
            zcap(a, 64)
            if tz_on(): a("s_waitcnt vmcnt(0)")
            zcap(a, 66)
            zput(a, [(60, 7), (62, 9), (64, 10), (66, 11)], 5, [(96, 16), (sJ, 0)])
            a(f"s_branch {lab_end}")
            a.label("L_fol_l62")
            wo_phase(buf, 9, False)
            if tz_on(): a("s_waitcnt vmcnt(0)")
            zcap(a, 66)
            zput(a, [(66, 14)], 5, [(96, 0)])
            a(f"s_branch {lab_end}")
    a.label("L_fol_loop")
    item(0)
    item(1)
    a(f"s_cmp_lt_u32 s{sIt}, 30")
    a("s_cbranch_scc1 L_fol_loop")
    item(0, watch_=True)
    a.label("L_fol_last")
    item(1, watch_=True, last=True)
```

```python
import sys
sys.path.insert(0, 'gen')
from asm import *
from layout import *
from common import *
import ln, qkv, ffn, follow, final
import os, importlib
chain = importlib.import_module(os.environ.get("CH", "chain3"))
if os.environ.get("XF"): chain.X.update(x for x in os.environ["XF"].split(",") if x)

D_LN = 32
FL_CH, FL_QK, FL_FO, FL_FF = 0, 32, 128, 160
POLL_MAX = int(os.environ.get("POLLF", "400000"))
WS = f"s[{sWS}:{sWS+3}]"
DBGS = f"s[{sDBG}:{sDBG+3}]"
sP = 94
sQ, sQ2 = 92, 93

def bounded(a, retry):
    a(f"s_add_u32 s{sP}, s{sP}, 1")
    a(f"s_cmp_lt_u32 s{sP}, {POLL_MAX}")
    a(f"s_cbranch_scc1 {retry}")
    a("s_branch L_fail")

def wait_ln(a, vt):
    l1, l2 = a.uid("L_wl"), a.uid("L_wl")
    a(f"s_cmp_lg_u32 s{sW}, 0")
    a(f"s_cbranch_scc1 {l2}")
    a(f"s_mov_b32 s{sP}, 0")
    a.label(l1)
    a(f"buffer_load_dword v{vt}, off, {DBGS}, 0 offset:{4*D_LN} sc1")
    a("s_waitcnt vmcnt(0)")
    a(f"v_readfirstlane_b32 s{sQ}, v{vt}")
    a(f"s_cmp_ge_u32 s{sQ}, 64")
    a(f"s_cbranch_scc1 {l2}")
    bounded(a, l1)
    a.label(l2)
    a("s_barrier")

def flag_store(a, vt, sval, soff, wave=0):
    l = a.uid("L_fs")
    a(f"s_cmp_lg_u32 s{sW}, {wave}")
    a(f"s_cbranch_scc1 {l}")
    a(f"v_mov_b32 v{vt}, {sval}")
    a("s_mov_b64 exec, 1")
    a(f"buffer_store_dword v{vt}, off, {WS}, s{soff} sc1")
    a("s_mov_b64 exec, -1")
    a.label(l)

def emit_ln_role(a, sSeg):
    def sentinels(a):
        for r in range(132, 136): a(f"v_mov_b32 v{r}, -1")
        st = lambda: a(f"buffer_store_dwordx4 v[132:135], v6, {WS}, s{sQ} offen sc1")
        a(f"""s_lshl_b32 s{sQ}, s{sSeg}, 13
s_lshl_b32 s{sQ2}, s{sW}, 10
s_add_u32 s{sQ}, s{sQ}, s{sQ2}
s_add_u32 s{sQ}, s{sQ}, {KM + 60*131072}""")
        st(); a(f"s_add_u32 s{sQ}, s{sQ}, 4096"); st()
        a(f"s_add_u32 s{sQ}, s{sQ}, {VM - KM - 4096}"); st(); a(f"s_add_u32 s{sQ}, s{sQ}, 4096"); st()
        a(f"""s_mul_i32 s{sQ}, s{sSeg}, 18432
s_add_u32 s{sQ}, s{sQ}, s{sQ2}
s_add_u32 s{sQ}, s{sQ}, {PO + 62*16*36864}""")
        for i in range(4):
            st(); a(f"s_add_u32 s{sQ}, s{sQ}, 4096")
        l = a.uid("L_sn")
        a(f"s_cmp_ge_u32 s{sW}, 2")
        a(f"s_cbranch_scc1 {l}")
        st()
        a.label(l)
    ln.emit_ln(a, sSeg, mid=sentinels)
    l = a.uid("L_zf")
    a(f"s_cmp_lg_u32 s{sW}, 0")
    a(f"s_cbranch_scc1 {l}")
    a(f"s_lshl_b32 s{sQ}, s{sSeg}, 10")
    a(f"s_add_u32 s{sQ}, s{sQ}, {FLAGS}")
    a("v_mov_b32 v8, 0\nv_mov_b32 v9, 0\nv_mov_b32 v10, 0\nv_mov_b32 v11, 0")
    a(f"buffer_store_dwordx4 v[8:11], v6, {WS}, s{sQ} offen sc1")
    a("s_waitcnt vmcnt(0)")
    a.label(l)
    a("s_barrier")
    l = a.uid("L_lna")
    a(f"s_cmp_lg_u32 s{sW}, 0")
    a(f"s_cbranch_scc1 {l}")
    a("s_mov_b64 exec, 1")
    a("v_mov_b32 v8, 1")
    a(f"buffer_atomic_add v8, off, {DBGS}, 0 offset:{4*D_LN} sc1")
    a("s_mov_b64 exec, -1")
    a.label(l)

sQF = 95
def qkv_hooks():
    def wait_xn(a):
        a(f"s_add_u32 s{sQF}, s96, {FL_QK}")
        a(f"s_lshl_b32 s{sQF}, s{sQF}, 8")
        a(f"s_add_u32 s{sQF}, s{sQF}, {FLAGS}")
        dstamp(a, 0, qkv.vTmp, [(96, 0)])
        wait_ln(a, qkv.vTmp)
        dstamp(a, 1, qkv.vTmp, [(96, 0)])
    def sig(a):
        a(f"s_sub_u32 s{sQ}, s{qkv.sSeg}, 1")
        a(f"s_max_i32 s{sQ}, s{sQ}, 0")
        flag_store(a, qkv.vTmp, f"s{sQ}", sQF)
        dstamp(a, 2, qkv.vTmp, [(96, 0), (qkv.sSeg, 2)])
    def fin(a):
        a("s_barrier")
        flag_store(a, qkv.vTmp, "32", sQF)
    return dict(wait_xn=wait_xn, sig=sig, fin=fin)

def ffn_hooks():
    def wait_xn(a):
        a(f"s_add_u32 s{sQF}, s96, {FL_FF}")
        a(f"s_lshl_b32 s{sQF}, s{sQF}, 8")
        a(f"s_add_u32 s{sQF}, s{sQF}, {FLAGS}")
        wait_ln(a, 16)
    def fin(a):
        a("s_barrier")
        flag_store(a, 16, "1", sQF)
    return dict(wait_xn=wait_xn, fin=fin)

vFT, vFM, vF0 = 5, 6, 38
sKT_, sKM_ = 90, 91
def follow_hooks():
    F = follow
    def wait_tok(a, which):
        if which == 0:
            a(f"s_add_u32 s{sQF}, s96, {FL_FO}")
            a(f"s_lshl_b32 s{sQF}, s{sQF}, 8")
            a(f"s_add_u32 s{sQF}, s{sQF}, {FLAGS}")
            a(f"""s_mul_i32 s{sQ}, s{F.sPar}, 48
s_add_u32 s{sQ}, s{sQ}, s{F.sHP}
s_add_u32 s{sQ}, s{sQ}, {FL_QK}
s_lshl_b32 s{sQ}, s{sQ}, 8
s_add_u32 s{sQ}, s{sQ}, {FLAGS}
v_and_b32 v{vF0}, 63, v0
v_cmp_gt_u32 vcc, 3, v{vF0}
v_cndmask_b32 v{vF0}, 0, v{vF0}, vcc
v_lshlrev_b32 v{vF0}, 12, v{vF0}
v_add_u32 v{vFT}, s{sQ}, v{vF0}
s_lshl_b32 s{sQ}, s{F.sHP}, 1
s_lshr_b32 s{sQ2}, s{sW}, 1
s_add_u32 s{sQ}, s{sQ}, s{sQ2}
s_add_u32 s{sQ}, s{sQ}, {FL_CH}
s_lshl_b32 s{sQ}, s{sQ}, 8
s_add_u32 s{sQ}, s{sQ}, {FLAGS}
v_mov_b32 v{vFM}, s{sQ}
s_mov_b32 s{sKT_}, 0
s_mov_b32 s{sKM_}, 0""")
            wait_ln(a, vF0)
            a(f"s_cmp_eq_u32 s{F.sJ}, 0")
            a(f"s_cselect_b32 s{sQ2}, 1, 32")
        else:
            a(f"s_add_u32 s{sQ2}, s{F.sIt}, 2")
        l1, l2 = a.uid("L_wt"), a.uid("L_wt")
        a(f"s_cmp_ge_u32 s{sKT_}, s{sQ2}")
        a(f"s_cbranch_scc1 {l2}")
        a(f"s_mov_b32 s{sP}, 0")
        a.label(l1)
        a(f"buffer_load_dword v{vF0}, v{vFT}, {WS}, 0 offen sc1")
        a("s_waitcnt vmcnt(0)")
        a(f"v_readlane_b32 s{sKT_}, v{vF0}, 0")
        a(f"v_readlane_b32 s{sQ}, v{vF0}, 1")
        a(f"s_min_u32 s{sKT_}, s{sKT_}, s{sQ}")
        a(f"v_readlane_b32 s{sQ}, v{vF0}, 2")
        a(f"s_min_u32 s{sKT_}, s{sKT_}, s{sQ}")
        a(f"s_cmp_ge_u32 s{sKT_}, s{sQ2}")
        a(f"s_cbranch_scc1 {l2}")
        bounded(a, l1)
        a.label(l2)
    def wait_mem(a):
        l1, l2 = a.uid("L_wm"), a.uid("L_wm")
        a(f"s_cmp_gt_u32 s{sKM_}, s{F.sSeg}")
        a(f"s_cbranch_scc1 {l2}")
        a(f"s_mov_b32 s{sP}, 0")
        a.label(l1)
        a(f"buffer_load_dword v{vF0}, v{vFM}, {WS}, 0 offen sc1")
        a("s_waitcnt vmcnt(0)")
        a(f"v_readfirstlane_b32 s{sKM_}, v{vF0}")
        a(f"s_cmp_gt_u32 s{sKM_}, s{F.sSeg}")
        a(f"s_cbranch_scc1 {l2}")
        bounded(a, l1)
        a.label(l2)
    def sig(a):
        flag_store(a, vF0, f"s{F.sIt}", sQF)
    def fin(a):
        a("s_barrier")
        flag_store(a, vF0, "32", sQF)
    def sig_main(a, val):
        l = a.uid("L_sm")
        a(f"s_cmp_lg_u32 s{F.sJ}, 0")
        a(f"s_cbranch_scc1 {l}")
        flag_store(a, vF0, val, sQF)
        a.label(l)
    def gate_mem(a):
        l1, l2 = a.uid("L_gm"), a.uid("L_gm")
        a(f"s_mov_b32 s{sP}, 0")
        a(f"s_cmp_ge_u32 s{sKM_}, s{F.sSeg}")
        a(f"s_cbranch_scc1 {l2}")
        a.label(l1)
        a(f"buffer_load_dword v{vF0}, v{vFM}, {WS}, 0 offen sc1")
        a("s_waitcnt vmcnt(0)")
        a(f"v_readfirstlane_b32 s{sKM_}, v{vF0}")
        a(f"s_cmp_ge_u32 s{sKM_}, s{F.sSeg}")
        a(f"s_cbranch_scc1 {l2}")
        bounded(a, l1)
        a.label(l2)
    return dict(wait_tok=wait_tok, wait_mem=wait_mem, sig=sig, fin=fin, sig_main=sig_main, gate_mem=gate_mem, bounded=bounded)

def emit_final_role(a):
    a.label("L_final")
    if "nofin" in os.environ.get("XF", "").split(","): a("s_branch L_exit")
    if tz_on(): a("s_mov_b32 s62, 0")
    final.emit_final_init(a)
    sTask, sNeed = 30, 31
    vFl, vNd, vT = 124, 125, 126
    a(f"""s_lshl_b32 s{sTask}, s96, 2
s_add_u32 s{sTask}, s{sTask}, s{sW}""")
    a.label("L_fin_loop")
    a(f"""s_mul_i32 s{sQ}, s{sTask}, 1821
s_lshr_b32 s{sQ}, s{sQ}, 16                ; segment
s_lshr_b32 s{sNeed}, s{sQ}, 1
s_add_u32 s{sNeed}, s{sNeed}, 1
s_and_b32 s{sQ2}, s{sQ}, 1
s_lshl_b32 s{sQ2}, s{sQ2}, 4
s_add_u32 s{sQ2}, s{sQ2}, {FL_FO}
s_and_b32 s{sQ}, s{sQ}, 0xfffffffc
s_add_u32 s{sQ}, s{sQ}, {FL_FF - 16}
v_and_b32 v{vT}, 63, v0
v_mov_b32 v{vFl}, s{sQ2}
v_mov_b32 v{vNd}, s{sQ}
v_cmp_gt_u32 vcc, 16, v{vT}
v_cndmask_b32 v{vFl}, v{vNd}, v{vFl}, vcc
v_mov_b32 v{vNd}, s{sNeed}
v_cndmask_b32 v{vNd}, 1, v{vNd}, vcc
v_cmp_gt_u32 vcc, 20, v{vT}
v_cndmask_b32 v{vT}, 0, v{vT}, vcc
v_add_u32 v{vFl}, v{vFl}, v{vT}
v_mov_b32 v{vT}, s{sQ2}
v_cndmask_b32 v{vFl}, v{vT}, v{vFl}, vcc
v_mov_b32 v{vT}, s{sNeed}
v_cndmask_b32 v{vNd}, v{vT}, v{vNd}, vcc
v_lshlrev_b32 v{vFl}, 8, v{vFl}
v_add_u32 v{vFl}, {FLAGS}, v{vFl}
s_add_u32 s{sQ}, s{sQ}, 16
s_lshl_b32 s{sQ}, s{sQ}, 8
s_add_u32 s{sQ}, s{sQ}, {FLAGS}
s_mov_b32 s{sP}, 0""")
    fw0 = "fw0" in os.environ.get("XF", "").split(",")
    if fw0: a(f"s_cmp_lg_u32 s{sW}, 0\ns_cbranch_scc1 L_fin_bar")
    a.label("L_fin_p1")
    a("s_mov_b64 exec, 1")
    a(f"buffer_load_dword v{vT}, off, {WS}, s{sQ} sc1")
    a("s_mov_b64 exec, -1")
    a("s_waitcnt vmcnt(0)")
    a(f"v_readfirstlane_b32 s{sQ2}, v{vT}")
    a(f"s_cmp_ge_u32 s{sQ2}, 1")
    a("s_cbranch_scc1 L_fin_p1b" if fw0 else "s_cbranch_scc1 L_fin_p2")
    bounded(a, "L_fin_p1")
    if fw0:
        a.label("L_fin_p1b")
        a(f"""s_lshr_b32 s{sQ}, s{sTask}, 2
s_and_b32 s{sQ}, s{sQ}, 15
v_readfirstlane_b32 s{sQ2}, v{vFl}
s_lshl_b32 s{sQ}, s{sQ}, 8
s_add_u32 s{sQ}, s{sQ}, s{sQ2}""")
        a.label("L_fin_p1c")
        a("s_mov_b64 exec, 1")
        a(f"buffer_load_dword v{vT}, off, {WS}, s{sQ} sc1")
        a("s_mov_b64 exec, -1")
        a("s_waitcnt vmcnt(0)")
        a(f"v_readfirstlane_b32 s{sQ2}, v{vT}")
        a(f"s_add_u32 s{sQ2}, s{sQ2}, 1")
        a(f"s_cmp_ge_u32 s{sQ2}, s{sNeed}")
        a("s_cbranch_scc1 L_fin_p2")
        bounded(a, "L_fin_p1c")
    a.label("L_fin_p2")
    a(f"buffer_load_dword v{vT}, v{vFl}, {WS}, 0 offen sc1")
    a("s_waitcnt vmcnt(0)")
    a(f"v_cmp_lt_u32 vcc, v{vT}, v{vNd}")
    a("s_cbranch_vccz L_fin_bar" if fw0 else "s_cbranch_vccz L_fin_go")
    bounded(a, "L_fin_p2")
    if fw0:
        a.label("L_fin_bar")
        a("s_barrier")
    a.label("L_fin_go")
    final.emit_final_task(a, sTask)
    a(f"s_add_u32 s{sTask}, s{sTask}, 640")
    a(f"s_cmp_lt_u32 s{sTask}, {62*36}")
    a("s_cbranch_scc1 L_fin_loop")
    a(f"""s_cmp_lg_u32 s{sW}, 0
s_cbranch_scc1 L_exit
s_cmp_lt_u32 s96, 88
s_cbranch_scc1 L_exit
s_sub_u32 s{sTask}, s96, 88""")
    def zc(a):
        zcap(a, 60)
    final.emit_final_last(a, sTask, bounded, sP, FLAGS, FL_FF, FL_FO, zc)
    if tz_on():
        a("s_waitcnt vmcnt(0)")
        zcap(a, 64)
        zput(a, [(60, 12), (64, 13)], 5, mx=True, wave0=False)
    a("s_branch L_exit")

def build(tm=False):
    a = Asm()
    prologue(a)
    if tm: a("s_memtime s[88:89]")
    zput(a, [(86, 15)], 5, mx=True)
    a(f"s_cmp_lt_u32 s{sRole}, 32")
    a("s_cbranch_scc1 L_chain")
    a(f"s_sub_u32 s96, s{sRole}, 32")
    a("s_cmp_lt_u32 s96, 64")
    a("s_cbranch_scc1 L_r_ln")
    a("s_cmp_lt_u32 s96, 160")
    a("s_cbranch_scc1 L_r_qkv")
    a("s_sub_u32 s96, s96, 160")
    ffn.emit_ffn(a, "L_r_ffn_end", ffn_hooks())
    a.label("L_r_ffn_end")
    a("s_branch L_final")
    a.label("L_r_qkv")
    a("s_sub_u32 s96, s96, 64")
    qkv.emit_qkv(a, "L_r_qkv_end", qkv_hooks())
    a.label("L_r_qkv_end")
    a("s_add_u32 s96, s96, 64")
    a("s_branch L_final")
    a.label("L_r_ln")
    a("s_mov_b32 s30, s96")
    emit_ln_role(a, 30)
    dstamp(a, 3, 8, [(96, 0)])
    a("""s_mov_b32 s30, 0
s_cmp_lt_u32 s96, 32
s_cbranch_scc1 L_r_fol
s_sub_u32 s96, s96, 32
s_lshr_b32 s30, s96, 4
s_add_u32 s30, s30, 1""")
    a.label("L_r_fol")
    if "nofol" in os.environ.get("XF", "").split(","): a("s_branch L_exit")
    follow.emit_follow(a, "L_exit", follow_hooks())
    emit_final_role(a)
    chain.emit_chain(a, tm, fused=True)
    a.label("L_fail")
    a(f"""s_mov_b64 exec, 1
v_mov_b32 v78, 1
buffer_atomic_add v78, off, s[{sDBG}:{sDBG+3}], 0 offset:{4*D_ERR} sc1
s_waitcnt vmcnt(0)""")
    a.label("L_exit")
    a("s_endpgm")
    name = NAME + "_kernel"
    txt = HEADER.format(launch="; @launch grid=(256,1,1) block=(256,1,1) lds=163840") + kernel_open(name) + a.finalize() \
        + '.section .rodata,"a"\n.p2align 6\n' + kernel_desc(name)
    return txt

if __name__ == "__main__":
    out = sys.argv[1] if len(sys.argv) > 1 else f'cdna_kernels/{NAME}.s'
    tm = len(sys.argv) > 2 and sys.argv[2] == "tm"
    open(out, 'w').write(build(tm))
```

```python
from asm import *
from layout import *
from common import *

sHP, sPar, sSeg, sA, sB, sCn, sTok, sMem, sPO, sQt, sC, sIt = 18, 19, 20, 21, 22, 23, 24, 25, 26, 27, 28, 29
sJ = 30
sM0, sM1 = 40, 48
sT = 8
vL16, vOBw, vOBr, vOBr1 = 1, 2, 3, 4
S0, S1, S2, PT, PM, SUM, ONES, ONZ, T0, T1 = 8, 12, 16, 20, 24, 26, 30, 34, 36, 37
KMR, VMR, QR, KR, VR, ACC = 40, 56, 72, 88, 120, 152
OPK = 184
WREG = 36864
def wreg(t, hl, kb):
    i = (t * 2 + hl) * 4 + kb
    return 256 + 4 * i if i < 64 else 224 + 4 * (i - 64)
OB = [0, 16384]

def emit_follow_init(a):
    a(f"""
s_and_b32 s{sHP}, s96, 15
s_lshr_b32 s{sPar}, s96, 4
s_cmp_eq_u32 s{sJ}, 0
s_cselect_b32 s{sSeg}, s{sPar}, 63
s_cselect_b32 s{sPar}, s{sPar}, 1
s_cselect_b32 s{sIt}, 0, 31
v_and_b32 v5, 63, v0
v_lshlrev_b32 v{vL16}, 4, v5
""")
    srd(a, sT, KA["Wo"], 32 * 128 * 576 * 2)
    for i in range(9):
        a(f"""v_add_u32 v6, {64*i}, v5
v_mul_u32_u24 v7, 3641, v6
v_lshrrev_b32 v7, 16, v7
v_mul_u32_u24 v8, 18, v7
v_sub_u32 v8, v6, v8
v_mul_u32_u24 v7, 1152, v7
v_lshl_add_u32 v{10+i}, v8, 4, v7""")
    a(f"""s_mul_i32 s{sA}, s{sHP}, {2*147456}
s_mul_i32 s{sB}, s{sW}, 288
s_add_u32 s{sA}, s{sA}, s{sB}
s_mul_i32 s{sB}, s{sW}, {WREG}
v_lshrrev_b32 v6, 4, v5
v_lshlrev_b32 v6, 2, v6
v_bfe_u32 v7, v5, 2, 2
v_add_u32 v6, v6, v7
v_mul_u32_u24 v6, 288, v6
v_and_b32 v7, 3, v5
v_lshl_add_u32 v6, v7, 3, v6
v_add_u32 v6, s{sB}, v6
s_mul_i32 s{sCn}, s{sJ}, 96
v_add_u32 v6, s{sCn}, v6
""")
    for hl in range(2):
        for r in range(4):
            for i in range(9):
                a(f"s_add_u32 m0, s{sB}, {(r*9+i)*1024}")
                a(f"buffer_load_dwordx4 v{10+i}, s[{sT}:{sT+3}], s{sA} offen lds")
            a(f"s_add_u32 s{sA}, s{sA}, {32*1152}")
        for kb in range(4):
            a(f"s_waitcnt vmcnt({27 - 9*kb})")
            for t in range(9):
                for half in range(2):
                    a(f"ds_read_b64_tr_b16 {vr(wreg(t,hl,kb) + 2*half, 2)}, v6 offset:{(32*kb + 16*half)*288 + t*32}")
            a("s_waitcnt lgkmcnt(0)")
    a(f"""
s_and_b32 s{sQt}, s{sW}, 1
s_lshr_b32 s{sA}, s{sW}, 1
s_lshl_b32 s{sB}, s{sHP}, 1
s_add_u32 s{sB}, s{sB}, s{sA}           ; head
s_lshl_b32 s{sCn}, s{sSeg}, 5
s_add_u32 s{sCn}, s{sCn}, s{sB}
s_lshl_b32 s{sTok}, s{sCn}, 13
s_lshl_b32 s{sMem}, s{sCn}, 12
s_lshl_b32 s{sCn}, s{sSeg}, 4
s_add_u32 s{sCn}, s{sCn}, s{sHP}
s_mul_i32 s{sCn}, s{sCn}, 36864
s_mul_i32 s{sB}, s{sW}, 9216
s_add_u32 s{sCn}, s{sCn}, s{sB}
s_mul_i32 s{sB}, s{sJ}, 3072
s_add_u32 s{sCn}, s{sCn}, s{sB}
s_add_u32 s{sPO}, s{sCn}, {PO}
s_lshl_b32 s{sCn}, s{sW}, 12
v_add_u32 v{vOBw}, s{sCn}, v{vL16}
s_mov_b32 s{sC}, 0x3e0293ee
; masks : M_i = (4g+i <= n)
v_and_b32 v6, 15, v5
v_lshrrev_b32 v7, 4, v5
v_lshlrev_b32 v7, 2, v7
""")
    for i in range(4):
        a(f"v_add_u32 v8, {i}, v7")
        a(f"v_cmp_le_u32 s[{sM0+2*i}:{sM0+2*i+1}], v8, v6")
    a(f"s_cmp_eq_u32 s{sQt}, 0")
    for i in range(4):
        a(f"s_cselect_b64 s[{sM1+2*i}:{sM1+2*i+1}], 0, s[{sM0+2*i}:{sM0+2*i+1}]")
        a(f"s_cselect_b64 s[{sM0+2*i}:{sM0+2*i+1}], s[{sM0+2*i}:{sM0+2*i+1}], -1")
    for r in range(ONES, ONES + 5): a(f"v_mov_b32 v{r}, 0x3f803f80")
    a(f"v_mov_b32 v{ONZ+1}, 0")
    a("s_barrier")

def tok_loads(a):
    WS = f"s[{sWS}:{sWS+3}]"
    a(f"s_add_u32 s{sA}, s{sTok}, {KT}")
    a(f"s_add_u32 s{sB}, s{sTok}, {QT}")
    a(f"s_lshl_b32 s{sCn}, s{sQt}, 10")
    a(f"s_add_u32 s{sB}, s{sB}, s{sCn}")
    for kb in range(4):
        a(f"buffer_load_dwordx4 {vr(QR+4*kb,4)}, v{vL16}, {WS}, s{sB} offen")
        a(f"buffer_load_dwordx4 {vr(KR+8*kb,4)}, v{vL16}, {WS}, s{sA} offen")
        a(f"buffer_load_dwordx4 {vr(KR+8*kb+4,4)}, v{vL16}, {WS}, s{sA} offen offset:1024")
        if kb < 3:
            a(f"s_add_u32 s{sA}, s{sA}, 2048")
            a(f"s_add_u32 s{sB}, s{sB}, 2048")
    a(f"s_add_u32 s{sA}, s{sTok}, {VT}")
    for kb in range(4):
        a(f"buffer_load_dwordx4 {vr(VR+8*kb,4)}, v{vL16}, {WS}, s{sA} offen")
        a(f"buffer_load_dwordx4 {vr(VR+8*kb+4,4)}, v{vL16}, {WS}, s{sA} offen offset:1024")
        if kb < 3: a(f"s_add_u32 s{sA}, s{sA}, 2048")
    a(f"s_add_u32 s{sTok}, s{sTok}, {2*32*8192}")

def emit_follow(a, lab_end, fused=None):
    WS = f"s[{sWS}:{sWS+3}]"
    emit_follow_init(a)
    if fused: fused["wait_tok"](a, 0)
    tok_loads(a)
    a(f"s_cmp_lg_u32 s{sJ}, 0")
    a("s_cbranch_scc1 L_fol_last")
    a("s_waitcnt vmcnt(0)")
    def tok_scores():
        for kb in range(4):
            c1 = "0" if kb == 0 else vr(S1, 4); c2 = "0" if kb == 0 else vr(S2, 4)
            a(f"v_mfma_f32_16x16x32_bf16 {vr(S1,4)}, {vr(KR+8*kb,4)}, {vr(QR+4*kb,4)}, {c1}")
            a(f"v_mfma_f32_16x16x32_bf16 {vr(S2,4)}, {vr(KR+8*kb+4,4)}, {vr(QR+4*kb,4)}, {c2}")
    def mem_loads(sc):
        a(f"s_add_u32 s{sA}, s{sMem}, {KM}")
        a(f"s_add_u32 s{sB}, s{sMem}, {VM}")
        for kb in range(4):
            a(f"buffer_load_dwordx4 {vr(KMR+4*kb,4)}, v{vL16}, {WS}, s{sA} offen offset:{1024*kb}{sc}")
        for kb in range(4):
            a(f"buffer_load_dwordx4 {vr(VMR+4*kb,4)}, v{vL16}, {WS}, s{sB} offen offset:{1024*kb}{sc}")
    def watch(b):
        a(f"v_max3_u32 v{T0}, v{b}, v{b+1}, v{b+2}")
        a(f"v_max3_u32 v{T1}, v{b+3}, v{b+4}, v{b+5}")
        a(f"v_max3_u32 v{T0}, v{T0}, v{b+6}, v{b+7}")
        a(f"v_max3_u32 v{T1}, v{T1}, v{b+8}, v{b+9}")
        a(f"v_max3_u32 v{T0}, v{T0}, v{b+10}, v{b+11}")
        a(f"v_max3_u32 v{T1}, v{T1}, v{b+12}, v{b+13}")
        a(f"v_max3_u32 v{T0}, v{T0}, v{b+14}, v{b+15}")
        a(f"v_max_u32 v{T0}, v{T0}, v{T1}")
        a(f"v_cmp_eq_u32 vcc, -1, v{T0}")
    def wo_phase(buf, nt, deep):
        lg = Cnt(a, "lgkmcnt")
        seq = [(hl, kb, qt) for hl in range(2) for kb in range(4) for qt in range(2)]
        fr = (lambda n: KR + 4 * n) if deep else (lambda n: KMR + 4 * (n % 4))
        def rd(n):
            hl, kb, qt = seq[n]
            lg.op(f"ds_read_b128 {vr(fr(n),4)}, v{vL16} offset:{OB[buf] + (hl*2+qt)*4096 + kb*1024}", f"o{n}")
        pre = 12 if deep else 3
        for n in range(pre): rd(n)
        for n in range(16):
            hl, kb, qt = seq[n]
            lg.wait(f"o{n}")
            for t in range(nt):
                d = ACC + 8 * t + 4 * qt
                c = "0" if n < 2 else vr(d, 4)
                a(f"v_mfma_f32_16x16x32_bf16 {vr(d,4)}, {vr(wreg(t,hl,kb),4)}, {vr(fr(n),4)}, {c}")
                if t == 0 and n + pre < 16: rd(n + pre)
        for t in range(nt):
            d = ACC + 8 * t; e = 8 + 4 * (t % 4)
            for i in range(4): a(f"v_cvt_pk_bf16_f32 v{e+i}, v{d+2*i}, v{d+2*i+1}")
            a(f"s_add_u32 s{sA}, s{sPO}, {1024*t}")
            a(f"buffer_store_dwordx4 {vr(e,4)}, v{vL16}, {WS}, s{sA} offen sc1")
    def item(buf, watch_=False, last=False):
        if not watch_:
            if fused: fused["wait_mem"](a)
            zcap(a, 60)
            mem_loads("")
            a(f"s_add_u32 s{sMem}, s{sMem}, {2*32*4096}")
            a("s_waitcnt vmcnt(17)")
            tok_scores()
            a("s_waitcnt vmcnt(4)")
        else:
            if last:
                a("s_waitcnt vmcnt(0)")
                a("s_barrier")
                fused["sig_main"](a, f"s{sIt}")
                zcap(a, 68)
            else:
                a("s_waitcnt vmcnt(9)")
            tok_scores()
            fused["gate_mem"](a)
            if last: zcap(a, 70)
            l1, l2 = a.uid("L_md"), a.uid("L_md")
            a.label(l1)
            mem_loads(" sc1")
            a("s_waitcnt vmcnt(4)")
            watch(KMR)
            a(f"s_cbranch_vccz {l2}")
            fused["bounded"](a, l1)
            a.label(l2)
            zcap(a, 60)
        for kb in range(4):
            c0 = "0" if kb == 0 else vr(S0, 4)
            a(f"v_mfma_f32_16x16x32_bf16 {vr(S0,4)}, {vr(KMR+4*kb,4)}, {vr(QR+4*kb,4)}, {c0}")
        a(f"v_mov_b32 v{T1}, 0xce6e6b28")
        for i in range(4): a(f"v_cndmask_b32 v{S1+i}, v{T1}, v{S1+i}, s[{sM0+2*i}:{sM0+2*i+1}]")
        for i in range(4): a(f"v_cndmask_b32 v{S2+i}, v{T1}, v{S2+i}, s[{sM1+2*i}:{sM1+2*i+1}]")
        a(f"""v_max3_f32 v{T0}, v{S1}, v{S1+1}, v{S1+2}
v_max3_f32 v{T1}, v{S1+3}, v{S2}, v{S2+1}
v_max3_f32 v{T0}, v{T0}, v{S2+2}, v{S2+3}
v_max3_f32 v{T1}, v{T1}, v{S0}, v{S0+1}
v_max_f32 v{T0}, v{T0}, v{T1}
v_mov_b32 v{T1}, v{T0}
v_permlane16_swap_b32 v{T0}, v{T1}
v_max_f32 v{T0}, v{T0}, v{T1}
v_mov_b32 v{T1}, v{T0}
v_permlane32_swap_b32 v{T0}, v{T1}
v_max_f32 v{T0}, v{T0}, v{T1}
v_mul_f32 v{T0}, s{sC}, v{T0}""")
        vals = [S0, S0 + 1] + [S1 + i for i in range(4)] + [S2 + i for i in range(4)]
        for r in vals: a(f"v_fma_f32 v{r}, v{r}, s{sC}, -v{T0}")
        for r in vals: a(f"v_exp_f32 v{r}, v{r}")
        a(f"""v_cvt_pk_bf16_f32 v{PT}, v{S1}, v{S1+1}
v_cvt_pk_bf16_f32 v{PT+1}, v{S1+2}, v{S1+3}
v_cvt_pk_bf16_f32 v{PT+2}, v{S2}, v{S2+1}
v_cvt_pk_bf16_f32 v{PT+3}, v{S2+2}, v{S2+3}
v_cvt_pk_bf16_f32 v{PM}, v{S0}, v{S0+1}
v_mov_b32 v{PM+1}, v{PM}""")
        a(f"v_mfma_f32_16x16x32_bf16 {vr(SUM,4)}, {vr(ONES,4)}, {vr(PT,4)}, 0")
        for et in range(8):
            a(f"v_mfma_f32_16x16x32_bf16 {vr(ACC+4*et,4)}, {vr(VR+4*et,4)}, {vr(PT,4)}, 0")
        if not watch_: a("s_waitcnt vmcnt(0)")
        else:
            l1, l2 = a.uid("L_mv"), a.uid("L_mv")
            a.label(l1)
            a("s_waitcnt vmcnt(0)")
            watch(VMR)
            a(f"s_cbranch_vccz {l2}")
            a(f"s_add_u32 s{sB}, s{sMem}, {VM}")
            for kb in range(4):
                a(f"buffer_load_dwordx4 {vr(VMR+4*kb,4)}, v{vL16}, {WS}, s{sB} offen offset:{1024*kb} sc1")
            fused["bounded"](a, l1)
            a.label(l2)
            if last: fused["sig_main"](a, "32")
            else: a(f"s_add_u32 s{sMem}, s{sMem}, {2*32*4096}")
        a(f"v_mfma_f32_16x16x16_bf16 {vr(SUM,4)}, {vr(ONZ,2)}, {vr(PM,2)}, {vr(SUM,4)}")
        for et in range(8):
            a(f"v_mfma_f32_16x16x16_bf16 {vr(ACC+4*et,4)}, {vr(VMR+2*et,2)}, {vr(PM,2)}, {vr(ACC+4*et,4)}")
        if not last:
            if fused: fused["wait_tok"](a, 1)
            tok_loads(a)
        a(f"v_rcp_f32 v{T0}, v{SUM}")
        for et in range(8):
            for i in range(4): a(f"v_mul_f32 v{ACC+4*et+i}, v{ACC+4*et+i}, v{T0}")
            a(f"v_cvt_pk_bf16_f32 v{OPK+2*et}, v{ACC+4*et}, v{ACC+4*et+1}")
            a(f"v_cvt_pk_bf16_f32 v{OPK+2*et+1}, v{ACC+4*et+2}, v{ACC+4*et+3}")
            if et & 1:
                a(f"ds_write_b128 v{vOBw}, {vr(OPK+4*(et>>1),4)} offset:{OB[buf] + 1024*(et>>1)}")
        a("s_waitcnt lgkmcnt(0)")
        a("s_barrier")
        zcap(a, 62)
        if not last:
            if fused: fused["sig"](a)
            wo_phase(buf, 9, False)
            zcap(a, 64)
            a(f"s_add_u32 s{sPO}, s{sPO}, {2*16*36864}")
            a(f"s_add_u32 s{sIt}, s{sIt}, 1")
            a(f"s_add_u32 s{sSeg}, s{sSeg}, 2")
        else:
            a(f"s_cmp_eq_u32 s{sPar}, 0")
            a("s_cbranch_scc1 L_fol_l62")
            wo_phase(buf, 3, True)
            zcap(a, 64)
            if tz_on(): a("s_waitcnt vmcnt(0)")
            zcap(a, 66)
            zput(a, [(60, 7), (62, 9), (64, 10), (66, 11), (68, 8), (70, 6)], 5, [(96, 16), (sJ, 0)])
            zput(a, [(60, 14)], 5, [(96, 0), (sJ, 1)])
            a(f"s_branch {lab_end}")
            a.label("L_fol_l62")
            wo_phase(buf, 9, False)
            if tz_on(): a("s_waitcnt vmcnt(0)")
            zcap(a, 66)
            zput(a, [(66, 4)], 5, [(96, 0)])
            a(f"s_branch {lab_end}")
    a.label("L_fol_loop")
    item(0)
    item(1)
    a(f"s_cmp_lt_u32 s{sIt}, 30")
    a("s_cbranch_scc1 L_fol_loop")
    item(0, watch_=True)
    a.label("L_fol_last")
    item(1, watch_=True, last=True)
```

```python
from asm import *
from layout import *
from common import *

sHP, sPar, sSeg, sA, sB, sCn, sTok, sMem, sPO, sQt, sC, sIt = 18, 19, 20, 21, 22, 23, 24, 25, 26, 27, 28, 29
sJ = 30
sM0, sM1 = 40, 48
sT = 8
vL16, vOBw, vOBr, vOBr1 = 1, 2, 3, 4
S0, S1, S2, PT, PM, SUM, ONES, ONZ, T0, T1 = 8, 12, 16, 20, 24, 26, 30, 34, 36, 37
KMR, VMR, QR, KR, VR, ACC = 40, 56, 72, 88, 120, 152
OPK = 184
WREG = 36864
def wreg(t, hl, kb):
    i = (t * 2 + hl) * 4 + kb
    return 256 + 4 * i if i < 64 else 224 + 4 * (i - 64)
OB = [0, 16384]

def emit_follow_init(a):
    a(f"""
s_and_b32 s{sHP}, s96, 15
s_lshr_b32 s{sPar}, s96, 4
s_cmp_eq_u32 s{sJ}, 0
s_cselect_b32 s{sSeg}, s{sPar}, 63
s_cselect_b32 s{sPar}, s{sPar}, 1
s_cselect_b32 s{sIt}, 0, 31
v_and_b32 v5, 63, v0
v_lshlrev_b32 v{vL16}, 4, v5
""")
    srd(a, sT, KA["Wo"], 32 * 128 * 576 * 2)
    for i in range(9):
        a(f"""v_add_u32 v6, {64*i}, v5
v_mul_u32_u24 v7, 3641, v6
v_lshrrev_b32 v7, 16, v7
v_mul_u32_u24 v8, 18, v7
v_sub_u32 v8, v6, v8
v_mul_u32_u24 v7, 1152, v7
v_lshl_add_u32 v{10+i}, v8, 4, v7""")
    a(f"""s_mul_i32 s{sA}, s{sHP}, {2*147456}
s_mul_i32 s{sB}, s{sW}, 288
s_add_u32 s{sA}, s{sA}, s{sB}
s_mul_i32 s{sB}, s{sW}, {WREG}
v_lshrrev_b32 v6, 4, v5
v_lshlrev_b32 v6, 2, v6
v_bfe_u32 v7, v5, 2, 2
v_add_u32 v6, v6, v7
v_mul_u32_u24 v6, 288, v6
v_and_b32 v7, 3, v5
v_lshl_add_u32 v6, v7, 3, v6
v_add_u32 v6, s{sB}, v6
s_mul_i32 s{sCn}, s{sJ}, 96
v_add_u32 v6, s{sCn}, v6
""")
    for hl in range(2):
        for r in range(4):
            for i in range(9):
                a(f"s_add_u32 m0, s{sB}, {(r*9+i)*1024}")
                a(f"buffer_load_dwordx4 v{10+i}, s[{sT}:{sT+3}], s{sA} offen lds")
            a(f"s_add_u32 s{sA}, s{sA}, {32*1152}")
        for kb in range(4):
            a(f"s_waitcnt vmcnt({27 - 9*kb})")
            for t in range(9):
                for half in range(2):
                    a(f"ds_read_b64_tr_b16 {vr(wreg(t,hl,kb) + 2*half, 2)}, v6 offset:{(32*kb + 16*half)*288 + t*32}")
            a("s_waitcnt lgkmcnt(0)")
    a(f"""
s_and_b32 s{sQt}, s{sW}, 1
s_lshr_b32 s{sA}, s{sW}, 1
s_lshl_b32 s{sB}, s{sHP}, 1
s_add_u32 s{sB}, s{sB}, s{sA}           ; head
s_lshl_b32 s{sCn}, s{sSeg}, 5
s_add_u32 s{sCn}, s{sCn}, s{sB}
s_lshl_b32 s{sTok}, s{sCn}, 13
s_lshl_b32 s{sMem}, s{sCn}, 12
s_lshl_b32 s{sCn}, s{sSeg}, 4
s_add_u32 s{sCn}, s{sCn}, s{sHP}
s_mul_i32 s{sCn}, s{sCn}, 36864
s_mul_i32 s{sB}, s{sW}, 9216
s_add_u32 s{sCn}, s{sCn}, s{sB}
s_mul_i32 s{sB}, s{sJ}, 3072
s_add_u32 s{sCn}, s{sCn}, s{sB}
s_add_u32 s{sPO}, s{sCn}, {PO}
s_lshl_b32 s{sCn}, s{sW}, 12
v_add_u32 v{vOBw}, s{sCn}, v{vL16}
s_mov_b32 s{sC}, 0x3e0293ee
; masks : M_i = (4g+i <= n)
v_and_b32 v6, 15, v5
v_lshrrev_b32 v7, 4, v5
v_lshlrev_b32 v7, 2, v7
""")
    for i in range(4):
        a(f"v_add_u32 v8, {i}, v7")
        a(f"v_cmp_le_u32 s[{sM0+2*i}:{sM0+2*i+1}], v8, v6")
    a(f"s_cmp_eq_u32 s{sQt}, 0")
    for i in range(4):
        a(f"s_cselect_b64 s[{sM1+2*i}:{sM1+2*i+1}], 0, s[{sM0+2*i}:{sM0+2*i+1}]")
        a(f"s_cselect_b64 s[{sM0+2*i}:{sM0+2*i+1}], s[{sM0+2*i}:{sM0+2*i+1}], -1")
    for r in range(ONES, ONES + 5): a(f"v_mov_b32 v{r}, 0x3f803f80")
    a(f"v_mov_b32 v{ONZ+1}, 0")
    a("s_barrier")

def tok_loads(a):
    WS = f"s[{sWS}:{sWS+3}]"
    a(f"s_add_u32 s{sA}, s{sTok}, {KT}")
    a(f"s_add_u32 s{sB}, s{sTok}, {QT}")
    a(f"s_lshl_b32 s{sCn}, s{sQt}, 10")
    a(f"s_add_u32 s{sB}, s{sB}, s{sCn}")
    for kb in range(4):
        a(f"buffer_load_dwordx4 {vr(QR+4*kb,4)}, v{vL16}, {WS}, s{sB} offen")
        a(f"buffer_load_dwordx4 {vr(KR+8*kb,4)}, v{vL16}, {WS}, s{sA} offen")
        a(f"buffer_load_dwordx4 {vr(KR+8*kb+4,4)}, v{vL16}, {WS}, s{sA} offen offset:1024")
        if kb < 3:
            a(f"s_add_u32 s{sA}, s{sA}, 2048")
            a(f"s_add_u32 s{sB}, s{sB}, 2048")
    a(f"s_add_u32 s{sA}, s{sTok}, {VT}")
    for kb in range(4):
        a(f"buffer_load_dwordx4 {vr(VR+8*kb,4)}, v{vL16}, {WS}, s{sA} offen")
        a(f"buffer_load_dwordx4 {vr(VR+8*kb+4,4)}, v{vL16}, {WS}, s{sA} offen offset:1024")
        if kb < 3: a(f"s_add_u32 s{sA}, s{sA}, 2048")
    a(f"s_add_u32 s{sTok}, s{sTok}, {2*32*8192}")

def emit_follow(a, lab_end, fused=None):
    WS = f"s[{sWS}:{sWS+3}]"
    emit_follow_init(a)
    if fused: fused["wait_tok"](a, 0)
    tok_loads(a)
    a(f"s_cmp_lg_u32 s{sJ}, 0")
    a("s_cbranch_scc1 L_fol_last")
    a("s_waitcnt vmcnt(0)")
    def tok_scores():
        for kb in range(4):
            c1 = "0" if kb == 0 else vr(S1, 4); c2 = "0" if kb == 0 else vr(S2, 4)
            a(f"v_mfma_f32_16x16x32_bf16 {vr(S1,4)}, {vr(KR+8*kb,4)}, {vr(QR+4*kb,4)}, {c1}")
            a(f"v_mfma_f32_16x16x32_bf16 {vr(S2,4)}, {vr(KR+8*kb+4,4)}, {vr(QR+4*kb,4)}, {c2}")
    def mem_loads(sc):
        a(f"s_add_u32 s{sA}, s{sMem}, {KM}")
        a(f"s_add_u32 s{sB}, s{sMem}, {VM}")
        for kb in range(4):
            a(f"buffer_load_dwordx4 {vr(KMR+4*kb,4)}, v{vL16}, {WS}, s{sA} offen offset:{1024*kb}{sc}")
        for kb in range(4):
            a(f"buffer_load_dwordx4 {vr(VMR+4*kb,4)}, v{vL16}, {WS}, s{sB} offen offset:{1024*kb}{sc}")
    def watch(b):
        a(f"v_max3_u32 v{T0}, v{b}, v{b+1}, v{b+2}")
        a(f"v_max3_u32 v{T1}, v{b+3}, v{b+4}, v{b+5}")
        a(f"v_max3_u32 v{T0}, v{T0}, v{b+6}, v{b+7}")
        a(f"v_max3_u32 v{T1}, v{T1}, v{b+8}, v{b+9}")
        a(f"v_max3_u32 v{T0}, v{T0}, v{b+10}, v{b+11}")
        a(f"v_max3_u32 v{T1}, v{T1}, v{b+12}, v{b+13}")
        a(f"v_max3_u32 v{T0}, v{T0}, v{b+14}, v{b+15}")
        a(f"v_max_u32 v{T0}, v{T0}, v{T1}")
        a(f"v_cmp_eq_u32 vcc, -1, v{T0}")
    def wo_phase(buf, nt, deep):
        lg = Cnt(a, "lgkmcnt")
        seq = [(hl, kb, qt) for hl in range(2) for kb in range(4) for qt in range(2)]
        fr = (lambda n: KR + 4 * n) if deep else (lambda n: KMR + 4 * (n % 4))
        def rd(n):
            hl, kb, qt = seq[n]
            lg.op(f"ds_read_b128 {vr(fr(n),4)}, v{vL16} offset:{OB[buf] + (hl*2+qt)*4096 + kb*1024}", f"o{n}")
        pre = 12 if deep else 3
        for n in range(pre): rd(n)
        for n in range(16):
            hl, kb, qt = seq[n]
            lg.wait(f"o{n}")
            for t in range(nt):
                d = ACC + 8 * t + 4 * qt
                c = "0" if n < 2 else vr(d, 4)
                a(f"v_mfma_f32_16x16x32_bf16 {vr(d,4)}, {vr(wreg(t,hl,kb),4)}, {vr(fr(n),4)}, {c}")
                if t == 0 and n + pre < 16: rd(n + pre)
        for t in range(nt):
            d = ACC + 8 * t; e = 8 + 4 * (t % 4)
            for i in range(4): a(f"v_cvt_pk_bf16_f32 v{e+i}, v{d+2*i}, v{d+2*i+1}")
            a(f"s_add_u32 s{sA}, s{sPO}, {1024*t}")
            a(f"buffer_store_dwordx4 {vr(e,4)}, v{vL16}, {WS}, s{sA} offen sc1")
    def item(buf, watch_=False, last=False):
        if not watch_:
            if fused: fused["wait_mem"](a)
            zcap(a, 60)
            mem_loads("")
            a(f"s_add_u32 s{sMem}, s{sMem}, {2*32*4096}")
            a("s_waitcnt vmcnt(17)")
            tok_scores()
            a("s_waitcnt vmcnt(4)")
        else:
            if last:
                a("s_waitcnt vmcnt(0)")
                a("s_barrier")
                fused["sig_main"](a, f"s{sIt}")
                zcap(a, 68)
            else:
                a("s_waitcnt vmcnt(9)")
            tok_scores()
            fused["gate_mem"](a)
            if last: zcap(a, 70)
            l1, l2 = a.uid("L_md"), a.uid("L_md")
            a.label(l1)
            mem_loads(" sc1")
            a("s_waitcnt vmcnt(4)")
            watch(KMR)
            a(f"s_cbranch_vccz {l2}")
            fused["bounded"](a, l1)
            a.label(l2)
            zcap(a, 60)
        for kb in range(4):
            c0 = "0" if kb == 0 else vr(S0, 4)
            a(f"v_mfma_f32_16x16x32_bf16 {vr(S0,4)}, {vr(KMR+4*kb,4)}, {vr(QR+4*kb,4)}, {c0}")
        a(f"v_mov_b32 v{T1}, 0xce6e6b28")
        for i in range(4): a(f"v_cndmask_b32 v{S1+i}, v{T1}, v{S1+i}, s[{sM0+2*i}:{sM0+2*i+1}]")
        for i in range(4): a(f"v_cndmask_b32 v{S2+i}, v{T1}, v{S2+i}, s[{sM1+2*i}:{sM1+2*i+1}]")
        a(f"""v_max3_f32 v{T0}, v{S1}, v{S1+1}, v{S1+2}
v_max3_f32 v{T1}, v{S1+3}, v{S2}, v{S2+1}
v_max3_f32 v{T0}, v{T0}, v{S2+2}, v{S2+3}
v_max3_f32 v{T1}, v{T1}, v{S0}, v{S0+1}
v_max_f32 v{T0}, v{T0}, v{T1}
v_mov_b32 v{T1}, v{T0}
v_permlane16_swap_b32 v{T0}, v{T1}
v_max_f32 v{T0}, v{T0}, v{T1}
v_mov_b32 v{T1}, v{T0}
v_permlane32_swap_b32 v{T0}, v{T1}
v_max_f32 v{T0}, v{T0}, v{T1}
v_mul_f32 v{T0}, s{sC}, v{T0}""")
        vals = [S0, S0 + 1] + [S1 + i for i in range(4)] + [S2 + i for i in range(4)]
        for r in vals: a(f"v_fma_f32 v{r}, v{r}, s{sC}, -v{T0}")
        for r in vals: a(f"v_exp_f32 v{r}, v{r}")
        a(f"""v_cvt_pk_bf16_f32 v{PT}, v{S1}, v{S1+1}
v_cvt_pk_bf16_f32 v{PT+1}, v{S1+2}, v{S1+3}
v_cvt_pk_bf16_f32 v{PT+2}, v{S2}, v{S2+1}
v_cvt_pk_bf16_f32 v{PT+3}, v{S2+2}, v{S2+3}
v_cvt_pk_bf16_f32 v{PM}, v{S0}, v{S0+1}
v_mov_b32 v{PM+1}, v{PM}""")
        a(f"v_mfma_f32_16x16x32_bf16 {vr(SUM,4)}, {vr(ONES,4)}, {vr(PT,4)}, 0")
        for et in range(8):
            a(f"v_mfma_f32_16x16x32_bf16 {vr(ACC+4*et,4)}, {vr(VR+4*et,4)}, {vr(PT,4)}, 0")
        if not watch_: a("s_waitcnt vmcnt(0)")
        else:
            l1, l2 = a.uid("L_mv"), a.uid("L_mv")
            a.label(l1)
            a("s_waitcnt vmcnt(0)")
            watch(VMR)
            a(f"s_cbranch_vccz {l2}")
            a(f"s_add_u32 s{sB}, s{sMem}, {VM}")
            for kb in range(4):
                a(f"buffer_load_dwordx4 {vr(VMR+4*kb,4)}, v{vL16}, {WS}, s{sB} offen offset:{1024*kb} sc1")
            fused["bounded"](a, l1)
            a.label(l2)
            if last: fused["sig_main"](a, "32")
            else: a(f"s_add_u32 s{sMem}, s{sMem}, {2*32*4096}")
        a(f"v_mfma_f32_16x16x16_bf16 {vr(SUM,4)}, {vr(ONZ,2)}, {vr(PM,2)}, {vr(SUM,4)}")
        for et in range(8):
            a(f"v_mfma_f32_16x16x16_bf16 {vr(ACC+4*et,4)}, {vr(VMR+2*et,2)}, {vr(PM,2)}, {vr(ACC+4*et,4)}")
        if not last:
            if fused: fused["wait_tok"](a, 1)
            tok_loads(a)
        a(f"v_rcp_f32 v{T0}, v{SUM}")
        for et in range(8):
            for i in range(4): a(f"v_mul_f32 v{ACC+4*et+i}, v{ACC+4*et+i}, v{T0}")
            a(f"v_cvt_pk_bf16_f32 v{OPK+2*et}, v{ACC+4*et}, v{ACC+4*et+1}")
            a(f"v_cvt_pk_bf16_f32 v{OPK+2*et+1}, v{ACC+4*et+2}, v{ACC+4*et+3}")
            if et & 1:
                a(f"ds_write_b128 v{vOBw}, {vr(OPK+4*(et>>1),4)} offset:{OB[buf] + 1024*(et>>1)}")
        a("s_waitcnt lgkmcnt(0)")
        a("s_barrier")
        zcap(a, 62)
        if not last:
            if fused: fused["sig"](a)
            wo_phase(buf, 9, False)
            zcap(a, 64)
            a(f"s_add_u32 s{sPO}, s{sPO}, {2*16*36864}")
            a(f"s_add_u32 s{sIt}, s{sIt}, 1")
            a(f"s_add_u32 s{sSeg}, s{sSeg}, 2")
        else:
            a(f"s_cmp_eq_u32 s{sPar}, 0")
            a("s_cbranch_scc1 L_fol_l62")
            wo_phase(buf, 3, True)
            zcap(a, 64)
            if tz_on(): a("s_waitcnt vmcnt(0)")
            zcap(a, 66)
            zput(a, [(60, 7), (62, 9), (64, 10), (66, 11), (68, 8), (70, 6)], 5, [(96, 16), (sJ, 0)])
            zput(a, [(60, 14)], 5, [(96, 0), (sJ, 1)])
            a(f"s_branch {lab_end}")
            a.label("L_fol_l62")
            wo_phase(buf, 9, False)
            if tz_on(): a("s_waitcnt vmcnt(0)")
            zcap(a, 66)
            zput(a, [(66, 4)], 5, [(96, 0)])
            a(f"s_branch {lab_end}")
    a.label("L_fol_loop")
    item(0)
    a(f"s_cmp_eq_u32 s{sIt}, 29")
    a("s_cbranch_scc1 L_fol_end3")
    item(1)
    a("s_branch L_fol_loop")
    a.label("L_fol_end3")
    item(1, watch_=True)
    item(0, watch_=True)
    a.label("L_fol_last")
    item(1, watch_=True, last=True)
```

```python
import sys
sys.path.insert(0, 'gen')
from asm import *
from layout import *
from common import *
import ln, qkv, ffn, follow, final
import os, importlib
chain = importlib.import_module(os.environ.get("CH", "chain3"))
if os.environ.get("XF"): chain.X.update(x for x in os.environ["XF"].split(",") if x)

D_LN = 32
FL_CH, FL_QK, FL_FO, FL_FF = 0, 32, 128, 160
POLL_MAX = int(os.environ.get("POLLF", "400000"))
WS = f"s[{sWS}:{sWS+3}]"
DBGS = f"s[{sDBG}:{sDBG+3}]"
sP = 94
sQ, sQ2 = 92, 93

def bounded(a, retry):
    a(f"s_add_u32 s{sP}, s{sP}, 1")
    a(f"s_cmp_lt_u32 s{sP}, {POLL_MAX}")
    a(f"s_cbranch_scc1 {retry}")
    a("s_branch L_fail")

def wait_ln(a, vt):
    l1, l2 = a.uid("L_wl"), a.uid("L_wl")
    a(f"s_cmp_lg_u32 s{sW}, 0")
    a(f"s_cbranch_scc1 {l2}")
    a(f"s_mov_b32 s{sP}, 0")
    a.label(l1)
    a(f"buffer_load_dword v{vt}, off, {DBGS}, 0 offset:{4*D_LN} sc1")
    a("s_waitcnt vmcnt(0)")
    a(f"v_readfirstlane_b32 s{sQ}, v{vt}")
    a(f"s_cmp_ge_u32 s{sQ}, 64")
    a(f"s_cbranch_scc1 {l2}")
    bounded(a, l1)
    a.label(l2)
    a("s_barrier")

def flag_store(a, vt, sval, soff, wave=0):
    l = a.uid("L_fs")
    a(f"s_cmp_lg_u32 s{sW}, {wave}")
    a(f"s_cbranch_scc1 {l}")
    a(f"v_mov_b32 v{vt}, {sval}")
    a("s_mov_b64 exec, 1")
    a(f"buffer_store_dword v{vt}, off, {WS}, s{soff} sc1")
    a("s_mov_b64 exec, -1")
    a.label(l)

def emit_ln_role(a, sSeg):
    def sentinels(a):
        for r in range(132, 136): a(f"v_mov_b32 v{r}, -1")
        st = lambda: a(f"buffer_store_dwordx4 v[132:135], v6, {WS}, s{sQ} offen sc1")
        a(f"""s_mul_i32 s{sQ}, s{sSeg}, 12288
s_lshl_b32 s{sQ2}, s{sW}, 10
s_add_u32 s{sQ}, s{sQ}, s{sQ2}
s_add_u32 s{sQ}, s{sQ}, {KM + 58*131072}""")
        st(); a(f"s_add_u32 s{sQ}, s{sQ}, 4096"); st(); a(f"s_add_u32 s{sQ}, s{sQ}, 4096"); st()
        a(f"s_add_u32 s{sQ}, s{sQ}, {VM - KM - 8192}")
        st(); a(f"s_add_u32 s{sQ}, s{sQ}, 4096"); st(); a(f"s_add_u32 s{sQ}, s{sQ}, 4096"); st()
        a(f"""s_mul_i32 s{sQ}, s{sSeg}, 18432
s_add_u32 s{sQ}, s{sQ}, s{sQ2}
s_add_u32 s{sQ}, s{sQ}, {PO + 62*16*36864}""")
        for i in range(4):
            st(); a(f"s_add_u32 s{sQ}, s{sQ}, 4096")
        l = a.uid("L_sn")
        a(f"s_cmp_ge_u32 s{sW}, 2")
        a(f"s_cbranch_scc1 {l}")
        st()
        a.label(l)
    ln.emit_ln(a, sSeg, mid=sentinels)
    l = a.uid("L_zf")
    a(f"s_cmp_lg_u32 s{sW}, 0")
    a(f"s_cbranch_scc1 {l}")
    a(f"s_lshl_b32 s{sQ}, s{sSeg}, 10")
    a(f"s_add_u32 s{sQ}, s{sQ}, {FLAGS}")
    a("v_mov_b32 v8, 0\nv_mov_b32 v9, 0\nv_mov_b32 v10, 0\nv_mov_b32 v11, 0")
    a(f"buffer_store_dwordx4 v[8:11], v6, {WS}, s{sQ} offen sc1")
    a("s_waitcnt vmcnt(0)")
    a.label(l)
    a("s_barrier")
    l = a.uid("L_lna")
    a(f"s_cmp_lg_u32 s{sW}, 0")
    a(f"s_cbranch_scc1 {l}")
    a("s_mov_b64 exec, 1")
    a("v_mov_b32 v8, 1")
    a(f"buffer_atomic_add v8, off, {DBGS}, 0 offset:{4*D_LN} sc1")
    a("s_mov_b64 exec, -1")
    a.label(l)

sQF = 95
def qkv_hooks():
    def wait_xn(a):
        a(f"s_add_u32 s{sQF}, s96, {FL_QK}")
        a(f"s_lshl_b32 s{sQF}, s{sQF}, 8")
        a(f"s_add_u32 s{sQF}, s{sQF}, {FLAGS}")
        dstamp(a, 0, qkv.vTmp, [(96, 0)])
        wait_ln(a, qkv.vTmp)
        dstamp(a, 1, qkv.vTmp, [(96, 0)])
    def sig(a):
        a(f"s_sub_u32 s{sQ}, s{qkv.sSeg}, 1")
        a(f"s_max_i32 s{sQ}, s{sQ}, 0")
        flag_store(a, qkv.vTmp, f"s{sQ}", sQF)
        dstamp(a, 2, qkv.vTmp, [(96, 0), (qkv.sSeg, 2)])
    def fin(a):
        a("s_barrier")
        flag_store(a, qkv.vTmp, "32", sQF)
    return dict(wait_xn=wait_xn, sig=sig, fin=fin)

def ffn_hooks():
    def wait_xn(a):
        a(f"s_add_u32 s{sQF}, s96, {FL_FF}")
        a(f"s_lshl_b32 s{sQF}, s{sQF}, 8")
        a(f"s_add_u32 s{sQF}, s{sQF}, {FLAGS}")
        wait_ln(a, 16)
    def fin(a):
        a("s_barrier")
        flag_store(a, 16, "1", sQF)
    return dict(wait_xn=wait_xn, fin=fin)

vFT, vFM, vF0 = 5, 6, 38
sKT_, sKM_ = 90, 91
def follow_hooks():
    F = follow
    def wait_tok(a, which):
        if which == 0:
            a(f"s_add_u32 s{sQF}, s96, {FL_FO}")
            a(f"s_lshl_b32 s{sQF}, s{sQF}, 8")
            a(f"s_add_u32 s{sQF}, s{sQF}, {FLAGS}")
            a(f"""s_mul_i32 s{sQ}, s{F.sPar}, 48
s_add_u32 s{sQ}, s{sQ}, s{F.sHP}
s_add_u32 s{sQ}, s{sQ}, {FL_QK}
s_lshl_b32 s{sQ}, s{sQ}, 8
s_add_u32 s{sQ}, s{sQ}, {FLAGS}
v_and_b32 v{vF0}, 63, v0
v_cmp_gt_u32 vcc, 3, v{vF0}
v_cndmask_b32 v{vF0}, 0, v{vF0}, vcc
v_lshlrev_b32 v{vF0}, 12, v{vF0}
v_add_u32 v{vFT}, s{sQ}, v{vF0}
s_lshl_b32 s{sQ}, s{F.sHP}, 1
s_lshr_b32 s{sQ2}, s{sW}, 1
s_add_u32 s{sQ}, s{sQ}, s{sQ2}
s_add_u32 s{sQ}, s{sQ}, {FL_CH}
s_lshl_b32 s{sQ}, s{sQ}, 8
s_add_u32 s{sQ}, s{sQ}, {FLAGS}
v_mov_b32 v{vFM}, s{sQ}
s_mov_b32 s{sKT_}, 0
s_mov_b32 s{sKM_}, 0""")
            wait_ln(a, vF0)
            a(f"s_cmp_eq_u32 s{F.sJ}, 0")
            a(f"s_cselect_b32 s{sQ2}, 1, 32")
        else:
            a(f"s_add_u32 s{sQ2}, s{F.sIt}, 2")
        l1, l2 = a.uid("L_wt"), a.uid("L_wt")
        a(f"s_cmp_ge_u32 s{sKT_}, s{sQ2}")
        a(f"s_cbranch_scc1 {l2}")
        a(f"s_mov_b32 s{sP}, 0")
        a.label(l1)
        a(f"buffer_load_dword v{vF0}, v{vFT}, {WS}, 0 offen sc1")
        a("s_waitcnt vmcnt(0)")
        a(f"v_readlane_b32 s{sKT_}, v{vF0}, 0")
        a(f"v_readlane_b32 s{sQ}, v{vF0}, 1")
        a(f"s_min_u32 s{sKT_}, s{sKT_}, s{sQ}")
        a(f"v_readlane_b32 s{sQ}, v{vF0}, 2")
        a(f"s_min_u32 s{sKT_}, s{sKT_}, s{sQ}")
        a(f"s_cmp_ge_u32 s{sKT_}, s{sQ2}")
        a(f"s_cbranch_scc1 {l2}")
        bounded(a, l1)
        a.label(l2)
    def wait_mem(a):
        l1, l2 = a.uid("L_wm"), a.uid("L_wm")
        a(f"s_cmp_gt_u32 s{sKM_}, s{F.sSeg}")
        a(f"s_cbranch_scc1 {l2}")
        a(f"s_mov_b32 s{sP}, 0")
        a.label(l1)
        a(f"buffer_load_dword v{vF0}, v{vFM}, {WS}, 0 offen sc1")
        a("s_waitcnt vmcnt(0)")
        a(f"v_readfirstlane_b32 s{sKM_}, v{vF0}")
        a(f"s_cmp_gt_u32 s{sKM_}, s{F.sSeg}")
        a(f"s_cbranch_scc1 {l2}")
        bounded(a, l1)
        a.label(l2)
    def sig(a):
        flag_store(a, vF0, f"s{F.sIt}", sQF)
    def fin(a):
        a("s_barrier")
        flag_store(a, vF0, "32", sQF)
    def sig_main(a, val):
        l = a.uid("L_sm")
        a(f"s_cmp_lg_u32 s{F.sJ}, 0")
        a(f"s_cbranch_scc1 {l}")
        flag_store(a, vF0, val, sQF)
        a.label(l)
    def gate_mem(a):
        l1, l2 = a.uid("L_gm"), a.uid("L_gm")
        a(f"s_mov_b32 s{sP}, 0")
        a(f"s_cmp_ge_u32 s{sKM_}, s{F.sSeg}")
        a(f"s_cbranch_scc1 {l2}")
        a.label(l1)
        a(f"buffer_load_dword v{vF0}, v{vFM}, {WS}, 0 offen sc1")
        a("s_waitcnt vmcnt(0)")
        a(f"v_readfirstlane_b32 s{sKM_}, v{vF0}")
        a(f"s_cmp_ge_u32 s{sKM_}, s{F.sSeg}")
        a(f"s_cbranch_scc1 {l2}")
        bounded(a, l1)
        a.label(l2)
    return dict(wait_tok=wait_tok, wait_mem=wait_mem, sig=sig, fin=fin, sig_main=sig_main, gate_mem=gate_mem, bounded=bounded)

def emit_final_role(a):
    a.label("L_final")
    if "nofin" in os.environ.get("XF", "").split(","): a("s_branch L_exit")
    if tz_on(): a("s_mov_b32 s62, 0")
    final.emit_final_init(a)
    sTask, sNeed = 30, 31
    vFl, vNd, vT = 124, 125, 126
    a(f"""s_lshl_b32 s{sTask}, s96, 2
s_add_u32 s{sTask}, s{sTask}, s{sW}""")
    a.label("L_fin_loop")
    a(f"""s_mul_i32 s{sQ}, s{sTask}, 1821
s_lshr_b32 s{sQ}, s{sQ}, 16                ; segment
s_lshr_b32 s{sNeed}, s{sQ}, 1
s_add_u32 s{sNeed}, s{sNeed}, 1
s_and_b32 s{sQ2}, s{sQ}, 1
s_lshl_b32 s{sQ2}, s{sQ2}, 4
s_add_u32 s{sQ2}, s{sQ2}, {FL_FO}
s_and_b32 s{sQ}, s{sQ}, 0xfffffffc
s_add_u32 s{sQ}, s{sQ}, {FL_FF - 16}
v_and_b32 v{vT}, 63, v0
v_mov_b32 v{vFl}, s{sQ2}
v_mov_b32 v{vNd}, s{sQ}
v_cmp_gt_u32 vcc, 16, v{vT}
v_cndmask_b32 v{vFl}, v{vNd}, v{vFl}, vcc
v_mov_b32 v{vNd}, s{sNeed}
v_cndmask_b32 v{vNd}, 1, v{vNd}, vcc
v_cmp_gt_u32 vcc, 20, v{vT}
v_cndmask_b32 v{vT}, 0, v{vT}, vcc
v_add_u32 v{vFl}, v{vFl}, v{vT}
v_mov_b32 v{vT}, s{sQ2}
v_cndmask_b32 v{vFl}, v{vT}, v{vFl}, vcc
v_mov_b32 v{vT}, s{sNeed}
v_cndmask_b32 v{vNd}, v{vT}, v{vNd}, vcc
v_lshlrev_b32 v{vFl}, 8, v{vFl}
v_add_u32 v{vFl}, {FLAGS}, v{vFl}
s_add_u32 s{sQ}, s{sQ}, 16
s_lshl_b32 s{sQ}, s{sQ}, 8
s_add_u32 s{sQ}, s{sQ}, {FLAGS}
s_mov_b32 s{sP}, 0""")
    fw0 = "fw0" in os.environ.get("XF", "").split(",")
    if fw0: a(f"s_cmp_lg_u32 s{sW}, 0\ns_cbranch_scc1 L_fin_bar")
    a.label("L_fin_p1")
    a("s_mov_b64 exec, 1")
    a(f"buffer_load_dword v{vT}, off, {WS}, s{sQ} sc1")
    a("s_mov_b64 exec, -1")
    a("s_waitcnt vmcnt(0)")
    a(f"v_readfirstlane_b32 s{sQ2}, v{vT}")
    a(f"s_cmp_ge_u32 s{sQ2}, 1")
    a("s_cbranch_scc1 L_fin_p1b" if fw0 else "s_cbranch_scc1 L_fin_p2")
    bounded(a, "L_fin_p1")
    if fw0:
        a.label("L_fin_p1b")
        a(f"""s_lshr_b32 s{sQ}, s{sTask}, 2
s_and_b32 s{sQ}, s{sQ}, 15
v_readfirstlane_b32 s{sQ2}, v{vFl}
s_lshl_b32 s{sQ}, s{sQ}, 8
s_add_u32 s{sQ}, s{sQ}, s{sQ2}""")
        a.label("L_fin_p1c")
        a("s_mov_b64 exec, 1")
        a(f"buffer_load_dword v{vT}, off, {WS}, s{sQ} sc1")
        a("s_mov_b64 exec, -1")
        a("s_waitcnt vmcnt(0)")
        a(f"v_readfirstlane_b32 s{sQ2}, v{vT}")
        a(f"s_add_u32 s{sQ2}, s{sQ2}, 1")
        a(f"s_cmp_ge_u32 s{sQ2}, s{sNeed}")
        a("s_cbranch_scc1 L_fin_p2")
        bounded(a, "L_fin_p1c")
    a.label("L_fin_p2")
    a(f"buffer_load_dword v{vT}, v{vFl}, {WS}, 0 offen sc1")
    a("s_waitcnt vmcnt(0)")
    a(f"v_cmp_lt_u32 vcc, v{vT}, v{vNd}")
    a("s_cbranch_vccz L_fin_bar" if fw0 else "s_cbranch_vccz L_fin_go")
    bounded(a, "L_fin_p2")
    if fw0:
        a.label("L_fin_bar")
        a("s_barrier")
    a.label("L_fin_go")
    final.emit_final_task(a, sTask)
    a(f"s_add_u32 s{sTask}, s{sTask}, 640")
    a(f"s_cmp_lt_u32 s{sTask}, {62*36}")
    a("s_cbranch_scc1 L_fin_loop")
    a(f"""s_cmp_lg_u32 s{sW}, 0
s_cbranch_scc1 L_exit
s_cmp_lt_u32 s96, 88
s_cbranch_scc1 L_exit
s_sub_u32 s{sTask}, s96, 88""")
    def zc(a):
        zcap(a, 60)
    final.emit_final_last(a, sTask, bounded, sP, FLAGS, FL_FF, FL_FO, zc)
    if tz_on():
        a("s_waitcnt vmcnt(0)")
        zcap(a, 64)
        zput(a, [(60, 12), (64, 13)], 5, mx=True, wave0=False)
    a("s_branch L_exit")

def build(tm=False):
    a = Asm()
    prologue(a)
    if tm: a("s_memtime s[88:89]")
    zput(a, [(86, 15)], 5, mx=True)
    a(f"s_cmp_lt_u32 s{sRole}, 32")
    a("s_cbranch_scc1 L_chain")
    a(f"s_sub_u32 s96, s{sRole}, 32")
    a("s_cmp_lt_u32 s96, 64")
    a("s_cbranch_scc1 L_r_ln")
    a("s_cmp_lt_u32 s96, 160")
    a("s_cbranch_scc1 L_r_qkv")
    a("s_sub_u32 s96, s96, 160")
    ffn.emit_ffn(a, "L_r_ffn_end", ffn_hooks())
    a.label("L_r_ffn_end")
    a("s_branch L_final")
    a.label("L_r_qkv")
    a("s_sub_u32 s96, s96, 64")
    qkv.emit_qkv(a, "L_r_qkv_end", qkv_hooks())
    a.label("L_r_qkv_end")
    a("s_add_u32 s96, s96, 64")
    a("s_branch L_final")
    a.label("L_r_ln")
    a("s_mov_b32 s30, s96")
    emit_ln_role(a, 30)
    dstamp(a, 3, 8, [(96, 0)])
    a("""s_mov_b32 s30, 0
s_cmp_lt_u32 s96, 32
s_cbranch_scc1 L_r_fol
s_sub_u32 s96, s96, 32
s_lshr_b32 s30, s96, 4
s_add_u32 s30, s30, 1""")
    a.label("L_r_fol")
    if "nofol" in os.environ.get("XF", "").split(","): a("s_branch L_exit")
    follow.emit_follow(a, "L_exit", follow_hooks())
    emit_final_role(a)
    chain.emit_chain(a, tm, fused=True)
    a.label("L_fail")
    a(f"""s_mov_b64 exec, 1
v_mov_b32 v78, 1
buffer_atomic_add v78, off, s[{sDBG}:{sDBG+3}], 0 offset:{4*D_ERR} sc1
s_waitcnt vmcnt(0)""")
    a.label("L_exit")
    a("s_endpgm")
    name = NAME + "_kernel"
    txt = HEADER.format(launch="; @launch grid=(256,1,1) block=(256,1,1) lds=163840") + kernel_open(name) + a.finalize() \
        + '.section .rodata,"a"\n.p2align 6\n' + kernel_desc(name)
    return txt

if __name__ == "__main__":
    out = sys.argv[1] if len(sys.argv) > 1 else f'cdna_kernels/{NAME}.s'
    tm = len(sys.argv) > 2 and sys.argv[2] == "tm"
    open(out, 'w').write(build(tm))
```

```python
import sys
sys.path.insert(0, 'gen')
from asm import *
from layout import *
from common import *
import ln, qkv, ffn, follow, final
import os, importlib
chain = importlib.import_module(os.environ.get("CH", "chain3"))
if os.environ.get("XF"): chain.X.update(x for x in os.environ["XF"].split(",") if x)

D_LN = 32
FL_CH, FL_QK, FL_FO, FL_FF = 0, 32, 128, 160
POLL_MAX = int(os.environ.get("POLLF", "400000"))
WS = f"s[{sWS}:{sWS+3}]"
DBGS = f"s[{sDBG}:{sDBG+3}]"
sP = 94
sQ, sQ2 = 92, 93

def bounded(a, retry):
    a(f"s_add_u32 s{sP}, s{sP}, 1")
    a(f"s_cmp_lt_u32 s{sP}, {POLL_MAX}")
    a(f"s_cbranch_scc1 {retry}")
    a("s_branch L_fail")

def wait_ln(a, vt):
    l1, l2 = a.uid("L_wl"), a.uid("L_wl")
    a(f"s_cmp_lg_u32 s{sW}, 0")
    a(f"s_cbranch_scc1 {l2}")
    a(f"s_mov_b32 s{sP}, 0")
    a.label(l1)
    a(f"buffer_load_dword v{vt}, off, {DBGS}, 0 offset:{4*D_LN} sc1")
    a("s_waitcnt vmcnt(0)")
    a(f"v_readfirstlane_b32 s{sQ}, v{vt}")
    a(f"s_cmp_ge_u32 s{sQ}, 64")
    a(f"s_cbranch_scc1 {l2}")
    bounded(a, l1)
    a.label(l2)
    a("s_barrier")

def flag_store(a, vt, sval, soff, wave=0):
    l = a.uid("L_fs")
    a(f"s_cmp_lg_u32 s{sW}, {wave}")
    a(f"s_cbranch_scc1 {l}")
    a(f"v_mov_b32 v{vt}, {sval}")
    a("s_mov_b64 exec, 1")
    a(f"buffer_store_dword v{vt}, off, {WS}, s{soff} sc1")
    a("s_mov_b64 exec, -1")
    a.label(l)

def emit_ln_role(a, sSeg):
    def sentinels(a):
        for r in range(132, 136): a(f"v_mov_b32 v{r}, -1")
        st = lambda: a(f"buffer_store_dwordx4 v[132:135], v6, {WS}, s{sQ} offen sc1")
        a(f"""s_mul_i32 s{sQ}, s{sSeg}, 12288
s_lshl_b32 s{sQ2}, s{sW}, 10
s_add_u32 s{sQ}, s{sQ}, s{sQ2}
s_add_u32 s{sQ}, s{sQ}, {KM + 58*131072}""")
        st(); a(f"s_add_u32 s{sQ}, s{sQ}, 4096"); st(); a(f"s_add_u32 s{sQ}, s{sQ}, 4096"); st()
        a(f"s_add_u32 s{sQ}, s{sQ}, {VM - KM - 8192}")
        st(); a(f"s_add_u32 s{sQ}, s{sQ}, 4096"); st(); a(f"s_add_u32 s{sQ}, s{sQ}, 4096"); st()
        a(f"""s_mul_i32 s{sQ}, s{sSeg}, 18432
s_add_u32 s{sQ}, s{sQ}, s{sQ2}
s_add_u32 s{sQ}, s{sQ}, {PO + 62*16*36864}""")
        for i in range(4):
            st(); a(f"s_add_u32 s{sQ}, s{sQ}, 4096")
        l = a.uid("L_sn")
        a(f"s_cmp_ge_u32 s{sW}, 2")
        a(f"s_cbranch_scc1 {l}")
        st()
        a.label(l)
    ln.emit_ln(a, sSeg, mid=sentinels)
    l = a.uid("L_zf")
    a(f"s_cmp_lg_u32 s{sW}, 0")
    a(f"s_cbranch_scc1 {l}")
    a(f"s_lshl_b32 s{sQ}, s{sSeg}, 10")
    a(f"s_add_u32 s{sQ}, s{sQ}, {FLAGS}")
    a("v_mov_b32 v8, 0\nv_mov_b32 v9, 0\nv_mov_b32 v10, 0\nv_mov_b32 v11, 0")
    a(f"buffer_store_dwordx4 v[8:11], v6, {WS}, s{sQ} offen sc1")
    a("s_waitcnt vmcnt(0)")
    a.label(l)
    a("s_barrier")
    l = a.uid("L_lna")
    a(f"s_cmp_lg_u32 s{sW}, 0")
    a(f"s_cbranch_scc1 {l}")
    a("s_mov_b64 exec, 1")
    a("v_mov_b32 v8, 1")
    a(f"buffer_atomic_add v8, off, {DBGS}, 0 offset:{4*D_LN} sc1")
    a("s_mov_b64 exec, -1")
    a.label(l)

sQF = 95
def qkv_hooks():
    def wait_xn(a):
        a(f"s_add_u32 s{sQF}, s96, {FL_QK}")
        a(f"s_lshl_b32 s{sQF}, s{sQF}, 8")
        a(f"s_add_u32 s{sQF}, s{sQF}, {FLAGS}")
        dstamp(a, 0, qkv.vTmp, [(96, 0)])
        wait_ln(a, qkv.vTmp)
        dstamp(a, 1, qkv.vTmp, [(96, 0)])
    def sig(a):
        a(f"s_sub_u32 s{sQ}, s{qkv.sSeg}, 1")
        a(f"s_max_i32 s{sQ}, s{sQ}, 0")
        flag_store(a, qkv.vTmp, f"s{sQ}", sQF)
        dstamp(a, 2, qkv.vTmp, [(96, 0), (qkv.sSeg, 2)])
    def fin(a):
        a("s_barrier")
        flag_store(a, qkv.vTmp, "32", sQF)
    return dict(wait_xn=wait_xn, sig=sig, fin=fin)

def ffn_hooks():
    def wait_xn(a):
        a(f"s_add_u32 s{sQF}, s96, {FL_FF}")
        a(f"s_lshl_b32 s{sQF}, s{sQF}, 8")
        a(f"s_add_u32 s{sQF}, s{sQF}, {FLAGS}")
        wait_ln(a, 16)
    def fin(a):
        a("s_barrier")
        flag_store(a, 16, "1", sQF)
    return dict(wait_xn=wait_xn, fin=fin)

vFT, vFM, vF0 = 5, 6, 38
sKT_, sKM_ = 90, 91
def follow_hooks():
    F = follow
    def wait_tok(a, which):
        if which == 0:
            a(f"s_add_u32 s{sQF}, s96, {FL_FO}")
            a(f"s_lshl_b32 s{sQF}, s{sQF}, 8")
            a(f"s_add_u32 s{sQF}, s{sQF}, {FLAGS}")
            a(f"""s_mul_i32 s{sQ}, s{F.sPar}, 48
s_add_u32 s{sQ}, s{sQ}, s{F.sHP}
s_add_u32 s{sQ}, s{sQ}, {FL_QK}
s_lshl_b32 s{sQ}, s{sQ}, 8
s_add_u32 s{sQ}, s{sQ}, {FLAGS}
v_and_b32 v{vF0}, 63, v0
v_cmp_gt_u32 vcc, 3, v{vF0}
v_cndmask_b32 v{vF0}, 0, v{vF0}, vcc
v_lshlrev_b32 v{vF0}, 12, v{vF0}
v_add_u32 v{vFT}, s{sQ}, v{vF0}
s_lshl_b32 s{sQ}, s{F.sHP}, 1
s_lshr_b32 s{sQ2}, s{sW}, 1
s_add_u32 s{sQ}, s{sQ}, s{sQ2}
s_add_u32 s{sQ}, s{sQ}, {FL_CH}
s_lshl_b32 s{sQ}, s{sQ}, 8
s_add_u32 s{sQ}, s{sQ}, {FLAGS}
v_mov_b32 v{vFM}, s{sQ}
s_mov_b32 s{sKT_}, 0
s_mov_b32 s{sKM_}, 0""")
            wait_ln(a, vF0)
            a(f"s_cmp_eq_u32 s{F.sJ}, 0")
            a(f"s_cselect_b32 s{sQ2}, 1, 32")
        else:
            a(f"s_add_u32 s{sQ2}, s{F.sIt}, 2")
        l1, l2 = a.uid("L_wt"), a.uid("L_wt")
        a(f"s_cmp_ge_u32 s{sKT_}, s{sQ2}")
        a(f"s_cbranch_scc1 {l2}")
        a(f"s_mov_b32 s{sP}, 0")
        a.label(l1)
        a(f"buffer_load_dword v{vF0}, v{vFT}, {WS}, 0 offen sc1")
        a("s_waitcnt vmcnt(0)")
        a(f"v_readlane_b32 s{sKT_}, v{vF0}, 0")
        a(f"v_readlane_b32 s{sQ}, v{vF0}, 1")
        a(f"s_min_u32 s{sKT_}, s{sKT_}, s{sQ}")
        a(f"v_readlane_b32 s{sQ}, v{vF0}, 2")
        a(f"s_min_u32 s{sKT_}, s{sKT_}, s{sQ}")
        a(f"s_cmp_ge_u32 s{sKT_}, s{sQ2}")
        a(f"s_cbranch_scc1 {l2}")
        bounded(a, l1)
        a.label(l2)
    def wait_mem(a):
        l1, l2 = a.uid("L_wm"), a.uid("L_wm")
        a(f"s_cmp_gt_u32 s{sKM_}, s{F.sSeg}")
        a(f"s_cbranch_scc1 {l2}")
        a(f"s_mov_b32 s{sP}, 0")
        a.label(l1)
        a(f"buffer_load_dword v{vF0}, v{vFM}, {WS}, 0 offen sc1")
        a("s_waitcnt vmcnt(0)")
        a(f"v_readfirstlane_b32 s{sKM_}, v{vF0}")
        a(f"s_cmp_gt_u32 s{sKM_}, s{F.sSeg}")
        a(f"s_cbranch_scc1 {l2}")
        bounded(a, l1)
        a.label(l2)
    def sig(a):
        flag_store(a, vF0, f"s{F.sIt}", sQF)
    def fin(a):
        a("s_barrier")
        flag_store(a, vF0, "32", sQF)
    def sig_main(a, val):
        l = a.uid("L_sm")
        a(f"s_cmp_lg_u32 s{F.sJ}, 0")
        a(f"s_cbranch_scc1 {l}")
        flag_store(a, vF0, val, sQF)
        a.label(l)
    def gate_mem(a):
        l1, l2 = a.uid("L_gm"), a.uid("L_gm")
        a(f"s_mov_b32 s{sP}, 0")
        a(f"s_cmp_ge_u32 s{sKM_}, s{F.sSeg}")
        a(f"s_cbranch_scc1 {l2}")
        a.label(l1)
        a(f"buffer_load_dword v{vF0}, v{vFM}, {WS}, 0 offen sc1")
        a("s_waitcnt vmcnt(0)")
        a(f"v_readfirstlane_b32 s{sKM_}, v{vF0}")
        a(f"s_cmp_ge_u32 s{sKM_}, s{F.sSeg}")
        a(f"s_cbranch_scc1 {l2}")
        bounded(a, l1)
        a.label(l2)
    return dict(wait_tok=wait_tok, wait_mem=wait_mem, sig=sig, fin=fin, sig_main=sig_main, gate_mem=gate_mem, bounded=bounded)

def emit_final_role(a):
    a.label("L_final")
    if "nofin" in os.environ.get("XF", "").split(","): a("s_branch L_exit")
    if tz_on(): a("s_mov_b32 s62, 0")
    final.emit_final_init(a)
    sTask, sNeed = 30, 31
    vFl, vNd, vT = 124, 125, 126
    a(f"""s_lshl_b32 s{sTask}, s96, 2
s_add_u32 s{sTask}, s{sTask}, s{sW}""")
    a.label("L_fin_loop")
    a(f"""s_mul_i32 s{sQ}, s{sTask}, 1821
s_lshr_b32 s{sQ}, s{sQ}, 16                ; segment
s_lshr_b32 s{sNeed}, s{sQ}, 1
s_add_u32 s{sNeed}, s{sNeed}, 1
s_and_b32 s{sQ2}, s{sQ}, 1
s_lshl_b32 s{sQ2}, s{sQ2}, 4
s_add_u32 s{sQ2}, s{sQ2}, {FL_FO}
s_and_b32 s{sQ}, s{sQ}, 0xfffffffc
s_add_u32 s{sQ}, s{sQ}, {FL_FF - 16}
v_and_b32 v{vT}, 63, v0
v_mov_b32 v{vFl}, s{sQ2}
v_mov_b32 v{vNd}, s{sQ}
v_cmp_gt_u32 vcc, 16, v{vT}
v_cndmask_b32 v{vFl}, v{vNd}, v{vFl}, vcc
v_mov_b32 v{vNd}, s{sNeed}
v_cndmask_b32 v{vNd}, 1, v{vNd}, vcc
v_cmp_gt_u32 vcc, 20, v{vT}
v_cndmask_b32 v{vT}, 0, v{vT}, vcc
v_add_u32 v{vFl}, v{vFl}, v{vT}
v_mov_b32 v{vT}, s{sQ2}
v_cndmask_b32 v{vFl}, v{vT}, v{vFl}, vcc
v_mov_b32 v{vT}, s{sNeed}
v_cndmask_b32 v{vNd}, v{vT}, v{vNd}, vcc
v_lshlrev_b32 v{vFl}, 8, v{vFl}
v_add_u32 v{vFl}, {FLAGS}, v{vFl}
s_add_u32 s{sQ}, s{sQ}, 16
s_lshl_b32 s{sQ}, s{sQ}, 8
s_add_u32 s{sQ}, s{sQ}, {FLAGS}
s_mov_b32 s{sP}, 0""")
    fw0 = "fw0" in os.environ.get("XF", "").split(",")
    if fw0: a(f"s_cmp_lg_u32 s{sW}, 0\ns_cbranch_scc1 L_fin_bar")
    a.label("L_fin_p1")
    a("s_mov_b64 exec, 1")
    a(f"buffer_load_dword v{vT}, off, {WS}, s{sQ} sc1")
    a("s_mov_b64 exec, -1")
    a("s_waitcnt vmcnt(0)")
    a(f"v_readfirstlane_b32 s{sQ2}, v{vT}")
    a(f"s_cmp_ge_u32 s{sQ2}, 1")
    a("s_cbranch_scc1 L_fin_p1b" if fw0 else "s_cbranch_scc1 L_fin_p2")
    bounded(a, "L_fin_p1")
    if fw0:
        a.label("L_fin_p1b")
        a(f"""s_lshr_b32 s{sQ}, s{sTask}, 2
s_and_b32 s{sQ}, s{sQ}, 15
v_readfirstlane_b32 s{sQ2}, v{vFl}
s_lshl_b32 s{sQ}, s{sQ}, 8
s_add_u32 s{sQ}, s{sQ}, s{sQ2}""")
        a.label("L_fin_p1c")
        a("s_mov_b64 exec, 1")
        a(f"buffer_load_dword v{vT}, off, {WS}, s{sQ} sc1")
        a("s_mov_b64 exec, -1")
        a("s_waitcnt vmcnt(0)")
        a(f"v_readfirstlane_b32 s{sQ2}, v{vT}")
        a(f"s_add_u32 s{sQ2}, s{sQ2}, 1")
        a(f"s_cmp_ge_u32 s{sQ2}, s{sNeed}")
        a("s_cbranch_scc1 L_fin_p2")
        bounded(a, "L_fin_p1c")
    a.label("L_fin_p2")
    a(f"buffer_load_dword v{vT}, v{vFl}, {WS}, 0 offen sc1")
    a("s_waitcnt vmcnt(0)")
    a(f"v_cmp_lt_u32 vcc, v{vT}, v{vNd}")
    a("s_cbranch_vccz L_fin_bar" if fw0 else "s_cbranch_vccz L_fin_go")
    bounded(a, "L_fin_p2")
    if fw0:
        a.label("L_fin_bar")
        a("s_barrier")
    a.label("L_fin_go")
    final.emit_final_task(a, sTask)
    a(f"s_add_u32 s{sTask}, s{sTask}, 640")
    a(f"s_cmp_lt_u32 s{sTask}, {62*36}")
    a("s_cbranch_scc1 L_fin_loop")
    a(f"""s_cmp_lg_u32 s{sW}, 0
s_cbranch_scc1 L_exit
s_cmp_lt_u32 s96, 88
s_cbranch_scc1 L_exit
s_sub_u32 s{sTask}, s96, 88""")
    def zc(a):
        zcap(a, 60)
    final.emit_final_last(a, sTask, bounded, sP, FLAGS, FL_FF, FL_FO, zc)
    if tz_on():
        a("s_waitcnt vmcnt(0)")
        zcap(a, 64)
        zput(a, [(60, 12), (64, 13)], 5, mx=True, wave0=False)
    a("s_branch L_exit")

def build(tm=False):
    a = Asm()
    prologue(a)
    if tm: a("s_memtime s[88:89]")
    zput(a, [(86, 15)], 5, mx=True)
    a("s_mov_b32 s98, 0")
    chain.bst(a, 15, None)
    a(f"s_cmp_lt_u32 s{sRole}, 32")
    a("s_cbranch_scc1 L_chain")
    a(f"s_sub_u32 s96, s{sRole}, 32")
    a("s_cmp_lt_u32 s96, 64")
    a("s_cbranch_scc1 L_r_ln")
    a("s_cmp_lt_u32 s96, 160")
    a("s_cbranch_scc1 L_r_qkv")
    a("s_sub_u32 s96, s96, 160")
    ffn.emit_ffn(a, "L_r_ffn_end", ffn_hooks())
    a.label("L_r_ffn_end")
    a("s_branch L_final")
    a.label("L_r_qkv")
    a("s_sub_u32 s96, s96, 64")
    qkv.emit_qkv(a, "L_r_qkv_end", qkv_hooks())
    a.label("L_r_qkv_end")
    a("s_add_u32 s96, s96, 64")
    a("s_branch L_final")
    a.label("L_r_ln")
    a("s_mov_b32 s30, s96")
    emit_ln_role(a, 30)
    dstamp(a, 3, 8, [(96, 0)])
    a("""s_mov_b32 s30, 0
s_cmp_lt_u32 s96, 32
s_cbranch_scc1 L_r_fol""")
    a(f"""s_sub_u32 s{sRole}, s96, 32
s_mov_b32 s98, 96
s_load_dwordx2 s[{sT}:{sT+1}], s[0:1], {KA["Wo"]}
s_waitcnt lgkmcnt(0)
s_branch L_chain""")
    a.label("L_boot_exit")
    chain.bst(a, 8, True)
    a(f"""s_waitcnt vmcnt(0) lgkmcnt(0)
s_barrier
v_lshrrev_b32 v0, 4, v0
s_mov_b32 s96, s16
s_lshr_b32 s30, s96, 4
s_add_u32 s30, s30, 1""")
    a.label("L_r_fol")
    if "nofol" in os.environ.get("XF", "").split(","): a("s_branch L_exit")
    follow.emit_follow(a, "L_exit", follow_hooks())
    emit_final_role(a)
    chain.emit_chain(a, tm, fused=True)
    a.label("L_fail")
    a(f"""s_mov_b64 exec, 1
v_mov_b32 v78, 1
buffer_atomic_add v78, off, s[{sDBG}:{sDBG+3}], 0 offset:{4*D_ERR} sc1
s_waitcnt vmcnt(0)""")
    a.label("L_exit")
    a("s_endpgm")
    name = NAME + "_kernel"
    txt = HEADER.format(launch="; @launch grid=(256,1,1) block=(256,1,1) lds=163840") + kernel_open(name) + a.finalize() \
        + '.section .rodata,"a"\n.p2align 6\n' + kernel_desc(name)
    return txt

if __name__ == "__main__":
    out = sys.argv[1] if len(sys.argv) > 1 else f'cdna_kernels/{NAME}.s'
    tm = len(sys.argv) > 2 and sys.argv[2] == "tm"
    open(out, 'w').write(build(tm))
```

```python
import sys
sys.path.insert(0, 'gen')
from asm import *
from layout import *
from common import *
import ln, qkv, ffn, follow, final
import os, importlib
chain = importlib.import_module(os.environ.get("CH", "chain3"))
if os.environ.get("XF"): chain.X.update(x for x in os.environ["XF"].split(",") if x)

D_LN = 32
FL_CH, FL_QK, FL_FO, FL_FF = 0, 32, 128, 160
POLL_MAX = int(os.environ.get("POLLF", "400000"))
WS = f"s[{sWS}:{sWS+3}]"
DBGS = f"s[{sDBG}:{sDBG+3}]"
sP = 94
sQ, sQ2 = 92, 93

def bounded(a, retry):
    a(f"s_add_u32 s{sP}, s{sP}, 1")
    a(f"s_cmp_lt_u32 s{sP}, {POLL_MAX}")
    a(f"s_cbranch_scc1 {retry}")
    a("s_branch L_fail")

def wait_ln(a, vt):
    l1, l2 = a.uid("L_wl"), a.uid("L_wl")
    a(f"s_cmp_lg_u32 s{sW}, 0")
    a(f"s_cbranch_scc1 {l2}")
    a(f"s_mov_b32 s{sP}, 0")
    a.label(l1)
    a(f"buffer_load_dword v{vt}, off, {DBGS}, 0 offset:{4*D_LN} sc1")
    a("s_waitcnt vmcnt(0)")
    a(f"v_readfirstlane_b32 s{sQ}, v{vt}")
    a(f"s_cmp_ge_u32 s{sQ}, 64")
    a(f"s_cbranch_scc1 {l2}")
    bounded(a, l1)
    a.label(l2)
    a("s_barrier")

def flag_store(a, vt, sval, soff, wave=0):
    l = a.uid("L_fs")
    a(f"s_cmp_lg_u32 s{sW}, {wave}")
    a(f"s_cbranch_scc1 {l}")
    a(f"v_mov_b32 v{vt}, {sval}")
    a("s_mov_b64 exec, 1")
    a(f"buffer_store_dword v{vt}, off, {WS}, s{soff} sc1")
    a("s_mov_b64 exec, -1")
    a.label(l)

def emit_ln_role(a, sSeg):
    def sentinels(a):
        for r in range(132, 136): a(f"v_mov_b32 v{r}, -1")
        st = lambda: a(f"buffer_store_dwordx4 v[132:135], v6, {WS}, s{sQ} offen sc1")
        a(f"""s_mul_i32 s{sQ}, s{sSeg}, 12288
s_lshl_b32 s{sQ2}, s{sW}, 10
s_add_u32 s{sQ}, s{sQ}, s{sQ2}
s_add_u32 s{sQ}, s{sQ}, {KM + 58*131072}""")
        st(); a(f"s_add_u32 s{sQ}, s{sQ}, 4096"); st(); a(f"s_add_u32 s{sQ}, s{sQ}, 4096"); st()
        a(f"s_add_u32 s{sQ}, s{sQ}, {VM - KM - 8192}")
        st(); a(f"s_add_u32 s{sQ}, s{sQ}, 4096"); st(); a(f"s_add_u32 s{sQ}, s{sQ}, 4096"); st()
        a(f"""s_mul_i32 s{sQ}, s{sSeg}, 18432
s_add_u32 s{sQ}, s{sQ}, s{sQ2}
s_add_u32 s{sQ}, s{sQ}, {PO + 62*16*36864}""")
        for i in range(4):
            st(); a(f"s_add_u32 s{sQ}, s{sQ}, 4096")
        l = a.uid("L_sn")
        a(f"s_cmp_ge_u32 s{sW}, 2")
        a(f"s_cbranch_scc1 {l}")
        st()
        a.label(l)
    ln.emit_ln(a, sSeg, mid=sentinels)
    l = a.uid("L_zf")
    a(f"s_cmp_lg_u32 s{sW}, 0")
    a(f"s_cbranch_scc1 {l}")
    a(f"s_lshl_b32 s{sQ}, s{sSeg}, 10")
    a(f"s_add_u32 s{sQ}, s{sQ}, {FLAGS}")
    a("v_mov_b32 v8, 0\nv_mov_b32 v9, 0\nv_mov_b32 v10, 0\nv_mov_b32 v11, 0")
    a(f"buffer_store_dwordx4 v[8:11], v6, {WS}, s{sQ} offen sc1")
    a("s_waitcnt vmcnt(0)")
    a.label(l)
    a("s_barrier")
    l = a.uid("L_lna")
    a(f"s_cmp_lg_u32 s{sW}, 0")
    a(f"s_cbranch_scc1 {l}")
    a("s_mov_b64 exec, 1")
    a("v_mov_b32 v8, 1")
    a(f"buffer_atomic_add v8, off, {DBGS}, 0 offset:{4*D_LN} sc1")
    a("s_mov_b64 exec, -1")
    a.label(l)

sQF = 95
def qkv_hooks():
    def wait_xn(a):
        a(f"s_add_u32 s{sQF}, s96, {FL_QK}")
        a(f"s_lshl_b32 s{sQF}, s{sQF}, 8")
        a(f"s_add_u32 s{sQF}, s{sQF}, {FLAGS}")
        dstamp(a, 0, qkv.vTmp, [(96, 0)])
        wait_ln(a, qkv.vTmp)
        dstamp(a, 1, qkv.vTmp, [(96, 0)])
    def sig(a):
        a(f"s_sub_u32 s{sQ}, s{qkv.sSeg}, 1")
        a(f"s_max_i32 s{sQ}, s{sQ}, 0")
        flag_store(a, qkv.vTmp, f"s{sQ}", sQF)
        dstamp(a, 2, qkv.vTmp, [(96, 0), (qkv.sSeg, 2)])
    def fin(a):
        a("s_barrier")
        flag_store(a, qkv.vTmp, "32", sQF)
    return dict(wait_xn=wait_xn, sig=sig, fin=fin)

def ffn_hooks():
    def wait_xn(a):
        a(f"s_add_u32 s{sQF}, s96, {FL_FF}")
        a(f"s_lshl_b32 s{sQF}, s{sQF}, 8")
        a(f"s_add_u32 s{sQF}, s{sQF}, {FLAGS}")
        wait_ln(a, 16)
    def fin(a):
        a("s_barrier")
        flag_store(a, 16, "1", sQF)
    return dict(wait_xn=wait_xn, fin=fin)

vFT, vFM, vF0 = 5, 6, 38
sKT_, sKM_ = 90, 91
def follow_hooks():
    F = follow
    def wait_tok(a, which):
        if which == 0:
            a(f"s_add_u32 s{sQF}, s96, {FL_FO}")
            a(f"s_lshl_b32 s{sQF}, s{sQF}, 8")
            a(f"s_add_u32 s{sQF}, s{sQF}, {FLAGS}")
            a(f"""s_mul_i32 s{sQ}, s{F.sPar}, 48
s_add_u32 s{sQ}, s{sQ}, s{F.sHP}
s_add_u32 s{sQ}, s{sQ}, {FL_QK}
s_lshl_b32 s{sQ}, s{sQ}, 8
s_add_u32 s{sQ}, s{sQ}, {FLAGS}
v_and_b32 v{vF0}, 63, v0
v_cmp_gt_u32 vcc, 3, v{vF0}
v_cndmask_b32 v{vF0}, 0, v{vF0}, vcc
v_lshlrev_b32 v{vF0}, 12, v{vF0}
v_add_u32 v{vFT}, s{sQ}, v{vF0}
s_lshl_b32 s{sQ}, s{F.sHP}, 1
s_lshr_b32 s{sQ2}, s{sW}, 1
s_add_u32 s{sQ}, s{sQ}, s{sQ2}
s_add_u32 s{sQ}, s{sQ}, {FL_CH}
s_lshl_b32 s{sQ}, s{sQ}, 8
s_add_u32 s{sQ}, s{sQ}, {FLAGS}
v_mov_b32 v{vFM}, s{sQ}
s_mov_b32 s{sKT_}, 0
s_mov_b32 s{sKM_}, 0""")
            wait_ln(a, vF0)
            a(f"s_cmp_eq_u32 s{F.sJ}, 0")
            a(f"s_cselect_b32 s{sQ2}, 1, 32")
        else:
            a(f"s_add_u32 s{sQ2}, s{F.sIt}, 2")
        l1, l2 = a.uid("L_wt"), a.uid("L_wt")
        a(f"s_cmp_ge_u32 s{sKT_}, s{sQ2}")
        a(f"s_cbranch_scc1 {l2}")
        a(f"s_mov_b32 s{sP}, 0")
        a.label(l1)
        a(f"buffer_load_dword v{vF0}, v{vFT}, {WS}, 0 offen sc1")
        a("s_waitcnt vmcnt(0)")
        a(f"v_readlane_b32 s{sKT_}, v{vF0}, 0")
        a(f"v_readlane_b32 s{sQ}, v{vF0}, 1")
        a(f"s_min_u32 s{sKT_}, s{sKT_}, s{sQ}")
        a(f"v_readlane_b32 s{sQ}, v{vF0}, 2")
        a(f"s_min_u32 s{sKT_}, s{sKT_}, s{sQ}")
        a(f"s_cmp_ge_u32 s{sKT_}, s{sQ2}")
        a(f"s_cbranch_scc1 {l2}")
        bounded(a, l1)
        a.label(l2)
    def wait_mem(a):
        l1, l2 = a.uid("L_wm"), a.uid("L_wm")
        a(f"s_cmp_gt_u32 s{sKM_}, s{F.sSeg}")
        a(f"s_cbranch_scc1 {l2}")
        a(f"s_mov_b32 s{sP}, 0")
        a.label(l1)
        a(f"buffer_load_dword v{vF0}, v{vFM}, {WS}, 0 offen sc1")
        a("s_waitcnt vmcnt(0)")
        a(f"v_readfirstlane_b32 s{sKM_}, v{vF0}")
        a(f"s_cmp_gt_u32 s{sKM_}, s{F.sSeg}")
        a(f"s_cbranch_scc1 {l2}")
        bounded(a, l1)
        a.label(l2)
    def sig(a):
        flag_store(a, vF0, f"s{F.sIt}", sQF)
    def fin(a):
        a("s_barrier")
        flag_store(a, vF0, "32", sQF)
    def sig_main(a, val):
        l = a.uid("L_sm")
        a(f"s_cmp_lg_u32 s{F.sJ}, 0")
        a(f"s_cbranch_scc1 {l}")
        flag_store(a, vF0, val, sQF)
        a.label(l)
    def gate_mem(a):
        l1, l2 = a.uid("L_gm"), a.uid("L_gm")
        a(f"s_mov_b32 s{sP}, 0")
        a(f"s_cmp_ge_u32 s{sKM_}, s{F.sSeg}")
        a(f"s_cbranch_scc1 {l2}")
        a.label(l1)
        a(f"buffer_load_dword v{vF0}, v{vFM}, {WS}, 0 offen sc1")
        a("s_waitcnt vmcnt(0)")
        a(f"v_readfirstlane_b32 s{sKM_}, v{vF0}")
        a(f"s_cmp_ge_u32 s{sKM_}, s{F.sSeg}")
        a(f"s_cbranch_scc1 {l2}")
        bounded(a, l1)
        a.label(l2)
    return dict(wait_tok=wait_tok, wait_mem=wait_mem, sig=sig, fin=fin, sig_main=sig_main, gate_mem=gate_mem, bounded=bounded)

def emit_final_role(a):
    a.label("L_final")
    if "nofin" in os.environ.get("XF", "").split(","): a("s_branch L_exit")
    if tz_on(): a("s_mov_b32 s62, 0")
    final.emit_final_init(a)
    sTask, sNeed = 30, 31
    vFl, vNd, vT = 124, 125, 126
    a(f"""s_lshl_b32 s{sTask}, s96, 2
s_add_u32 s{sTask}, s{sTask}, s{sW}""")
    a.label("L_fin_loop")
    a(f"""s_mul_i32 s{sQ}, s{sTask}, 1821
s_lshr_b32 s{sQ}, s{sQ}, 16                ; segment
s_lshr_b32 s{sNeed}, s{sQ}, 1
s_add_u32 s{sNeed}, s{sNeed}, 1
s_and_b32 s{sQ2}, s{sQ}, 1
s_lshl_b32 s{sQ2}, s{sQ2}, 4
s_add_u32 s{sQ2}, s{sQ2}, {FL_FO}
s_and_b32 s{sQ}, s{sQ}, 0xfffffffc
s_add_u32 s{sQ}, s{sQ}, {FL_FF - 16}
v_and_b32 v{vT}, 63, v0
v_mov_b32 v{vFl}, s{sQ2}
v_mov_b32 v{vNd}, s{sQ}
v_cmp_gt_u32 vcc, 16, v{vT}
v_cndmask_b32 v{vFl}, v{vNd}, v{vFl}, vcc
v_mov_b32 v{vNd}, s{sNeed}
v_cndmask_b32 v{vNd}, 1, v{vNd}, vcc
v_cmp_gt_u32 vcc, 20, v{vT}
v_cndmask_b32 v{vT}, 0, v{vT}, vcc
v_add_u32 v{vFl}, v{vFl}, v{vT}
v_mov_b32 v{vT}, s{sQ2}
v_cndmask_b32 v{vFl}, v{vT}, v{vFl}, vcc
v_mov_b32 v{vT}, s{sNeed}
v_cndmask_b32 v{vNd}, v{vT}, v{vNd}, vcc
v_lshlrev_b32 v{vFl}, 8, v{vFl}
v_add_u32 v{vFl}, {FLAGS}, v{vFl}
s_add_u32 s{sQ}, s{sQ}, 16
s_lshl_b32 s{sQ}, s{sQ}, 8
s_add_u32 s{sQ}, s{sQ}, {FLAGS}
s_mov_b32 s{sP}, 0""")
    fw0 = "fw0" in os.environ.get("XF", "").split(",")
    if fw0: a(f"s_cmp_lg_u32 s{sW}, 0\ns_cbranch_scc1 L_fin_bar")
    a.label("L_fin_p1")
    a("s_mov_b64 exec, 1")
    a(f"buffer_load_dword v{vT}, off, {WS}, s{sQ} sc1")
    a("s_mov_b64 exec, -1")
    a("s_waitcnt vmcnt(0)")
    a(f"v_readfirstlane_b32 s{sQ2}, v{vT}")
    a(f"s_cmp_ge_u32 s{sQ2}, 1")
    a("s_cbranch_scc1 L_fin_p1b" if fw0 else "s_cbranch_scc1 L_fin_p2")
    bounded(a, "L_fin_p1")
    if fw0:
        a.label("L_fin_p1b")
        a(f"""s_lshr_b32 s{sQ}, s{sTask}, 2
s_and_b32 s{sQ}, s{sQ}, 15
v_readfirstlane_b32 s{sQ2}, v{vFl}
s_lshl_b32 s{sQ}, s{sQ}, 8
s_add_u32 s{sQ}, s{sQ}, s{sQ2}""")
        a.label("L_fin_p1c")
        a("s_mov_b64 exec, 1")
        a(f"buffer_load_dword v{vT}, off, {WS}, s{sQ} sc1")
        a("s_mov_b64 exec, -1")
        a("s_waitcnt vmcnt(0)")
        a(f"v_readfirstlane_b32 s{sQ2}, v{vT}")
        a(f"s_add_u32 s{sQ2}, s{sQ2}, 1")
        a(f"s_cmp_ge_u32 s{sQ2}, s{sNeed}")
        a("s_cbranch_scc1 L_fin_p2")
        bounded(a, "L_fin_p1c")
    a.label("L_fin_p2")
    a(f"buffer_load_dword v{vT}, v{vFl}, {WS}, 0 offen sc1")
    a("s_waitcnt vmcnt(0)")
    a(f"v_cmp_lt_u32 vcc, v{vT}, v{vNd}")
    a("s_cbranch_vccz L_fin_bar" if fw0 else "s_cbranch_vccz L_fin_go")
    bounded(a, "L_fin_p2")
    if fw0:
        a.label("L_fin_bar")
        a("s_barrier")
    a.label("L_fin_go")
    final.emit_final_task(a, sTask)
    a(f"s_add_u32 s{sTask}, s{sTask}, 640")
    a(f"s_cmp_lt_u32 s{sTask}, {62*36}")
    a("s_cbranch_scc1 L_fin_loop")
    a(f"""s_cmp_lg_u32 s{sW}, 0
s_cbranch_scc1 L_exit
s_cmp_lt_u32 s96, 88
s_cbranch_scc1 L_exit
s_sub_u32 s{sTask}, s96, 88""")
    def zc(a):
        zcap(a, 60)
    final.emit_final_last(a, sTask, bounded, sP, FLAGS, FL_FF, FL_FO, zc)
    if tz_on():
        a("s_waitcnt vmcnt(0)")
        zcap(a, 64)
        zput(a, [(60, 12), (64, 13)], 5, mx=True, wave0=False)
    a("s_branch L_exit")

def build(tm=False):
    a = Asm()
    prologue(a)
    if tm: a("s_memtime s[88:89]")
    zput(a, [(86, 15)], 5, mx=True)
    a(f"s_cmp_lt_u32 s{sRole}, 32")
    a("s_cbranch_scc1 L_chain")
    a(f"s_sub_u32 s96, s{sRole}, 32")
    a("s_cmp_lt_u32 s96, 64")
    a("s_cbranch_scc1 L_r_ln")
    a("s_cmp_lt_u32 s96, 160")
    a("s_cbranch_scc1 L_r_qkv")
    a("s_sub_u32 s96, s96, 160")
    if "fd" in os.environ.get("XF", "").split(","):
        wait_ln(a, 16)
        l1, l2 = a.uid("L_fd"), a.uid("L_fd")
        a(f"""s_cmp_lg_u32 s{sW}, 0
s_cbranch_scc1 {l2}
s_and_b32 s{sQ2}, s96, 31
s_add_u32 s{sQ2}, s{sQ2}, {FL_CH}
s_lshl_b32 s{sQ2}, s{sQ2}, 8
s_add_u32 s{sQ2}, s{sQ2}, {FLAGS}
s_mov_b32 s{sP}, 0""")
        a.label(l1)
        a(f"""buffer_load_dword v16, off, {WS}, s{sQ2} sc1
s_waitcnt vmcnt(0)
v_readfirstlane_b32 s{sQ}, v16
s_cmp_ge_u32 s{sQ}, 1
s_cbranch_scc1 {l2}""")
        bounded(a, l1)
        a.label(l2)
        a("s_barrier")
    ffn.emit_ffn(a, "L_r_ffn_end", ffn_hooks())
    a.label("L_r_ffn_end")
    a("s_branch L_final")
    a.label("L_r_qkv")
    a("s_sub_u32 s96, s96, 64")
    qkv.emit_qkv(a, "L_r_qkv_end", qkv_hooks())
    a.label("L_r_qkv_end")
    a("s_add_u32 s96, s96, 64")
    a("s_branch L_final")
    a.label("L_r_ln")
    a("s_mov_b32 s30, s96")
    emit_ln_role(a, 30)
    dstamp(a, 3, 8, [(96, 0)])
    a("""s_mov_b32 s30, 0
s_cmp_lt_u32 s96, 32
s_cbranch_scc1 L_r_fol
s_sub_u32 s96, s96, 32
s_lshr_b32 s30, s96, 4
s_add_u32 s30, s30, 1""")
    a.label("L_r_fol")
    if "nofol" in os.environ.get("XF", "").split(","): a("s_branch L_exit")
    follow.emit_follow(a, "L_exit", follow_hooks())
    emit_final_role(a)
    chain.emit_chain(a, tm, fused=True)
    a.label("L_fail")
    a(f"""s_mov_b64 exec, 1
v_mov_b32 v78, 1
buffer_atomic_add v78, off, s[{sDBG}:{sDBG+3}], 0 offset:{4*D_ERR} sc1
s_waitcnt vmcnt(0)""")
    a.label("L_exit")
    a("s_endpgm")
    name = NAME + "_kernel"
    txt = HEADER.format(launch="; @launch grid=(256,1,1) block=(256,1,1) lds=163840") + kernel_open(name) + a.finalize() \
        + '.section .rodata,"a"\n.p2align 6\n' + kernel_desc(name)
    return txt

if __name__ == "__main__":
    out = sys.argv[1] if len(sys.argv) > 1 else f'cdna_kernels/{NAME}.s'
    tm = len(sys.argv) > 2 and sys.argv[2] == "tm"
    open(out, 'w').write(build(tm))
```

```python
import sys
sys.path.insert(0, 'gen')
from asm import *
from layout import *
from common import *
import ln, qkv, ffn, follow, final
import os, importlib
chain = importlib.import_module(os.environ.get("CH", "chain3"))
if os.environ.get("XF"): chain.X.update(x for x in os.environ["XF"].split(",") if x)

D_LN = 32
FL_CH, FL_QK, FL_FO, FL_FF = 0, 32, 128, 160
POLL_MAX = int(os.environ.get("POLLF", "400000"))
WS = f"s[{sWS}:{sWS+3}]"
DBGS = f"s[{sDBG}:{sDBG+3}]"
sP = 94
sQ, sQ2 = 92, 93

def bounded(a, retry):
    a(f"s_add_u32 s{sP}, s{sP}, 1")
    a(f"s_cmp_lt_u32 s{sP}, {POLL_MAX}")
    a(f"s_cbranch_scc1 {retry}")
    a("s_branch L_fail")

def wait_ln(a, vt):
    l1, l2 = a.uid("L_wl"), a.uid("L_wl")
    a(f"s_cmp_lg_u32 s{sW}, 0")
    a(f"s_cbranch_scc1 {l2}")
    a(f"s_mov_b32 s{sP}, 0")
    a.label(l1)
    a(f"buffer_load_dword v{vt}, off, {DBGS}, 0 offset:{4*D_LN} sc1")
    a("s_waitcnt vmcnt(0)")
    a(f"v_readfirstlane_b32 s{sQ}, v{vt}")
    a(f"s_cmp_ge_u32 s{sQ}, 64")
    a(f"s_cbranch_scc1 {l2}")
    bounded(a, l1)
    a.label(l2)
    a("s_barrier")

def flag_store(a, vt, sval, soff, wave=0):
    l = a.uid("L_fs")
    a(f"s_cmp_lg_u32 s{sW}, {wave}")
    a(f"s_cbranch_scc1 {l}")
    a(f"v_mov_b32 v{vt}, {sval}")
    a("s_mov_b64 exec, 1")
    a(f"buffer_store_dword v{vt}, off, {WS}, s{soff} sc1")
    a("s_mov_b64 exec, -1")
    a.label(l)

def emit_ln_role(a, sSeg):
    def sentinels(a):
        for r in range(132, 136): a(f"v_mov_b32 v{r}, -1")
        st = lambda: a(f"buffer_store_dwordx4 v[132:135], v6, {WS}, s{sQ} offen sc1")
        a(f"""s_mul_i32 s{sQ}, s{sSeg}, 12288
s_lshl_b32 s{sQ2}, s{sW}, 10
s_add_u32 s{sQ}, s{sQ}, s{sQ2}
s_add_u32 s{sQ}, s{sQ}, {KM + 58*131072}""")
        st(); a(f"s_add_u32 s{sQ}, s{sQ}, 4096"); st(); a(f"s_add_u32 s{sQ}, s{sQ}, 4096"); st()
        a(f"s_add_u32 s{sQ}, s{sQ}, {VM - KM - 8192}")
        st(); a(f"s_add_u32 s{sQ}, s{sQ}, 4096"); st(); a(f"s_add_u32 s{sQ}, s{sQ}, 4096"); st()
        a(f"""s_mul_i32 s{sQ}, s{sSeg}, 18432
s_add_u32 s{sQ}, s{sQ}, s{sQ2}
s_add_u32 s{sQ}, s{sQ}, {PO + 62*16*36864}""")
        for i in range(4):
            st(); a(f"s_add_u32 s{sQ}, s{sQ}, 4096")
        l = a.uid("L_sn")
        a(f"s_cmp_ge_u32 s{sW}, 2")
        a(f"s_cbranch_scc1 {l}")
        st()
        a.label(l)
    ln.emit_ln(a, sSeg, mid=sentinels)
    l = a.uid("L_zf")
    a(f"s_cmp_lg_u32 s{sW}, 0")
    a(f"s_cbranch_scc1 {l}")
    a(f"s_lshl_b32 s{sQ}, s{sSeg}, 10")
    a(f"s_add_u32 s{sQ}, s{sQ}, {FLAGS}")
    a("v_mov_b32 v8, 0\nv_mov_b32 v9, 0\nv_mov_b32 v10, 0\nv_mov_b32 v11, 0")
    a(f"buffer_store_dwordx4 v[8:11], v6, {WS}, s{sQ} offen sc1")
    a("s_waitcnt vmcnt(0)")
    a.label(l)
    a("s_barrier")
    l = a.uid("L_lna")
    a(f"s_cmp_lg_u32 s{sW}, 0")
    a(f"s_cbranch_scc1 {l}")
    a("s_mov_b64 exec, 1")
    a("v_mov_b32 v8, 1")
    a(f"buffer_atomic_add v8, off, {DBGS}, 0 offset:{4*D_LN} sc1")
    a("s_mov_b64 exec, -1")
    a.label(l)

sQF = 95
def qkv_hooks():
    def wait_xn(a):
        a(f"s_add_u32 s{sQF}, s96, {FL_QK}")
        a(f"s_lshl_b32 s{sQF}, s{sQF}, 8")
        a(f"s_add_u32 s{sQF}, s{sQF}, {FLAGS}")
        dstamp(a, 0, qkv.vTmp, [(96, 0)])
        wait_ln(a, qkv.vTmp)
        dstamp(a, 1, qkv.vTmp, [(96, 0)])
    def sig(a):
        a(f"s_sub_u32 s{sQ}, s{qkv.sSeg}, 1")
        a(f"s_max_i32 s{sQ}, s{sQ}, 0")
        flag_store(a, qkv.vTmp, f"s{sQ}", sQF)
        dstamp(a, 2, qkv.vTmp, [(96, 0), (qkv.sSeg, 2)])
    def fin(a):
        a("s_barrier")
        flag_store(a, qkv.vTmp, "32", sQF)
    return dict(wait_xn=wait_xn, sig=sig, fin=fin)

def ffn_hooks():
    def wait_xn(a):
        a(f"s_add_u32 s{sQF}, s96, {FL_FF}")
        a(f"s_lshl_b32 s{sQF}, s{sQF}, 8")
        a(f"s_add_u32 s{sQF}, s{sQF}, {FLAGS}")
        wait_ln(a, 16)
    def fin(a):
        a("s_barrier")
        flag_store(a, 16, "1", sQF)
    return dict(wait_xn=wait_xn, fin=fin)

vFT, vFM, vF0 = 5, 6, 38
sKT_, sKM_ = 90, 91
def follow_hooks():
    F = follow
    def wait_tok(a, which):
        if which == 0:
            a(f"s_add_u32 s{sQF}, s96, {FL_FO}")
            a(f"s_lshl_b32 s{sQF}, s{sQF}, 8")
            a(f"s_add_u32 s{sQF}, s{sQF}, {FLAGS}")
            a(f"""s_mul_i32 s{sQ}, s{F.sPar}, 48
s_add_u32 s{sQ}, s{sQ}, s{F.sHP}
s_add_u32 s{sQ}, s{sQ}, {FL_QK}
s_lshl_b32 s{sQ}, s{sQ}, 8
s_add_u32 s{sQ}, s{sQ}, {FLAGS}
v_and_b32 v{vF0}, 63, v0
v_cmp_gt_u32 vcc, 3, v{vF0}
v_cndmask_b32 v{vF0}, 0, v{vF0}, vcc
v_lshlrev_b32 v{vF0}, 12, v{vF0}
v_add_u32 v{vFT}, s{sQ}, v{vF0}
s_lshl_b32 s{sQ}, s{F.sHP}, 1
s_lshr_b32 s{sQ2}, s{sW}, 1
s_add_u32 s{sQ}, s{sQ}, s{sQ2}
s_add_u32 s{sQ}, s{sQ}, {FL_CH}
s_lshl_b32 s{sQ}, s{sQ}, 8
s_add_u32 s{sQ}, s{sQ}, {FLAGS}
v_mov_b32 v{vFM}, s{sQ}
s_mov_b32 s{sKT_}, 0
s_mov_b32 s{sKM_}, 0""")
            wait_ln(a, vF0)
            a(f"s_cmp_eq_u32 s{F.sJ}, 0")
            a(f"s_cselect_b32 s{sQ2}, 1, 32")
        else:
            a(f"s_add_u32 s{sQ2}, s{F.sIt}, 2")
        l1, l2 = a.uid("L_wt"), a.uid("L_wt")
        a(f"s_cmp_ge_u32 s{sKT_}, s{sQ2}")
        a(f"s_cbranch_scc1 {l2}")
        a(f"s_mov_b32 s{sP}, 0")
        a.label(l1)
        a(f"buffer_load_dword v{vF0}, v{vFT}, {WS}, 0 offen sc1")
        a("s_waitcnt vmcnt(0)")
        a(f"v_readlane_b32 s{sKT_}, v{vF0}, 0")
        a(f"v_readlane_b32 s{sQ}, v{vF0}, 1")
        a(f"s_min_u32 s{sKT_}, s{sKT_}, s{sQ}")
        a(f"v_readlane_b32 s{sQ}, v{vF0}, 2")
        a(f"s_min_u32 s{sKT_}, s{sKT_}, s{sQ}")
        a(f"s_cmp_ge_u32 s{sKT_}, s{sQ2}")
        a(f"s_cbranch_scc1 {l2}")
        bounded(a, l1)
        a.label(l2)
    def wait_mem(a):
        l1, l2 = a.uid("L_wm"), a.uid("L_wm")
        a(f"s_cmp_gt_u32 s{sKM_}, s{F.sSeg}")
        a(f"s_cbranch_scc1 {l2}")
        a(f"s_mov_b32 s{sP}, 0")
        a.label(l1)
        a(f"buffer_load_dword v{vF0}, v{vFM}, {WS}, 0 offen sc1")
        a("s_waitcnt vmcnt(0)")
        a(f"v_readfirstlane_b32 s{sKM_}, v{vF0}")
        a(f"s_cmp_gt_u32 s{sKM_}, s{F.sSeg}")
        a(f"s_cbranch_scc1 {l2}")
        bounded(a, l1)
        a.label(l2)
    def sig(a):
        flag_store(a, vF0, f"s{F.sIt}", sQF)
    def fin(a):
        a("s_barrier")
        flag_store(a, vF0, "32", sQF)
    def sig_main(a, val):
        l = a.uid("L_sm")
        a(f"s_cmp_lg_u32 s{F.sJ}, 0")
        a(f"s_cbranch_scc1 {l}")
        flag_store(a, vF0, val, sQF)
        a.label(l)
    def gate_mem(a):
        l1, l2 = a.uid("L_gm"), a.uid("L_gm")
        a(f"s_mov_b32 s{sP}, 0")
        a(f"s_cmp_ge_u32 s{sKM_}, s{F.sSeg}")
        a(f"s_cbranch_scc1 {l2}")
        a.label(l1)
        a(f"buffer_load_dword v{vF0}, v{vFM}, {WS}, 0 offen sc1")
        a("s_waitcnt vmcnt(0)")
        a(f"v_readfirstlane_b32 s{sKM_}, v{vF0}")
        a(f"s_cmp_ge_u32 s{sKM_}, s{F.sSeg}")
        a(f"s_cbranch_scc1 {l2}")
        bounded(a, l1)
        a.label(l2)
    return dict(wait_tok=wait_tok, wait_mem=wait_mem, sig=sig, fin=fin, sig_main=sig_main, gate_mem=gate_mem, bounded=bounded)

def emit_final_role(a):
    a.label("L_final")
    if "nofin" in os.environ.get("XF", "").split(","): a("s_branch L_exit")
    if tz_on(): a("s_mov_b32 s62, 0")
    final.emit_final_init(a)
    sTask, sNeed = 30, 31
    vFl, vNd, vT = 124, 125, 126
    a(f"""s_lshl_b32 s{sTask}, s96, 2
s_add_u32 s{sTask}, s{sTask}, s{sW}""")
    a.label("L_fin_loop")
    a(f"""s_mul_i32 s{sQ}, s{sTask}, 1821
s_lshr_b32 s{sQ}, s{sQ}, 16                ; segment
s_lshr_b32 s{sNeed}, s{sQ}, 1
s_add_u32 s{sNeed}, s{sNeed}, 1
s_and_b32 s{sQ2}, s{sQ}, 1
s_lshl_b32 s{sQ2}, s{sQ2}, 4
s_add_u32 s{sQ2}, s{sQ2}, {FL_FO}
s_and_b32 s{sQ}, s{sQ}, 0xfffffffc
s_add_u32 s{sQ}, s{sQ}, {FL_FF - 16}
v_and_b32 v{vT}, 63, v0
v_mov_b32 v{vFl}, s{sQ2}
v_mov_b32 v{vNd}, s{sQ}
v_cmp_gt_u32 vcc, 16, v{vT}
v_cndmask_b32 v{vFl}, v{vNd}, v{vFl}, vcc
v_mov_b32 v{vNd}, s{sNeed}
v_cndmask_b32 v{vNd}, 1, v{vNd}, vcc
v_cmp_gt_u32 vcc, 20, v{vT}
v_cndmask_b32 v{vT}, 0, v{vT}, vcc
v_add_u32 v{vFl}, v{vFl}, v{vT}
v_mov_b32 v{vT}, s{sQ2}
v_cndmask_b32 v{vFl}, v{vT}, v{vFl}, vcc
v_mov_b32 v{vT}, s{sNeed}
v_cndmask_b32 v{vNd}, v{vT}, v{vNd}, vcc
v_lshlrev_b32 v{vFl}, 8, v{vFl}
v_add_u32 v{vFl}, {FLAGS}, v{vFl}
s_add_u32 s{sQ}, s{sQ}, 16
s_lshl_b32 s{sQ}, s{sQ}, 8
s_add_u32 s{sQ}, s{sQ}, {FLAGS}
s_mov_b32 s{sP}, 0""")
    fw0 = "fw0" in os.environ.get("XF", "").split(",")
    if fw0: a(f"s_cmp_lg_u32 s{sW}, 0\ns_cbranch_scc1 L_fin_bar")
    a.label("L_fin_p1")
    a("s_mov_b64 exec, 1")
    a(f"buffer_load_dword v{vT}, off, {WS}, s{sQ} sc1")
    a("s_mov_b64 exec, -1")
    a("s_waitcnt vmcnt(0)")
    a(f"v_readfirstlane_b32 s{sQ2}, v{vT}")
    a(f"s_cmp_ge_u32 s{sQ2}, 1")
    a("s_cbranch_scc1 L_fin_p1b" if fw0 else "s_cbranch_scc1 L_fin_p2")
    bounded(a, "L_fin_p1")
    if fw0:
        a.label("L_fin_p1b")
        a(f"""s_lshr_b32 s{sQ}, s{sTask}, 2
s_and_b32 s{sQ}, s{sQ}, 15
v_readfirstlane_b32 s{sQ2}, v{vFl}
s_lshl_b32 s{sQ}, s{sQ}, 8
s_add_u32 s{sQ}, s{sQ}, s{sQ2}""")
        a.label("L_fin_p1c")
        a("s_mov_b64 exec, 1")
        a(f"buffer_load_dword v{vT}, off, {WS}, s{sQ} sc1")
        a("s_mov_b64 exec, -1")
        a("s_waitcnt vmcnt(0)")
        a(f"v_readfirstlane_b32 s{sQ2}, v{vT}")
        a(f"s_add_u32 s{sQ2}, s{sQ2}, 1")
        a(f"s_cmp_ge_u32 s{sQ2}, s{sNeed}")
        a("s_cbranch_scc1 L_fin_p2")
        bounded(a, "L_fin_p1c")
    a.label("L_fin_p2")
    a(f"buffer_load_dword v{vT}, v{vFl}, {WS}, 0 offen sc1")
    a("s_waitcnt vmcnt(0)")
    a(f"v_cmp_lt_u32 vcc, v{vT}, v{vNd}")
    a("s_cbranch_vccz L_fin_bar" if fw0 else "s_cbranch_vccz L_fin_go")
    bounded(a, "L_fin_p2")
    if fw0:
        a.label("L_fin_bar")
        a("s_barrier")
    a.label("L_fin_go")
    final.emit_final_task(a, sTask)
    a(f"s_add_u32 s{sTask}, s{sTask}, 640")
    a(f"s_cmp_lt_u32 s{sTask}, {62*36}")
    a("s_cbranch_scc1 L_fin_loop")
    a(f"""s_cmp_lg_u32 s{sW}, 0
s_cbranch_scc1 L_exit
s_cmp_lt_u32 s96, 88
s_cbranch_scc1 L_exit
s_sub_u32 s{sTask}, s96, 88""")
    def zc(a):
        zcap(a, 60)
    final.emit_final_last(a, sTask, bounded, sP, FLAGS, FL_FF, FL_FO, zc)
    if tz_on():
        a("s_waitcnt vmcnt(0)")
        zcap(a, 64)
        zput(a, [(60, 12), (64, 13)], 5, mx=True, wave0=False)
    a("s_branch L_exit")

def build(tm=False):
    a = Asm()
    prologue(a)
    if tm: a("s_memtime s[88:89]")
    zput(a, [(86, 15)], 5, mx=True)
    a("s_mov_b32 s98, 0")
    chain.bst(a, 15, None)
    a(f"s_cmp_lt_u32 s{sRole}, 32")
    a("s_cbranch_scc1 L_chain")
    a(f"s_sub_u32 s96, s{sRole}, 32")
    a("s_cmp_lt_u32 s96, 64")
    a("s_cbranch_scc1 L_r_ln")
    a("s_cmp_lt_u32 s96, 160")
    a("s_cbranch_scc1 L_r_qkv")
    a("s_sub_u32 s96, s96, 160")
    if "fd" in os.environ.get("XF", "").split(","):
        wait_ln(a, 16)
        l1, l2 = a.uid("L_fd"), a.uid("L_fd")
        a(f"""s_cmp_lg_u32 s{sW}, 0
s_cbranch_scc1 {l2}
s_and_b32 s{sQ2}, s96, 31
s_add_u32 s{sQ2}, s{sQ2}, {FL_CH}
s_lshl_b32 s{sQ2}, s{sQ2}, 8
s_add_u32 s{sQ2}, s{sQ2}, {FLAGS}
s_mov_b32 s{sP}, 0""")
        a.label(l1)
        a(f"""buffer_load_dword v16, off, {WS}, s{sQ2} sc1
s_waitcnt vmcnt(0)
v_readfirstlane_b32 s{sQ}, v16
s_cmp_ge_u32 s{sQ}, 1
s_cbranch_scc1 {l2}""")
        bounded(a, l1)
        a.label(l2)
        a("s_barrier")
    ffn.emit_ffn(a, "L_r_ffn_end", ffn_hooks())
    a.label("L_r_ffn_end")
    a("s_branch L_final")
    a.label("L_r_qkv")
    a("s_sub_u32 s96, s96, 64")
    qkv.emit_qkv(a, "L_r_qkv_end", qkv_hooks())
    a.label("L_r_qkv_end")
    a("s_add_u32 s96, s96, 64")
    a("s_branch L_final")
    a.label("L_r_ln")
    a("s_mov_b32 s30, s96")
    emit_ln_role(a, 30)
    dstamp(a, 3, 8, [(96, 0)])
    a("""s_mov_b32 s30, 0
s_cmp_lt_u32 s96, 32
s_cbranch_scc1 L_r_fol""")
    a(f"""s_sub_u32 s{sRole}, s96, 32
s_mov_b32 s98, 96
s_load_dwordx2 s[{sT}:{sT+1}], s[0:1], {KA["Wo"]}
s_waitcnt lgkmcnt(0)
s_branch L_chain""")
    a.label("L_boot_exit")
    chain.bst(a, 8, True)
    a(f"""s_waitcnt vmcnt(0) lgkmcnt(0)
s_barrier
v_lshrrev_b32 v0, 4, v0
s_mov_b32 s96, s16
s_lshr_b32 s30, s96, 4
s_add_u32 s30, s30, 1""")
    a.label("L_r_fol")
    if "nofol" in os.environ.get("XF", "").split(","): a("s_branch L_exit")
    follow.emit_follow(a, "L_exit", follow_hooks())
    emit_final_role(a)
    chain.emit_chain(a, tm, fused=True)
    a.label("L_fail")
    a(f"""s_mov_b64 exec, 1
v_mov_b32 v78, 1
buffer_atomic_add v78, off, s[{sDBG}:{sDBG+3}], 0 offset:{4*D_ERR} sc1
s_waitcnt vmcnt(0)""")
    a.label("L_exit")
    a("s_endpgm")
    name = NAME + "_kernel"
    txt = HEADER.format(launch="; @launch grid=(256,1,1) block=(256,1,1) lds=163840") + kernel_open(name) + a.finalize() \
        + '.section .rodata,"a"\n.p2align 6\n' + kernel_desc(name)
    return txt

if __name__ == "__main__":
    out = sys.argv[1] if len(sys.argv) > 1 else f'cdna_kernels/{NAME}.s'
    tm = len(sys.argv) > 2 and sys.argv[2] == "tm"
    open(out, 'w').write(build(tm))
```

```python
import sys
sys.path.insert(0, 'gen')
from asm import *
from layout import *
from common import *
import ln, qkv, ffn, follow, final
import os, importlib
chain = importlib.import_module(os.environ.get("CH", "chain3"))
if os.environ.get("XF"): chain.X.update(x for x in os.environ["XF"].split(",") if x)

D_LN = 32
FL_CH, FL_QK, FL_FO, FL_FF = 0, 32, 128, 160
POLL_MAX = int(os.environ.get("POLLF", "400000"))
WS = f"s[{sWS}:{sWS+3}]"
DBGS = f"s[{sDBG}:{sDBG+3}]"
sP = 94
sQ, sQ2 = 92, 93

def bounded(a, retry):
    a(f"s_add_u32 s{sP}, s{sP}, 1")
    a(f"s_cmp_lt_u32 s{sP}, {POLL_MAX}")
    a(f"s_cbranch_scc1 {retry}")
    a("s_branch L_fail")

def wait_ln(a, vt):
    l1, l2 = a.uid("L_wl"), a.uid("L_wl")
    a(f"s_cmp_lg_u32 s{sW}, 0")
    a(f"s_cbranch_scc1 {l2}")
    a(f"s_mov_b32 s{sP}, 0")
    a.label(l1)
    a(f"buffer_load_dword v{vt}, off, {DBGS}, 0 offset:{4*D_LN} sc1")
    a("s_waitcnt vmcnt(0)")
    a(f"v_readfirstlane_b32 s{sQ}, v{vt}")
    a(f"s_cmp_ge_u32 s{sQ}, 64")
    a(f"s_cbranch_scc1 {l2}")
    bounded(a, l1)
    a.label(l2)
    a("s_barrier")

def flag_store(a, vt, sval, soff, wave=0):
    l = a.uid("L_fs")
    a(f"s_cmp_lg_u32 s{sW}, {wave}")
    a(f"s_cbranch_scc1 {l}")
    a(f"v_mov_b32 v{vt}, {sval}")
    a("s_mov_b64 exec, 1")
    a(f"buffer_store_dword v{vt}, off, {WS}, s{soff} sc1")
    a("s_mov_b64 exec, -1")
    a.label(l)

def emit_ln_role(a, sSeg):
    def sentinels(a):
        for r in range(132, 136): a(f"v_mov_b32 v{r}, -1")
        st = lambda: a(f"buffer_store_dwordx4 v[132:135], v6, {WS}, s{sQ} offen sc1")
        a(f"""s_mul_i32 s{sQ}, s{sSeg}, 12288
s_lshl_b32 s{sQ2}, s{sW}, 10
s_add_u32 s{sQ}, s{sQ}, s{sQ2}
s_add_u32 s{sQ}, s{sQ}, {KM + 58*131072}""")
        st(); a(f"s_add_u32 s{sQ}, s{sQ}, 4096"); st(); a(f"s_add_u32 s{sQ}, s{sQ}, 4096"); st()
        a(f"s_add_u32 s{sQ}, s{sQ}, {VM - KM - 8192}")
        st(); a(f"s_add_u32 s{sQ}, s{sQ}, 4096"); st(); a(f"s_add_u32 s{sQ}, s{sQ}, 4096"); st()
        a(f"""s_mul_i32 s{sQ}, s{sSeg}, 18432
s_add_u32 s{sQ}, s{sQ}, s{sQ2}
s_add_u32 s{sQ}, s{sQ}, {PO + 62*16*36864}""")
        for i in range(4):
            st(); a(f"s_add_u32 s{sQ}, s{sQ}, 4096")
        l = a.uid("L_sn")
        a(f"s_cmp_ge_u32 s{sW}, 2")
        a(f"s_cbranch_scc1 {l}")
        st()
        a.label(l)
    ln.emit_ln(a, sSeg, mid=sentinels)
    l = a.uid("L_zf")
    a(f"s_cmp_lg_u32 s{sW}, 0")
    a(f"s_cbranch_scc1 {l}")
    a(f"s_lshl_b32 s{sQ}, s{sSeg}, 10")
    a(f"s_add_u32 s{sQ}, s{sQ}, {FLAGS}")
    a("v_mov_b32 v8, 0\nv_mov_b32 v9, 0\nv_mov_b32 v10, 0\nv_mov_b32 v11, 0")
    a(f"buffer_store_dwordx4 v[8:11], v6, {WS}, s{sQ} offen sc1")
    a("s_waitcnt vmcnt(0)")
    a.label(l)
    a("s_barrier")
    l = a.uid("L_lna")
    a(f"s_cmp_lg_u32 s{sW}, 0")
    a(f"s_cbranch_scc1 {l}")
    a("s_mov_b64 exec, 1")
    a("v_mov_b32 v8, 1")
    a(f"buffer_atomic_add v8, off, {DBGS}, 0 offset:{4*D_LN} sc1")
    a("s_mov_b64 exec, -1")
    a.label(l)

sQF = 95
def qkv_hooks():
    def wait_xn(a):
        a(f"s_add_u32 s{sQF}, s96, {FL_QK}")
        a(f"s_lshl_b32 s{sQF}, s{sQF}, 8")
        a(f"s_add_u32 s{sQF}, s{sQF}, {FLAGS}")
        dstamp(a, 0, qkv.vTmp, [(96, 0)])
        wait_ln(a, qkv.vTmp)
        dstamp(a, 1, qkv.vTmp, [(96, 0)])
    def sig(a):
        a(f"s_sub_u32 s{sQ}, s{qkv.sSeg}, 1")
        a(f"s_max_i32 s{sQ}, s{sQ}, 0")
        flag_store(a, qkv.vTmp, f"s{sQ}", sQF)
        dstamp(a, 2, qkv.vTmp, [(96, 0), (qkv.sSeg, 2)])
    def fin(a):
        a("s_barrier")
        flag_store(a, qkv.vTmp, "32", sQF)
    return dict(wait_xn=wait_xn, sig=sig, fin=fin)

def ffn_hooks():
    def wait_xn(a):
        a(f"s_add_u32 s{sQF}, s96, {FL_FF}")
        a(f"s_lshl_b32 s{sQF}, s{sQF}, 8")
        a(f"s_add_u32 s{sQF}, s{sQF}, {FLAGS}")
        wait_ln(a, 16)
    def fin(a):
        a("s_barrier")
        flag_store(a, 16, "1", sQF)
    return dict(wait_xn=wait_xn, fin=fin)

vFT, vFM, vF0 = 5, 6, 38
sKT_, sKM_ = 90, 91
def follow_hooks():
    F = follow
    def wait_tok(a, which):
        if which == 0:
            a(f"s_add_u32 s{sQF}, s96, {FL_FO}")
            a(f"s_lshl_b32 s{sQF}, s{sQF}, 8")
            a(f"s_add_u32 s{sQF}, s{sQF}, {FLAGS}")
            a(f"""s_mul_i32 s{sQ}, s{F.sPar}, 48
s_add_u32 s{sQ}, s{sQ}, s{F.sHP}
s_add_u32 s{sQ}, s{sQ}, {FL_QK}
s_lshl_b32 s{sQ}, s{sQ}, 8
s_add_u32 s{sQ}, s{sQ}, {FLAGS}
v_and_b32 v{vF0}, 63, v0
v_cmp_gt_u32 vcc, 3, v{vF0}
v_cndmask_b32 v{vF0}, 0, v{vF0}, vcc
v_lshlrev_b32 v{vF0}, 12, v{vF0}
v_add_u32 v{vFT}, s{sQ}, v{vF0}
s_lshl_b32 s{sQ}, s{F.sHP}, 1
s_lshr_b32 s{sQ2}, s{sW}, 1
s_add_u32 s{sQ}, s{sQ}, s{sQ2}
s_add_u32 s{sQ}, s{sQ}, {FL_CH}
s_lshl_b32 s{sQ}, s{sQ}, 8
s_add_u32 s{sQ}, s{sQ}, {FLAGS}
v_mov_b32 v{vFM}, s{sQ}
s_mov_b32 s{sKT_}, 0
s_mov_b32 s{sKM_}, 0""")
            wait_ln(a, vF0)
            a(f"s_cmp_eq_u32 s{F.sJ}, 0")
            a(f"s_cselect_b32 s{sQ2}, 1, 32")
        else:
            a(f"s_add_u32 s{sQ2}, s{F.sIt}, 2")
        l1, l2 = a.uid("L_wt"), a.uid("L_wt")
        a(f"s_cmp_ge_u32 s{sKT_}, s{sQ2}")
        a(f"s_cbranch_scc1 {l2}")
        a(f"s_mov_b32 s{sP}, 0")
        a.label(l1)
        a(f"buffer_load_dword v{vF0}, v{vFT}, {WS}, 0 offen sc1")
        a("s_waitcnt vmcnt(0)")
        a(f"v_readlane_b32 s{sKT_}, v{vF0}, 0")
        a(f"v_readlane_b32 s{sQ}, v{vF0}, 1")
        a(f"s_min_u32 s{sKT_}, s{sKT_}, s{sQ}")
        a(f"v_readlane_b32 s{sQ}, v{vF0}, 2")
        a(f"s_min_u32 s{sKT_}, s{sKT_}, s{sQ}")
        a(f"s_cmp_ge_u32 s{sKT_}, s{sQ2}")
        a(f"s_cbranch_scc1 {l2}")
        bounded(a, l1)
        a.label(l2)
    def wait_mem(a):
        l1, l2 = a.uid("L_wm"), a.uid("L_wm")
        a(f"s_cmp_gt_u32 s{sKM_}, s{F.sSeg}")
        a(f"s_cbranch_scc1 {l2}")
        a(f"s_mov_b32 s{sP}, 0")
        a.label(l1)
        a(f"buffer_load_dword v{vF0}, v{vFM}, {WS}, 0 offen sc1")
        a("s_waitcnt vmcnt(0)")
        a(f"v_readfirstlane_b32 s{sKM_}, v{vF0}")
        a(f"s_cmp_gt_u32 s{sKM_}, s{F.sSeg}")
        a(f"s_cbranch_scc1 {l2}")
        bounded(a, l1)
        a.label(l2)
    def sig(a):
        flag_store(a, vF0, f"s{F.sIt}", sQF)
    def fin(a):
        a("s_barrier")
        flag_store(a, vF0, "32", sQF)
    def sig_main(a, val):
        l = a.uid("L_sm")
        a(f"s_cmp_lg_u32 s{F.sJ}, 0")
        a(f"s_cbranch_scc1 {l}")
        flag_store(a, vF0, val, sQF)
        a.label(l)
    def gate_mem(a):
        l1, l2 = a.uid("L_gm"), a.uid("L_gm")
        a(f"s_mov_b32 s{sP}, 0")
        a(f"s_cmp_ge_u32 s{sKM_}, s{F.sSeg}")
        a(f"s_cbranch_scc1 {l2}")
        a.label(l1)
        a(f"buffer_load_dword v{vF0}, v{vFM}, {WS}, 0 offen sc1")
        a("s_waitcnt vmcnt(0)")
        a(f"v_readfirstlane_b32 s{sKM_}, v{vF0}")
        a(f"s_cmp_ge_u32 s{sKM_}, s{F.sSeg}")
        a(f"s_cbranch_scc1 {l2}")
        bounded(a, l1)
        a.label(l2)
    return dict(wait_tok=wait_tok, wait_mem=wait_mem, sig=sig, fin=fin, sig_main=sig_main, gate_mem=gate_mem, bounded=bounded)

def emit_final_role(a):
    a.label("L_final")
    if "nofin" in os.environ.get("XF", "").split(","): a("s_branch L_exit")
    if tz_on(): a("s_mov_b32 s62, 0")
    final.emit_final_init(a)
    sTask, sNeed = 30, 31
    vFl, vNd, vT = 124, 125, 126
    a(f"""s_lshl_b32 s{sTask}, s96, 2
s_add_u32 s{sTask}, s{sTask}, s{sW}""")
    a.label("L_fin_loop")
    a(f"""s_mul_i32 s{sQ}, s{sTask}, 1821
s_lshr_b32 s{sQ}, s{sQ}, 16                ; segment
s_lshr_b32 s{sNeed}, s{sQ}, 1
s_add_u32 s{sNeed}, s{sNeed}, 1
s_and_b32 s{sQ2}, s{sQ}, 1
s_lshl_b32 s{sQ2}, s{sQ2}, 4
s_add_u32 s{sQ2}, s{sQ2}, {FL_FO}
s_and_b32 s{sQ}, s{sQ}, 0xfffffffc
s_add_u32 s{sQ}, s{sQ}, {FL_FF - 16}
v_and_b32 v{vT}, 63, v0
v_mov_b32 v{vFl}, s{sQ2}
v_mov_b32 v{vNd}, s{sQ}
v_cmp_gt_u32 vcc, 16, v{vT}
v_cndmask_b32 v{vFl}, v{vNd}, v{vFl}, vcc
v_mov_b32 v{vNd}, s{sNeed}
v_cndmask_b32 v{vNd}, 1, v{vNd}, vcc
v_cmp_gt_u32 vcc, 20, v{vT}
v_cndmask_b32 v{vT}, 0, v{vT}, vcc
v_add_u32 v{vFl}, v{vFl}, v{vT}
v_mov_b32 v{vT}, s{sQ2}
v_cndmask_b32 v{vFl}, v{vT}, v{vFl}, vcc
v_mov_b32 v{vT}, s{sNeed}
v_cndmask_b32 v{vNd}, v{vT}, v{vNd}, vcc
v_lshlrev_b32 v{vFl}, 8, v{vFl}
v_add_u32 v{vFl}, {FLAGS}, v{vFl}
s_add_u32 s{sQ}, s{sQ}, 16
s_lshl_b32 s{sQ}, s{sQ}, 8
s_add_u32 s{sQ}, s{sQ}, {FLAGS}
s_mov_b32 s{sP}, 0""")
    fw0 = "fw0" in os.environ.get("XF", "").split(",")
    if fw0: a(f"s_cmp_lg_u32 s{sW}, 0\ns_cbranch_scc1 L_fin_bar")
    a.label("L_fin_p1")
    a("s_mov_b64 exec, 1")
    a(f"buffer_load_dword v{vT}, off, {WS}, s{sQ} sc1")
    a("s_mov_b64 exec, -1")
    a("s_waitcnt vmcnt(0)")
    a(f"v_readfirstlane_b32 s{sQ2}, v{vT}")
    a(f"s_cmp_ge_u32 s{sQ2}, 1")
    a("s_cbranch_scc1 L_fin_p1b" if fw0 else "s_cbranch_scc1 L_fin_p2")
    bounded(a, "L_fin_p1")
    if fw0:
        a.label("L_fin_p1b")
        a(f"""s_lshr_b32 s{sQ}, s{sTask}, 2
s_and_b32 s{sQ}, s{sQ}, 15
v_readfirstlane_b32 s{sQ2}, v{vFl}
s_lshl_b32 s{sQ}, s{sQ}, 8
s_add_u32 s{sQ}, s{sQ}, s{sQ2}""")
        a.label("L_fin_p1c")
        a("s_mov_b64 exec, 1")
        a(f"buffer_load_dword v{vT}, off, {WS}, s{sQ} sc1")
        a("s_mov_b64 exec, -1")
        a("s_waitcnt vmcnt(0)")
        a(f"v_readfirstlane_b32 s{sQ2}, v{vT}")
        a(f"s_add_u32 s{sQ2}, s{sQ2}, 1")
        a(f"s_cmp_ge_u32 s{sQ2}, s{sNeed}")
        a("s_cbranch_scc1 L_fin_p2")
        bounded(a, "L_fin_p1c")
    a.label("L_fin_p2")
    a(f"buffer_load_dword v{vT}, v{vFl}, {WS}, 0 offen sc1")
    a("s_waitcnt vmcnt(0)")
    a(f"v_cmp_lt_u32 vcc, v{vT}, v{vNd}")
    a("s_cbranch_vccz L_fin_bar" if fw0 else "s_cbranch_vccz L_fin_go")
    bounded(a, "L_fin_p2")
    if fw0:
        a.label("L_fin_bar")
        a("s_barrier")
    a.label("L_fin_go")
    final.emit_final_task(a, sTask)
    a(f"s_add_u32 s{sTask}, s{sTask}, 640")
    a(f"s_cmp_lt_u32 s{sTask}, {62*36}")
    a("s_cbranch_scc1 L_fin_loop")
    a(f"""s_cmp_lg_u32 s{sW}, 0
s_cbranch_scc1 L_exit
s_cmp_lt_u32 s96, 88
s_cbranch_scc1 L_exit
s_sub_u32 s{sTask}, s96, 88""")
    def zc(a):
        zcap(a, 60)
    final.emit_final_last(a, sTask, bounded, sP, FLAGS, FL_FF, FL_FO, zc)
    if tz_on():
        a("s_waitcnt vmcnt(0)")
        zcap(a, 64)
        zput(a, [(60, 12), (64, 13)], 5, mx=True, wave0=False)
    a("s_branch L_exit")

def build(tm=False):
    a = Asm()
    prologue(a)
    if tm: a("s_memtime s[88:89]")
    zput(a, [(86, 15)], 5, mx=True)
    a(f"s_cmp_lt_u32 s{sRole}, 32")
    a("s_cbranch_scc1 L_chain")
    a(f"s_sub_u32 s96, s{sRole}, 32")
    a("s_cmp_lt_u32 s96, 64")
    a("s_cbranch_scc1 L_r_ln")
    a("s_cmp_lt_u32 s96, 160")
    a("s_cbranch_scc1 L_r_qkv")
    a("s_sub_u32 s96, s96, 160")
    if "fd" in os.environ.get("XF", "").split(","):
        wait_ln(a, 16)
        l1, l2 = a.uid("L_fd"), a.uid("L_fd")
        a(f"""s_cmp_lg_u32 s{sW}, 0
s_cbranch_scc1 {l2}
s_and_b32 s{sQ2}, s96, 31
s_add_u32 s{sQ2}, s{sQ2}, {FL_CH}
s_lshl_b32 s{sQ2}, s{sQ2}, 8
s_add_u32 s{sQ2}, s{sQ2}, {FLAGS}
s_mov_b32 s{sP}, 0""")
        a.label(l1)
        a(f"""buffer_load_dword v16, off, {WS}, s{sQ2} sc1
s_waitcnt vmcnt(0)
v_readfirstlane_b32 s{sQ}, v16
s_cmp_ge_u32 s{sQ}, 1
s_cbranch_scc1 {l2}""")
        bounded(a, l1)
        a.label(l2)
        a("s_barrier")
    ffn.emit_ffn(a, "L_r_ffn_end", ffn_hooks())
    a.label("L_r_ffn_end")
    a("s_branch L_final")
    a.label("L_r_qkv")
    a("s_sub_u32 s96, s96, 64")
    if "qd" in os.environ.get("XF", "").split(","):
        l0, l1, l2 = a.uid("L_qd"), a.uid("L_qd"), a.uid("L_qd")
        a(f"""s_cmp_ge_u32 s96, 48
s_cselect_b32 s{sQ}, 48, 0
s_sub_u32 s{sQ}, s96, s{sQ}
s_cmp_lt_u32 s{sQ}, 32
s_cbranch_scc1 {l0}""")
        wait_ln(a, 16)
        a(f"""s_cmp_lg_u32 s{sW}, 0
s_cbranch_scc1 {l2}
s_and_b32 s{sQ2}, s96, 31
s_add_u32 s{sQ2}, s{sQ2}, {FL_CH}
s_lshl_b32 s{sQ2}, s{sQ2}, 8
s_add_u32 s{sQ2}, s{sQ2}, {FLAGS}
s_mov_b32 s{sP}, 0""")
        a.label(l1)
        a(f"""buffer_load_dword v16, off, {WS}, s{sQ2} sc1
s_waitcnt vmcnt(0)
v_readfirstlane_b32 s{sQ}, v16
s_cmp_ge_u32 s{sQ}, 1
s_cbranch_scc1 {l2}""")
        bounded(a, l1)
        a.label(l2)
        a("s_barrier")
        a.label(l0)
    qkv.emit_qkv(a, "L_r_qkv_end", qkv_hooks())
    a.label("L_r_qkv_end")
    a("s_add_u32 s96, s96, 64")
    a("s_branch L_final")
    a.label("L_r_ln")
    a("s_mov_b32 s30, s96")
    emit_ln_role(a, 30)
    dstamp(a, 3, 8, [(96, 0)])
    a("""s_mov_b32 s30, 0
s_cmp_lt_u32 s96, 32
s_cbranch_scc1 L_r_fol
s_sub_u32 s96, s96, 32
s_lshr_b32 s30, s96, 4
s_add_u32 s30, s30, 1""")
    a.label("L_r_fol")
    if "nofol" in os.environ.get("XF", "").split(","): a("s_branch L_exit")
    follow.emit_follow(a, "L_exit", follow_hooks())
    emit_final_role(a)
    chain.emit_chain(a, tm, fused=True)
    a.label("L_fail")
    a(f"""s_mov_b64 exec, 1
v_mov_b32 v78, 1
buffer_atomic_add v78, off, s[{sDBG}:{sDBG+3}], 0 offset:{4*D_ERR} sc1
s_waitcnt vmcnt(0)""")
    a.label("L_exit")
    a("s_endpgm")
    name = NAME + "_kernel"
    txt = HEADER.format(launch="; @launch grid=(256,1,1) block=(256,1,1) lds=163840") + kernel_open(name) + a.finalize() \
        + '.section .rodata,"a"\n.p2align 6\n' + kernel_desc(name)
    return txt

if __name__ == "__main__":
    out = sys.argv[1] if len(sys.argv) > 1 else f'cdna_kernels/{NAME}.s'
    tm = len(sys.argv) > 2 and sys.argv[2] == "tm"
    open(out, 'w').write(build(tm))
```
